```python
import torch

def _softmax(x, axis=-1):
    return torch.softmax(x, dim=axis)
def _gelu(x):
    return torch.nn.functional.gelu(x, approximate="tanh")
def _silu(x):
    return torch.nn.functional.silu(x)
def _sigmoid(x):
    return torch.sigmoid(x)
def _layernorm(x, axis=-1, eps=1e-5):
    m = x.mean(dim=axis, keepdim=True)
    v = x.var(dim=axis, keepdim=True, unbiased=False)
    return (x - m) / torch.sqrt(v + eps)
def _scatter_add(tgt, idx, src, axis=0):
    return tgt.clone().index_add_(axis, idx, src)
def _segment_sum(src, seg, n):
    out = torch.zeros((n,) + src.shape[1:], dtype=src.dtype)
    return out.index_add_(0, seg, src)
def _pad(x, pw):
    flat = tuple(v for pair in reversed(pw) for v in pair)
    return torch.nn.functional.pad(x, flat)

kernel_name = 'concat_heads__compressed_kv_cla__softmax_full_mha__prompt'

def setup_inputs():

    _w = (lambda a: (lambda t: t.to(torch.bfloat16) if t.is_floating_point() else t)(torch.as_tensor(a)))
    def _A_setup():
        B, H, Sq, Sk, D, M = 1, 32, 2048, 2048, 128, 576
        Dc = 4 * D
        return {
            "x": _w((lambda *s: torch.randn(*s, dtype=torch.bfloat16) * 0.4)(B, Sq, M)),
            "c_kv": _w((lambda *s: torch.randn(*s, dtype=torch.bfloat16) * 1.6)(B, Sk, Dc)),
            "w_q": _w((lambda *s: torch.randn(*s, dtype=torch.bfloat16) * 6.4)(M, H, D) * (M ** -0.5)),
            "w_uk": _w((lambda *s: torch.randn(*s, dtype=torch.bfloat16) * 6.4)(Dc, H, D) * (Dc ** -0.5)),
            "w_uv": _w((lambda *s: torch.randn(*s, dtype=torch.bfloat16) * 1.6)(Dc, H, D) * (Dc ** -0.5)),
            "w_o": _w((lambda *s: torch.randn(*s, dtype=torch.bfloat16) * 1.6)(H, D, M) * ((H * D) ** -0.5)),
        }
    _A_in = _A_setup()

    def _B_setup():
        B, S, D = 1, 2048, 576
        return {
            "x": _w((lambda *s: torch.randn(*s, dtype=torch.bfloat16) * 0.4)(B, S, D)),
            "wqkv": _w((lambda *s: torch.randn(*s, dtype=torch.bfloat16) * 0.4)(D, 3 * D)),
            "wo": _w((lambda *s: torch.randn(*s, dtype=torch.bfloat16) * 0.05)(D, D)),
        }
    _B_in = _B_setup()

    return {
        "A_x": _A_in["x"],
        "A_c_kv": _A_in["c_kv"],
        "A_w_q": _A_in["w_q"],
        "A_w_uk": _A_in["w_uk"],
        "A_w_uv": _A_in["w_uv"],
        "A_w_o": _A_in["w_o"],
        "B_x": _B_in["x"],
        "B_wqkv": _B_in["wqkv"],
        "B_wo": _B_in["wo"],
    }

def reference(A_x, A_c_kv, A_w_q, A_w_uk, A_w_uv, A_w_o, B_x, B_wqkv, B_wo):
    def _A_ref(x, c_kv, w_q, w_uk, w_uv, w_o):
        B, Sq, M = x.shape[0], x.shape[1], x.shape[2]
        Sk = c_kv.shape[1]
        H, D = w_q.shape[1], w_q.shape[2]
        q = torch.einsum("bqm,mhd->bhqd", x, w_q)
        k = torch.einsum("bkc,chd->bhkd", c_kv, w_uk)
        v = torch.einsum("bkc,chd->bhkd", c_kv, w_uv)
        scores = torch.einsum("bhqd,bhkd->bhqk", q, k) * (D ** -0.5)
        off = Sk - Sq
        qi = torch.arange(Sq)[:, None]
        kj = torch.arange(Sk)[None, :]
        cmask = kj <= (qi + off)
        scores = torch.where(cmask[None, None], scores, -1e9)
        p = _softmax(scores, axis=-1)
        ctx = torch.einsum("bhqk,bhkd->bhqd", p, v)
        return torch.einsum("bhqd,hdm->bqm", ctx, w_o)

    def _B_ref(x, wqkv, wo):
        B, S, D = x.shape
        H = 32; Dh = D // H
        qkv = (lambda x, *d: x.permute(*d))((x @ wqkv).reshape(B, S, 3, H, Dh), 2, 0, 3, 1, 4)
        q, k, v = qkv[0], qkv[1], qkv[2]
        scale = Dh ** -0.5
        scores = torch.einsum("bhqd,bhkd->bhqk", q, k) * scale
        p = _softmax(scores, axis=-1)
        o = torch.einsum("bhqk,bhkd->bhqd", p, v)
        return (lambda x, *d: x.permute(*d))(o, 0, 2, 1, 3).reshape(B, S, D) @ wo

    a = _A_ref(A_x, A_c_kv, A_w_q, A_w_uk, A_w_uv, A_w_o)
    b = _B_ref(B_x, B_wqkv, B_wo)
    return torch.concatenate([a, b], axis=-1)
```

```python
import re

def v(n, c=1):  return f"v{n}" if c == 1 else f"v[{n}:{n+c-1}]"
def a(n, c=1):  return f"a{n}" if c == 1 else f"a[{n}:{n+c-1}]"
def s(n, c=1):  return f"s{n}" if c == 1 else f"s[{n}:{n+c-1}]"

TRANS = ("v_exp_f32", "v_log_f32", "v_rcp_f32", "v_rsq_f32", "v_sqrt_f32", "v_sin_f32", "v_cos_f32", "v_rcp_iflag_f32")
COST4 = 4

def mfma_passes(op):
    if "32x32x16" in op or "32x32x8" in op: return 8
    if "16x16x32" in op or "16x16x16" in op: return 4
    raise ValueError(op)

_reg_re = re.compile(r"^(-|abs\()?([vas])(\d+)\)?$")
_rng_re = re.compile(r"^(-)?([vas])\[(\d+):(\d+)\]$")

def regs_of(tok):
    tok = tok.strip()
    m = _reg_re.match(tok)
    if m: return [(m.group(2), int(m.group(3)))]
    m = _rng_re.match(tok)
    if m: return [(m.group(2), i) for i in range(int(m.group(3)), int(m.group(4)) + 1)]
    if tok == "vcc": return [("s", 106), ("s", 107)]
    if tok == "exec": return [("s", 126), ("s", 127)]
    if tok == "m0": return [("s", 124)]
    if tok == "vcc_lo": return [("s", 106)]
    if tok == "vcc_hi": return [("s", 107)]
    if tok == "exec_lo": return [("s", 126)]
    if tok == "exec_hi": return [("s", 127)]
    return []

class Ins:
    __slots__ = ("text", "op", "ops", "mods", "kind", "wr", "rd", "lds", "nstates", "cost")
    def __init__(self, text):
        self.text = text
        t = text.split(";")[0].strip()
        self.lds = False
        parts = t.split(None, 1)
        self.op = parts[0]
        rest = parts[1] if len(parts) > 1 else ""
        ops = [x.strip() for x in re.split(r",(?![^\[]*\])", rest)] if rest else []
        mods = []
        if ops:
            last = ops[-1].split()
            if len(last) > 1:
                ops[-1] = last[0]; mods = last[1:]
        self.ops = ops; self.mods = mods
        op = self.op
        for suf in ("_e32", "_e64", "_sdwa", "_dpp"):
            if op.endswith(suf): op = op[:-len(suf)]
        self.op = op
        R = lambda i: regs_of(ops[i]) if i < len(ops) else []
        wr, rd = [], []
        self.nstates = 1
        self.cost = 4
        if op.startswith("v_mfma"):
            self.kind = "mfma"; wr = R(0); rd = R(1) + R(2) + R(3); self.cost = 8
        elif op.startswith("v_"):
            self.kind = "valu"
            if op in TRANS: self.kind = "trans"; self.cost = 8
            if op.startswith("v_cmpx"):
                wr = R(0) + regs_of("exec"); rd = sum((R(i) for i in range(1, len(ops))), [])
            elif op.startswith("v_cmp"):
                wr = R(0); rd = sum((R(i) for i in range(1, len(ops))), [])
            elif op.startswith("v_permlane") and "swap" in op:
                wr = R(0) + R(1); rd = R(0) + R(1)
            elif op in ("v_add_co_u32", "v_sub_co_u32", "v_subrev_co_u32"):
                wr = R(0) + R(1); rd = R(2) + R(3)
            elif op in ("v_addc_co_u32", "v_subb_co_u32"):
                wr = R(0) + R(1); rd = R(2) + R(3) + R(4)
            elif op in ("v_fmac_f32", "v_mac_f32", "v_dot2c_f32_bf16"):
                wr = R(0); rd = R(0) + R(1) + R(2)
            elif op == "v_writelane_b32":
                wr = R(0); rd = R(0) + R(1) + R(2)
            elif op == "v_nop":
                pass
            else:
                wr = R(0); rd = sum((R(i) for i in range(1, len(ops))), [])
            rd += regs_of("exec") if False else []
        elif op.startswith("ds_"):
            self.kind = "ds"
            if op.startswith("ds_read") or op.startswith("ds_bpermute") or op.startswith("ds_permute") or op.startswith("ds_swizzle"):
                wr = R(0); rd = sum((R(i) for i in range(1, len(ops))), [])
            else:
                rd = sum((R(i) for i in range(len(ops))), [])
        elif op.startswith("buffer_") or op.startswith("global_"):
            self.kind = "vmem"
            self.lds = "lds" in mods or "_lds_" in op
            allr = [R(i) for i in range(len(ops))]
            if op.startswith("buffer_load") and not self.lds:
                wr = allr[0]; rd = sum(allr[1:], [])
            elif op.startswith("global_load") and not self.lds:
                wr = allr[0]; rd = sum(allr[1:], [])
            else:
                rd = sum(allr, [])
                if self.lds: rd += regs_of("m0")
                if "atomic" in op and "sc0" in mods: wr = allr[0]
        elif op.startswith("s_"):
            self.kind = "salu"
            if op == "s_nop":
                self.nstates = int(ops[0], 0) + 1; self.cost = 4 * self.nstates; self.kind = "nop"
            elif op in ("s_waitcnt", "s_barrier", "s_endpgm", "s_branch", "s_setprio", "s_sleep") or op.startswith("s_cbranch"):
                self.kind = "ctl"
                if op == "s_waitcnt": self.mods = t.split(None, 1)[1].replace(",", " ").split()
            elif op.startswith("s_cmp") or op.startswith("s_bitcmp"):
                rd = sum((R(i) for i in range(len(ops))), [])
            elif op.startswith("s_load") or op.startswith("s_buffer_load") or op in ("s_memtime", "s_memrealtime"):
                self.kind = "smem"; wr = R(0); rd = sum((R(i) for i in range(1, len(ops))), [])
            elif op.endswith("saveexec_b64"):
                wr = R(0) + regs_of("exec"); rd = R(1) + regs_of("exec")
            else:
                wr = R(0); rd = sum((R(i) for i in range(1, len(ops))), [])
                if op in ("s_addk_i32", "s_mulk_i32"): rd += R(0)
        else:
            raise ValueError("unknown instruction: " + text)
        self.wr, self.rd = wr, rd

def is_instr(line):
    t = line.split(";")[0].strip()
    return bool(t) and not t.endswith(":") and not t.startswith(".")

def check(lines, name="", verbose=True, init_vm=0):
    ins = [Ins(l) for l in lines if is_instr(l)]
    errs = []
    pos = 0
    last_valu_w = {}
    last_trans_w = {}
    last_mfma_w = {}
    last_mfma_c = {}
    last_salu_w = {}
    last_store_data = {}
    valu_sgpr_w = {}
    lgkm = []
    vm = [(set(), "init")] * init_vm
    pend = {}
    def dist(p): return pos - p - 1
    last_mfma_issue = None
    for k, I in enumerate(ins):
        if I.kind == "mfma":
            if last_mfma_issue is not None: pos = max(pos, last_mfma_issue[0] + last_mfma_issue[1])
            last_mfma_issue = (pos, mfma_passes(I.op))
        def err(msg): errs.append(f"[{name}] #{k} {I.text.strip()}  :: {msg}")
        for r in I.rd + I.wr:
            if r in pend and not (I.kind in ("ds", "vmem") and r in I.wr and r not in I.rd and pend[r] == ("ds" if I.kind == "ds" else "vm")):
                err(f"register {r} has a pending {pend[r]} load")
        if I.kind == "mfma":
            P = mfma_passes(I.op)
            D = I.wr; C = regs_of(I.ops[3]); AB = regs_of(I.ops[1]) + regs_of(I.ops[2])
            for r in I.rd:
                if r in last_valu_w and dist(last_valu_w[r]) < 2: err(f"VALU write {r} -> MFMA read needs 2 (has {dist(last_valu_w[r])})")
            for r in AB:
                if r in last_mfma_w:
                    p, pp, _ = last_mfma_w[r]
                    need = {2:5, 4:8, 8:12, 16:20}[pp]
                    if dist(p) < need: err(f"MFMA D {r} -> MFMA A/B needs {need} (has {dist(p)})")
            for r in C:
                if r in last_mfma_w:
                    p, pp, regs = last_mfma_w[r]
                    if tuple(regs) == tuple(C) and pp == P: continue
                    need = {2:4, 4:6, 8:10, 16:18}[pp]
                    if dist(p) < need: err(f"MFMA D {r} -> MFMA C overlap needs {need} (has {dist(p)})")
            for r in D:
                if r in last_mfma_w and r not in C:
                    p, pp, regs = last_mfma_w[r]
                    need = {2:4, 4:6, 8:10, 16:18}[pp]
                    if dist(p) < need: err(f"MFMA D {r} -> MFMA D WAW (has {dist(p)})")
        elif I.kind in ("valu", "trans"):
            for r in I.rd + I.wr:
                if r in last_mfma_w:
                    p, pp, _ = last_mfma_w[r]
                    need = {2:5, 4:8, 8:12, 16:20}[pp]
                    if dist(p) < need: err(f"MFMA D {r} -> VALU needs {need} (has {dist(p)})")
            for r in I.wr:
                if r in last_mfma_c:
                    p, pp = last_mfma_c[r]
                    need = {2:1, 4:3, 8:7, 16:15}[pp]
                    if dist(p) < need: err(f"MFMA SrcC {r} -> VALU write WAR needs {need} (has {dist(p)})")
                if r in last_store_data and dist(last_store_data[r]) < 2: err(f"wide store data {r} overwritten too early")
            if I.kind == "valu":
                for r in I.rd:
                    if r in last_trans_w and dist(last_trans_w[r]) < 1: err(f"trans write {r} -> VALU read needs 1")
            if I.op.startswith("v_permlane"):
                for r in I.rd:
                    if r in last_valu_w and dist(last_valu_w[r]) < 2: err(f"VALU write {r} -> permlane needs 2")
            if I.op in ("v_readfirstlane_b32", "v_readlane_b32"):
                for r in I.rd:
                    if r[0] == "v" and r in last_valu_w and dist(last_valu_w[r]) < 1: err(f"VALU write {r} -> readlane needs 1")
                    if r[0] == "s" and r in valu_sgpr_w and dist(valu_sgpr_w[r]) < 4: err(f"VALU sgpr write {r} -> lane select needs 4")
            if "dpp" in I.text or "row_" in I.text:
                for r in I.rd:
                    if r in last_valu_w and dist(last_valu_w[r]) < 2: err(f"VALU write {r} -> DPP needs 2")
            for r in I.rd:
                if r[0] == "s" and r in valu_sgpr_w and dist(valu_sgpr_w[r]) < 2: err(f"VALU sgpr write {r} -> VALU read needs 2")
        elif I.kind in ("ds", "vmem"):
            for r in I.rd + I.wr:
                if r in last_mfma_w:
                    p, pp, _ = last_mfma_w[r]
                    need = {2:5, 4:8, 8:12, 16:20}[pp]
                    if dist(p) < need: err(f"MFMA D {r} -> mem op needs {need} (has {dist(p)})")
            for r in I.wr:
                if r in last_mfma_c:
                    p, pp = last_mfma_c[r]
                    need = {2:1, 4:3, 8:7, 16:15}[pp]
                    if dist(p) < need: err(f"MFMA SrcC {r} -> load write WAR needs {need} (has {dist(p)})")
            if I.kind == "vmem":
                for r in I.rd:
                    if r[0] == "s" and r in valu_sgpr_w and dist(valu_sgpr_w[r]) < 5: err(f"VALU sgpr write {r} -> VMEM read needs 5")
                if I.lds and ("s", 124) in last_salu_w and dist(last_salu_w[("s", 124)]) < 1: err("m0 write -> LDS DMA needs 1")
        elif I.kind == "salu":
            for r in I.rd:
                if r in valu_sgpr_w and dist(valu_sgpr_w[r]) < 1: err(f"VALU sgpr write {r} -> SALU read (pad 1+)")
        if I.op == "s_waitcnt":
            for m in I.mods:
                mm = re.match(r"(vmcnt|lgkmcnt|expcnt)\((\d+)\)", m)
                if not mm: continue
                n = int(mm.group(2))
                q = vm if mm.group(1) == "vmcnt" else lgkm if mm.group(1) == "lgkmcnt" else None
                if q is None: continue
                while len(q) > n:
                    regs, _ = q.pop(0)
                    for r in regs:
                        if not any(r in x[0] for x in q): pend.pop(r, None)
        if I.kind == "ds":
            lgkm.append((set(I.wr), I.text))
            for r in I.wr: pend[r] = "ds"
            if len(lgkm) > 15 and False: err("lgkmcnt overflow >15")
        elif I.kind == "smem":
            lgkm.append((set(I.wr), I.text)); lgkm.append((set(I.wr), I.text))
            for r in I.wr: pend[r] = "smem"
        elif I.kind == "vmem":
            vm.append((set(I.wr), I.text))
            for r in I.wr: pend[r] = "vm"
            if len(vm) > 63: err(f"vmcnt overflow ({len(vm)})")
        if I.kind == "mfma":
            P = mfma_passes(I.op)
            for r in I.wr:
                last_mfma_w[r] = (pos, P, I.wr); last_valu_w.pop(r, None)
            for r in regs_of(I.ops[3]): last_mfma_c[r] = (pos, P)
        elif I.kind in ("valu", "trans"):
            for r in I.wr:
                if r[0] == "s": valu_sgpr_w[r] = pos
                else:
                    last_valu_w[r] = pos; last_mfma_w.pop(r, None)
                    if I.kind == "trans": last_trans_w[r] = pos
                    else: last_trans_w.pop(r, None)
        elif I.kind == "salu":
            for r in I.wr:
                last_salu_w[r] = pos; valu_sgpr_w.pop(r, None)
        elif I.kind in ("ds", "vmem"):
            for r in I.wr:
                last_mfma_w.pop(r, None); last_valu_w.pop(r, None)
            if I.kind == "vmem" and ("store" in I.op) and ("x4" in I.op or "x3" in I.op):
                for r in regs_of(I.ops[0]): last_store_data[r] = pos
        pos += I.nstates
    if verbose:
        for e in errs[:60]: print(e)
        if len(errs) > 60: print(f"... {len(errs)-60} more")
    return errs

def gap_report(lines, name=""):
    ins = [Ins(l) for l in lines if is_instr(l)]
    gaps = []; cur = 0; n = 0
    for I in ins:
        if I.kind == "mfma":
            gaps.append(cur); cur = 0; n += 1
        else:
            cur += I.cost
    gaps.append(cur)
    tot = sum(max(32, g + 8) for g in gaps[1:]) + gaps[0]
    print(f"[{name}] mfma={n} fillers_cost={sum(gaps)} gaps={gaps} est_cycles={tot}")
    return gaps

def weave(backbone, streams):
    n = len(backbone)
    slots = {g: [] for g in range(-1, n)}
    for lines, g0, g1 in streams:
        m = len(lines); span = g1 - g0
        for i, l in enumerate(lines):
            g = g0 + (i * span) // m
            slots[g].append(l)
    out = list(slots[-1])
    for g in range(n):
        out.append(backbone[g]); out.extend(slots[g])
    return out

def cost_of(line):
    if not is_instr(line): return 0
    I = Ins(line)
    if I.kind == "ds": return 8
    if I.kind == "vmem": return 8
    return I.cost

def _schedule(ngaps, fixed, streams, L):
    load = {g: sum(cost_of(l) for l in fixed.get(g, [])) for g in range(ngaps)}
    placed = {}
    ptr = [0] * len(streams)
    G = max(op[2] for s_ in streams for op in s_) + 1
    g0 = min(op[1] for s_ in streams for op in s_)
    forced = 0
    for g in range(g0, G):
        while True:
            cand = []
            for si, st in enumerate(streams):
                if ptr[si] < len(st):
                    l, e, d = st[ptr[si]]
                    if e <= g:
                        cand.append((d, si))
            if not cand: break
            cand.sort()
            done = False
            for d, si in cand:
                l = streams[si][ptr[si]][0]
                c = cost_of(l)
                gm = g % ngaps
                if load[gm] + c <= L or d <= g:
                    if load[gm] + c > L: forced += load[gm] + c - L
                    placed.setdefault(g, []).append(l); load[gm] += c; ptr[si] += 1
                    done = True
                    break
            if not done: break
    for si, st in enumerate(streams):
        assert ptr[si] == len(st), f"stream {si} not fully placed {ptr[si]}/{len(st)}"
    return placed, load, forced

def schedule(ngaps, fixed, streams, budget=None, cyclic=True):
    best = None
    for L in range(8, 64, 2):
        placed, load, forced = _schedule(ngaps, fixed, streams, L)
        if forced == 0:
            best = (placed, load, forced); break
        if best is None or forced < best[2]: best = (placed, load, forced)
    placed = best[0]
    asg = []
    for st in streams:
        lst = []
        used = {}
        for (l, e, d) in st:
            for g in sorted(placed):
                cnt = placed[g].count(l)
                if cnt - used.get((g, l), 0) > 0 and g >= (lst[-1] if lst else -10**9) and e <= g <= d:
                    used[(g, l)] = used.get((g, l), 0) + 1
                    lst.append(g); break
            else:
                raise RuntimeError("lost op " + l)
        asg.append(lst)
    load = {g: sum(cost_of(l) for l in fixed.get(g, [])) for g in range(ngaps)}
    for st, lst in zip(streams, asg):
        for (l, e, d), g in zip(st, lst): load[g % ngaps] += cost_of(l)
    import random, math
    rnd = random.Random(1234)
    def pen(x): return x * x + (40 * (x - 22) ** 2 if x > 22 else 0)
    flat_ops = [(si, i) for si, st in enumerate(streams) for i in range(len(st))]
    costs = [[cost_of(l) for (l, e, d) in st] for st in streams]
    T = 200.0
    bestE = sum(pen(x) for x in load.values()); cur = bestE
    best_asg = [list(x) for x in asg];
    N = 60000
    for it in range(N):
        T = 200.0 * (1 - it / N) + 0.01
        si, i = flat_ops[rnd.randrange(len(flat_ops))]
        st, lst = streams[si], asg[si]
        l, e, d = st[i]; c = costs[si][i]; g = lst[i]
        ng = g + (1 if rnd.random() < 0.5 else -1)
        if ng < e or ng > d: continue
        if i + 1 < len(lst) and ng > lst[i + 1]: continue
        if i > 0 and ng < lst[i - 1]: continue
        a_, b_ = load[g % ngaps], load[ng % ngaps]
        dE = pen(a_ - c) + pen(b_ + c) - pen(a_) - pen(b_)
        if dE <= 0 or rnd.random() < math.exp(-dE / T):
            load[g % ngaps] -= c; load[ng % ngaps] += c; lst[i] = ng; cur += dE
            if cur < bestE: bestE = cur; best_asg = [list(x) for x in asg]
    asg = best_asg
    load = {g: sum(cost_of(l) for l in fixed.get(g, [])) for g in range(ngaps)}
    for st, lst in zip(streams, asg):
        for (l, e, d), g in zip(st, lst): load[g % ngaps] += cost_of(l)
    out = {}
    for st, lst in zip(streams, asg):
        for (l, e, d), g in zip(st, lst): out.setdefault(g, []).append(l)
    return out, load


def op_cost(op, dma_cost=12, ds_cost=6, st_cost=16):
    if isinstance(op, (tuple, list)): return sum(op_cost(x, dma_cost, ds_cost, st_cost) for x in op)
    if not is_instr(op): return 0
    I = Ins(op)
    if I.kind == "ds": return ds_cost
    if I.kind == "vmem": return st_cost if "store" in I.op else dma_cost
    return I.cost

def anneal(ngaps, base_load, streams, cap=22, iters_per_op=250, seed=7):
    import random, math
    rnd = random.Random(seed)
    load = list(base_load)
    costs = [[op_cost(o) for (o, e, d) in st] for st in streams]
    asg = []
    for st, cs in zip(streams, costs):
        lst = []
        n = len(st)
        i = 0
        while i < n:
            j = i
            while j < n and st[j][1:] == st[i][1:]: j += 1
            e, d = st[i][1], st[i][2]
            for t in range(i, j):
                g = e + ((t - i) * (d - e + 1)) // (j - i)
                if lst and g < lst[-1]: g = lst[-1]
                g = min(max(g, e), d)
                if lst and g < lst[-1]: g = lst[-1]
                lst.append(g)
            i = j
        for t in range(n):
            assert st[t][1] <= lst[t] <= st[t][2], (st[t], lst[t])
            load[lst[t]] += cs[t]
        asg.append(lst)
    def pen(x): return x * x + (30 * (x - cap) ** 2 if x > cap else 0)
    flat = [(si, i) for si, st in enumerate(streams) for i in range(len(st))]
    if not flat: return asg, load
    N = iters_per_op * len(flat)
    cur = 0.0; best = 0.0; best_asg = [list(x) for x in asg]
    for it in range(N):
        T = 150.0 * (1 - it / N) + 0.01
        si, i = flat[rnd.randrange(len(flat))]
        st, lst = streams[si], asg[si]
        e, d = st[i][1], st[i][2]; c = costs[si][i]; g = lst[i]
        ng = g + (1 if rnd.random() < 0.5 else -1)
        if ng < e or ng > d: continue
        if i + 1 < len(lst) and ng > lst[i + 1]: continue
        if i > 0 and ng < lst[i - 1]: continue
        a_, b_ = load[g], load[ng]
        dE = pen(a_ - c) + pen(b_ + c) - pen(a_) - pen(b_)
        if dE <= 0 or rnd.random() < math.exp(-dE / T):
            load[g] -= c; load[ng] += c; lst[i] = ng; cur += dE
            if cur < best - 1e-9: best = cur; best_asg = [list(x) for x in asg]
    load = list(base_load)
    for lst, cs in zip(best_asg, costs):
        for g, c in zip(lst, cs): load[g] += c
    return best_asg, load
```

```python
from gen_common import *
from gen_relayout import relayout_issue, relayout_finish
import struct, os
def f32bits(x): return struct.unpack("<I", struct.pack("<f", x))[0]
BIAS = 96
THR = 2.0 ** 64
KRING, VRING = 4, 4
VBASE = KRING * 16384
LDS_A = 147456
BIG = 1.0e30
STF = ' ' + os.environ.get('STQ', 'sc1')
BUDGET = int(os.environ.get('BUDGET', 20))

def gen_atta(k, label="A"):
    I = k.I
    ex = os.environ.get("EXP", "")
    SW = 4
    (sHead, sPair, sWave, sT, sT2, sIt, sKsrc, sVsrc, sWK, sWV, sNT, sTile, sR, sX, sVcur, sThr, sQlo, sQhi, sEnd, sT3) = range(16, 36)
    vL16, vT, vT2, vT3, vT4, vKc, vKn, vVc, vD0, vD1, vU, vL16V = 1, 2, 3, 4, 5, 6, 7, 8, 9, 10, 11, 15
    LA, LB, LLOW = 12, 13, 14
    S = [16, 32]; NM = [48, 64]; CM = [80, 96]; P = [112, 120]; KF = 128; VF = 160; TMP = 192
    OL, OH, QL, QH = 0, 64, 128, 160
    def kf(j): return v(KF + 4 * j, 4)
    def vf(j): return v(VF + 4 * j, 4)
    if os.environ.get("STAMPS"): I("s_mov_b32 s60, 0")
    I("s_load_dwordx2 s[12:13], s[0:1], 88")
    I(f"v_lshrrev_b32 {v(vT)}, 6, v0", "v_and_b32 v0, 63, v0", "s_nop 0", f"v_readfirstlane_b32 {s(sWave)}, {v(vT)}")
    I(f"s_and_b32 {s(sT)}, s2, 7", f"s_lshr_b32 {s(sT2)}, s2, 3", f"s_and_b32 {s(sPair)}, {s(sT2)}, 7", f"s_lshr_b32 {s(sT2)}, {s(sT2)}, 3",
      f"s_lshl_b32 {s(sHead)}, {s(sT)}, 2", f"s_add_u32 {s(sHead)}, {s(sHead)}, {s(sT2)}")
    I(f"s_lshr_b32 s3, s2, 3", "s_lshl_b32 s3, s3, 2", f"s_add_u32 s3, s3, {s(sWave)}")
    k.code_prefetch("aa", "atta_kernel", "L_end_atta_kernel", 7, 3, 8, 250, True)
    I("s_waitcnt lgkmcnt(0)")
    k.srd(SW, 12, LY.WS_END)
    I(f"v_lshlrev_b32 {v(vL16)}, 4, v0")
    I(f"s_lshl_b32 {s(sT)}, {s(sPair)}, 1", f"s_sub_u32 {s(sNT)}, 32, {s(sT)}")
    I(f"s_lshl_b32 {s(sT)}, {s(sHead)}, 19", f"s_lshl_b32 {s(sT2)}, {s(sWave)}, 12", f"s_add_u32 {s(sKsrc)}, {s(sT)}, {s(sT2)}",
      f"s_add_u32 {s(sVsrc)}, {s(sKsrc)}, {LY.WS_VA}")
    if LY.WS_KA: I(f"s_add_u32 {s(sKsrc)}, {s(sKsrc)}, {LY.WS_KA}")
    I(f"s_mov_b32 {s(sWK)}, {s(sT2)}", f"s_add_u32 {s(sWV)}, {s(sT2)}, {VBASE}")
    def ld(src, j): return f"buffer_load_dwordx4 {v(vL16)}, {s(SW,4)}, {s(src)} offen" + (f" offset:{j*1024}" if j else "") + " lds"
    def dma_static(isK, slot):
        src = sKsrc if isK else sVsrc
        return [f"s_add_u32 m0, {s(sWK if isK else sWV)}, {slot*16384}", "s_nop 0"] + [ld(src, j) for j in range(4)] + [f"s_add_u32 {s(src)}, {s(src)}, 16384"]
    def dmaK0(): return dma_static(True, 0)
    I(dma_static(True, 0), dma_static(False, 0), dma_static(True, 1))
    I(f"s_lshl_b32 {s(sQlo)}, {s(sPair)}, 2", f"s_add_u32 {s(sQlo)}, {s(sQlo)}, {s(sWave)}",
      f"s_lshl_b32 {s(sT)}, {s(sPair)}, 2", f"s_sub_u32 {s(sQhi)}, 60, {s(sT)}", f"s_add_u32 {s(sQhi)}, {s(sQhi)}, {s(sWave)}")
    for (sq, base) in ((sQlo, QL), (sQhi, QH)):
        I(f"s_lshl_b32 {s(sT)}, {s(sHead)}, 6", f"s_add_u32 {s(sT)}, {s(sT)}, {s(sq)}", f"s_lshl_b32 {s(sT)}, {s(sT)}, 13", f"s_add_u32 {s(sT)}, {s(sT)}, {LY.WS_QA}",
          f"s_add_u32 {s(sT2)}, {s(sT)}, 4096")
        for j in range(8):
            I(f"buffer_load_dwordx4 {a(base+4*j,4)}, {v(vL16)}, {s(SW,4)}, {s(sT if j < 4 else sT2)} offen offset:{(j%4)*1024}")
    I(dma_static(True, 2), dma_static(False, 1), dma_static(True, 3))
    I(f"v_and_b32 {v(vT)}, 31, v0", f"v_lshrrev_b32 {v(vT2)}, 5, v0", f"v_lshlrev_b32 {v(vT2)}, 2, {v(vT2)}", f"v_sub_u32 {v(vT)}, {v(vT)}, {v(vT2)}")
    for (sq, vd) in ((sQlo, vD0), (sQhi, vD1)):
        I(f"s_lshl_b32 {s(sT)}, {s(sq)}, 5", f"v_add_u32 {v(vd)}, {s(sT)}, {v(vT)}", f"v_cvt_f32_i32 {v(vd)}, {v(vd)}")
    for i in range(128): I(f"v_accvgpr_write_b32 {a(i)}, 0")
    I(f"v_mov_b32 {v(LA)}, 0", f"v_mov_b32 {v(LB)}, 0", f"s_mov_b32 {s(sThr)}, {f32bits(THR)}")
    I(f"s_mov_b32 {s(sR)}, 0", f"s_mov_b32 {s(sX)}, 0x8000", f"s_mov_b32 {s(sTile)}, 0")
    I(f"v_add_u32 {v(vKn)}, 16384, {v(vL16)}", f"v_add_u32 {v(vL16V)}, {VBASE}, {v(vL16)}", f"v_mov_b32 {v(vVc)}, {v(vL16V)}")

    def rdK(j, base, step): return f"ds_read_b128 {kf(j)}, {v(base)} offset:{step*8192 + j*1024}"
    def rdV(j, step): return f"ds_read_b128 {vf(j)}, {v(vVc)} offset:{step*8192 + j*1024}"
    def QK(sb, Q, C):
        return [f"v_mfma_f32_32x32x16_bf16 {v(S[sb],16)}, {kf(j)}, {a(Q+4*j,4)}, {C if j == 0 else v(S[sb],16)}" for j in range(8)]
    def PV(pb, O):
        return [f"v_mfma_f32_32x32x16_bf16 {a(O+16*(j%4),16)}, {vf(j)}, {v(P[pb]+4*(j//4),4)}, {a(O+16*(j%4),16)}" for j in range(8)]
    def sm_ea(sb, l):
        L = []
        b = S[sb]
        for i in range(16):
            L.append(f"v_exp_f32 {v(b+i)}, {v(b+i)}")
            if i >= 2: L.append(f"v_add_f32 {v(l)}, {v(l)}, {v(b+i-2)}")
        L += [f"v_add_f32 {v(l)}, {v(l)}, {v(b+14)}", f"v_add_f32 {v(l)}, {v(l)}, {v(b+15)}"]
        return L
    def sm_cvt(sb, lo): return [f"v_cvt_pk_bf16_f32 {v(P[sb]+i)}, {v(S[sb]+2*i)}, {v(S[sb]+2*i+1)}" for i in range(lo, lo + 4)]
    def mask_ops(cb, nm, vd):
        L = [f"v_mul_f32 {v(vU)}, 0x{f32bits(BIG):08x}, {v(vd)}"]
        for r in range(16):
            c = (r & 3) + 8 * (r >> 2)
            L += [f"v_add_f32 {v(CM[cb]+r)}, 0x{f32bits(-(c - 0.5) * BIG):08x}, {v(vU)}"]
        for r in range(16):
            L += [f"v_min_f32 {v(CM[cb]+r)}, {v(nm)}, {v(CM[cb]+r)}"]
        L += [f"v_subrev_f32 {v(vd)}, 0x{f32bits(32.0):08x}, {v(vd)}" if False else f"v_add_f32 {v(vd)}, 0x{f32bits(-32.0):08x}, {v(vd)}"]
        return L

    EA1 = sm_ea(1, LB); CV1 = sm_cvt(1, 0) + sm_cvt(1, 4)
    NSPLIT = int(os.environ.get('NSPLIT', 14))
    A1 = EA1[:NSPLIT]; B1 = EA1[NSPLIT:] + CV1
    def build(mode, sit, masked=(False, False), prep=None, extra=None):
        if mode == "P1":   Qa, Qb, Oa, Ob, Na, Nb = QL, QH, OL, OH, NM[0], NM[1]
        elif mode == "HY": Qa, Qb, Oa, Ob, Na, Nb = QH, QH, OL, OH, NM[1], NM[1]
        else:              Qa, Qb, Oa, Ob, Na, Nb = QH, QH, OH, OH, NM[1], NM[1]
        Ca = v(CM[0], 16) if masked[0] else v(Na, 16)
        Cb = v(CM[1], 16) if masked[1] else v(Nb, 16)
        m = QK(0, Qa, Ca) + QK(1, Qb, Cb) + PV(0, Oa) + PV(1, Ob)
        fixed = {g: [] for g in range(32)}
        pre = {g: [] for g in range(32)}
        if extra:
            for g, ls in extra.items(): pre[g] += ls
        if mode == "P1":
            for j in range(8): fixed[8 + j].append(rdV(j, sit))
            for j in range(8): fixed[24 + j].append(rdK(j, vKc, sit))
            waits = {15: 4, 19: 0, 31: 4, 3: 0}
        elif mode == "HY":
            for j in range(8): fixed[j].append(rdK(j, vKc, 1))
            for j in range(8): fixed[8 + j].append(rdV(j, 1))
            for j in range(8): fixed[24 + j].append(rdK(j, vKn, 0))
            waits = {3: 4, 7: 4, 11: 4, 15: 4, 19: 0, 31: 4}
        elif mode == "P2":
            for j in range(8): fixed[j].append(rdK(j, vKc, 1))
            for j in range(8): fixed[8 + j].append(rdV(j, 0))
            for j in range(8): fixed[16 + j].append(rdV(j, 1))
            for j in range(8): fixed[24 + j].append(rdK(j, vKn, 0))
            waits = {3: 4, 7: 4, 11: 4, 15: 4, 19: 4, 23: 4, 27: 4, 31: 4}
        else:
            for j in range(8): fixed[8 + j].append(rdV(j, 0))
            for j in range(8): fixed[16 + j].append(rdV(j, 1))
            waits = {15: 4, 19: 4, 23: 4, 27: 0}
        allfixed = {g: pre[g] + fixed[g] + ([f"s_waitcnt lgkmcnt({waits[g]})"] if g in waits else []) for g in range(32)}
        streams = [[(l, 0, 7) for l in B1]]
        if mode != "DR":
            streams.append([(l, 9, 25) for l in sm_ea(0, LA)] + [(l, 19, 29) for l in sm_cvt(0, 0)] + [(l, 23, 30) for l in sm_cvt(0, 4)])
            streams.append([(l, 17, 31) for l in A1])
        if prep:
            for (cb, nm, vd) in prep:
                streams.append([(l, 10 if cb == 0 else 18, 31) for l in mask_ops(cb, nm, vd)])
        placed, load = schedule(32, allfixed, streams, budget=BUDGET if not prep else 32)
        out = []
        for g in range(32):
            if mode == "DR" and g < 16: pass
            else: out.append(m[g])
            body = pre[g] + fixed[g] + placed.get(g, [])
            if g in waits: body.append(f"s_waitcnt lgkmcnt({waits[g]})")
            out += body
        def keep(l):
            if "nolds" in ex and l.startswith("ds_read"): return False
            if "nomfma" in ex and l.startswith("v_mfma"): return False
            if "nocvt" in ex and l.startswith("v_cvt_pk"): return False
            if "noexp" in ex and l.startswith("v_exp"): return False
            if "noadd" in ex and l.startswith("v_add_f32"): return False
            if "nobar" in ex and l.startswith("s_barrier"): return False
            if "nodma" in ex and (l.startswith("buffer_load")): return False
            if "novm" in ex and l.startswith("s_waitcnt vmcnt"): return False
            if "nolg" in ex and l.startswith("s_waitcnt lgkm"): return False
            if "novalu" in ex and (l.startswith("v_exp") or l.startswith("v_add_f32") or l.startswith("v_cvt_pk")): return False
            return True
        return [l for l in out if keep(l)]

    def tile_ctl(tag, nvm=8, doK=True, doV=True):
        d = {}
        d[7] = [f"s_waitcnt vmcnt({nvm})", "s_barrier"]
        g = 8
        if doK:
            d.setdefault(8, []).append(f"s_or_b32 m0, {s(sR)}, {s(sWK)}")
            for j in range(4): d.setdefault(10 + 2 * j, []).append(ld(sKsrc, j))
            d.setdefault(17, []).append(f"s_add_u32 {s(sKsrc)}, {s(sKsrc)}, 16384")
        if doV:
            d.setdefault(17, []).append(f"s_add_u32 m0, {s(sX)}, {s(sWV)}")
            for j in range(4): d.setdefault(18 + 2 * j, []).append(ld(sVsrc, j))
            d.setdefault(25, []).append(f"s_add_u32 {s(sVsrc)}, {s(sVsrc)}, 16384")
        return d
    def check_ops(tag, two):
        L = [f"v_max_f32 {v(vT)}, {v(LA)}, {v(LB)}", f"v_cmp_lt_f32 vcc, {s(sThr)}, {v(vT)}"]
        L += [f"s_cbranch_vccnz L_{label}_rare_{tag}" if not ex else "s_nop 0", f"L_{label}_ret_{tag}:"]
        return L
    def adv_scalar():
        return {26: [f"s_add_u32 {s(sR)}, {s(sR)}, 16384", f"s_add_u32 {s(sTile)}, {s(sTile)}, 1"],
                27: [f"s_and_b32 {s(sR)}, {s(sR)}, 0xffff"],
                28: [f"s_xor_b32 {s(sX)}, {s(sR)}, 0x8000", f"v_add_u32 {v(vVc)}, {s(sR)}, {v(vL16V)}"]}
    def merge(*ds):
        o = {}
        for d in ds:
            for g, ls in d.items(): o.setdefault(g, []).extend(ls)
        return o
    P1HEAD = {1: [f"v_mov_b32 {v(vKc)}, {v(vKn)}", f"v_add_u32 {v(vKn)}, {s(sX)}, {v(vL16)}"]}
    P2HEAD = {1: [f"v_add_u32 {v(vKn)}, {s(sX)}, {v(vL16)}"], 12: [f"v_mov_b32 {v(vKc)}, {v(vKn)}"]}
    HYX = {12: [f"v_mov_b32 {v(vKc)}, {v(vKn)}"]}
    def advance(): return []
    def rare(tag, two):
        L = ["s_nop 7", "s_nop 7"]
        def scale_p(pb, al):
            o = []
            for i in range(8):
                o += [f"v_lshlrev_b32 {v(vT3)}, 16, {v(P[pb]+i)}", f"v_and_b32 {v(vT4)}, 0xffff0000, {v(P[pb]+i)}",
                      f"v_ldexp_f32 {v(vT3)}, {v(vT3)}, {v(al)}", f"v_ldexp_f32 {v(vT4)}, {v(vT4)}, {v(al)}", f"v_cvt_pk_bf16_f32 {v(P[pb]+i)}, {v(vT3)}, {v(vT4)}"]
            return o
        def kof(src_regs):
            o = [f"v_mov_b32 {v(vT)}, {v(src_regs[0])}"]
            for r in src_regs[1:]: o.append(f"v_add_f32 {v(vT)}, {v(vT)}, {v(r)}")
            o += [f"v_mov_b32 {v(vT2)}, {v(vT)}", "s_nop 1", f"v_permlane32_swap_b32 {v(vT)}, {v(vT2)}", "s_nop 1", f"v_add_f32 {v(vT)}, {v(vT)}, {v(vT2)}",
                  f"v_frexp_exp_i32_f32 {v(TMP)}, {v(vT)}", f"v_add_u32 {v(TMP)}, 0x{BIAS:x}, {v(TMP)}", f"v_max_i32 {v(TMP)}, 0, {v(TMP)}",
                  f"v_cvt_f32_i32 {v(TMP+2)}, {v(TMP)}", f"v_sub_u32 {v(TMP+1)}, 0, {v(TMP)}"]
            return o
        def scale_o(O):
            o = []
            for i in range(64):
                t = TMP + 4 + (i % 4)
                o += [f"v_accvgpr_read_b32 {v(t)}, {a(O+i)}", f"v_ldexp_f32 {v(t)}, {v(t)}, {v(TMP+1)}", f"v_accvgpr_write_b32 {a(O+i)}, {v(t)}"]
            return o
        def sub16(base): return [f"v_sub_f32 {v(base+i)}, {v(base+i)}, {v(TMP+2)}" for i in range(16)]
        if two:
            for q in range(2):
                L += kof([LA if q == 0 else LB])
                L += [f"v_ldexp_f32 {v(LA if q == 0 else LB)}, {v(LA if q == 0 else LB)}, {v(TMP+1)}"]
                L += scale_o(OL if q == 0 else OH) + scale_p(q, TMP + 1) + sub16(S[q]) + sub16(NM[q])
        else:
            L += kof([LA, LB])
            L += [f"v_ldexp_f32 {v(LA)}, {v(LA)}, {v(TMP+1)}", f"v_ldexp_f32 {v(LB)}, {v(LB)}, {v(TMP+1)}"]
            L += scale_o(OH) + scale_p(0, TMP + 1) + scale_p(1, TMP + 1) + sub16(S[0]) + sub16(S[1]) + sub16(NM[1])
        L += ["s_nop 1", f"s_branch L_{label}_ret_{tag}"]
        return L
    rares = []

    I("s_waitcnt vmcnt(12)", "s_barrier")
    for j in range(8): I(rdK(j, vL16, 0))
    I(f"v_mov_b32 {v(TMP)}, 0")
    I(mask_ops(0, TMP, vD0)); I(mask_ops(1, TMP, vD1))
    I("s_waitcnt lgkmcnt(0)")
    I(QK(0, QL, v(CM[0], 16))); I(QK(1, QH, v(CM[1], 16)))
    for j in range(8): I(rdK(j, vL16, 1))
    I("s_nop 7", "s_nop 7")
    for q in range(2):
        b = S[q]
        I(f"v_max3_f32 {v(vT)}, {v(b)}, {v(b+1)}, {v(b+2)}")
        for i in range(3, 15, 2): I(f"v_max3_f32 {v(vT)}, {v(vT)}, {v(b+i)}, {v(b+i+1)}")
        I(f"v_max_f32 {v(vT)}, {v(vT)}, {v(b+15)}", f"v_mov_b32 {v(vT2)}, {v(vT)}", "s_nop 1",
          f"v_permlane32_swap_b32 {v(vT)}, {v(vT2)}", "s_nop 1", f"v_max_f32 {v(vT)}, {v(vT)}, {v(vT2)}",
          f"v_add_f32 {v(vT)}, 0x{f32bits(float(BIAS)):08x}, {v(vT)}")
        for i in range(16): I(f"v_sub_f32 {v(NM[q]+i)}, 0, {v(vT)}")
        for i in range(16): I(f"v_sub_f32 {v(b+i)}, {v(b+i)}, {v(vT)}")
    I(sm_ea(0, LA), "s_nop 0", sm_cvt(0, 0), sm_cvt(0, 4), A1)
    I("s_waitcnt lgkmcnt(0)")
    k.stamp(1)
    I(f"s_lshl_b32 {s(sEnd)}, {s(sPair)}, 1", f"s_sub_u32 {s(sEnd)}, {s(sEnd)}, 1")
    I(f"s_cmp_lt_i32 {s(sEnd)}, 1", f"s_cbranch_scc1 L_{label}_p1m_enter")
    I(f"L_{label}_p1:")
    e = tile_ctl("p1"); e[8] = e.get(8, []) + check_ops("p1", True)
    b1 = build("P1", 0, extra=merge(e, P1HEAD)); b2 = build("P1", 1, extra=adv_scalar())
    I(b1, b2, advance())
    I(f"s_cmp_lt_i32 {s(sTile)}, {s(sEnd)}", f"s_cbranch_scc1 L_{label}_p1")
    rares.append(("p1", True))
    flat = lambda L: [l for l in L if not l.endswith(":") and not l.startswith("s_cbranch")]
    pro = [rdK(j, vL16, 1) for j in range(8)] + A1 + ["s_waitcnt lgkmcnt(0)"]
    check(pro + flat(b1 + b2 + advance()) * 2, "atta_p1"); gap_report(flat(b1 + b2 + advance()), "atta_p1")
    I(f"L_{label}_p1m_enter:")
    I(f"s_lshl_b32 {s(sT)}, {s(sTile)}, 6", f"v_cvt_f32_u32 {v(vT)}, {s(sT)}", f"v_sub_f32 {v(vD0)}, {v(vD0)}, {v(vT)}")
    I(mask_ops(0, NM[0], vD0))
    I(f"s_lshl_b32 {s(sEnd)}, {s(sPair)}, 1", f"s_add_u32 {s(sEnd)}, {s(sEnd)}, 1")
    I(f"L_{label}_p1m:")
    e = tile_ctl("p1m"); e[8] = e.get(8, []) + check_ops("p1m", True)
    b1 = build("P1", 0, masked=(True, False), prep=[(0, NM[0], vD0)], extra=merge(e, P1HEAD))
    b2 = build("P1", 1, masked=(True, False), prep=[(0, NM[0], vD0)], extra=adv_scalar())
    I(b1, b2, advance())
    I(f"s_cmp_lt_u32 {s(sTile)}, {s(sEnd)}", f"s_cbranch_scc1 L_{label}_p1m")
    rares.append(("p1m", True))
    check(pro + flat(b1 + b2 + advance()) * 2, "atta_p1m"); gap_report(flat(b1 + b2 + advance()), "atta_p1m")
    e = tile_ctl("p1l"); e[8] = e.get(8, []) + check_ops("p1lm", True)
    I(f"s_lshl_b32 {s(sT)}, {s(sTile)}, 6", f"s_add_u32 {s(sT)}, {s(sT)}, 32", f"v_cvt_f32_u32 {v(vT)}, {s(sT)}", f"v_sub_f32 {v(vD1)}, {v(vD1)}, {v(vT)}")
    b1 = build("P1", 0, masked=(True, False), extra=merge(e, P1HEAD))
    I(b1)
    rares.append(("p1lm", True))
    I(mask_ops(0, NM[1], vD1), mask_ops(1, NM[1], vD1))
    I(f"v_mov_b32 {v(LLOW)}, {v(LA)}", f"v_mov_b32 {v(LA)}, 0")
    b2 = build("HY", 1, masked=(True, True), extra=merge(HYX, adv_scalar()))
    I(b2, advance())
    check(pro + flat(b1) + flat(b2), "atta_hy")
    I(f"s_sub_u32 {s(sEnd)}, {s(sNT)}, 3")
    I(f"s_cmp_ge_u32 {s(sTile)}, {s(sEnd)}", f"s_cbranch_scc1 L_{label}_p2m_enter")
    I(f"L_{label}_p2:")
    e = tile_ctl("p2"); e[8] = e.get(8, []) + check_ops("p2", False)
    b1 = build("P2", 0, extra=merge(e, P2HEAD, adv_scalar()))
    I(b1, advance())
    I(f"s_cmp_lt_u32 {s(sTile)}, {s(sEnd)}", f"s_cbranch_scc1 L_{label}_p2")
    rares.append(("p2", False))
    check(pro + flat(b1 + advance()) * 3, "atta_p2"); gap_report(flat(b1 + advance()), "atta_p2")
    I(f"L_{label}_p2m_enter:")
    I(f"v_and_b32 {v(vT)}, 31, v0", f"v_lshrrev_b32 {v(vT2)}, 5, v0", f"v_lshlrev_b32 {v(vT2)}, 2, {v(vT2)}", f"v_sub_u32 {v(vT)}, {v(vT)}, {v(vT2)}",
      f"s_lshl_b32 {s(sT)}, {s(sQhi)}, 5", f"s_lshl_b32 {s(sT2)}, {s(sTile)}, 6", f"s_add_u32 {s(sT2)}, {s(sT2)}, 64", f"s_sub_i32 {s(sT)}, {s(sT)}, {s(sT2)}",
      f"v_add_u32 {v(vD1)}, {s(sT)}, {v(vT)}", f"v_cvt_f32_i32 {v(vD1)}, {v(vD1)}")
    I(f"s_sub_u32 {s(sEnd)}, {s(sNT)}, 1")
    I(f"L_{label}_p2m:")
    I(mask_ops(0, NM[1], vD1), mask_ops(1, NM[1], vD1))
    e = tile_ctl("p2m", nvm=4, doK=False); e[8] = e.get(8, []) + check_ops("p2m", False)
    b1 = build("P2", 0, masked=(True, True), extra=merge(e, P2HEAD, adv_scalar()))
    I(b1, advance())
    I(f"s_cmp_lt_u32 {s(sTile)}, {s(sEnd)}", f"s_cbranch_scc1 L_{label}_p2m")
    rares.append(("p2m", False))
    e = {7: ["s_waitcnt vmcnt(4)", "s_barrier"]}
    b1 = build("DR", 0, extra=e)
    I(b1)
    check(pro + flat(build("P2", 0)) + flat(b1), "atta_dr")
    k.stamp(2)
    relayout_issue(k, sHead, sWave, sPair, vL16)
    I("s_nop 7", "s_nop 7")
    I(f"v_add_f32 {v(LA)}, {v(LA)}, {v(LB)}")
    ZR, CK = S[0], S[1]
    def epilogue(with_check):
        if with_check:
            for i in range(4): I(f"v_mov_b32 {v(ZR+i)}, 0")
        first = True
        for (O, lreg, sq) in ((OL, LLOW, sQlo), (OH, LA, sQhi)):
            I(f"v_mov_b32 {v(vT)}, {v(lreg)}", f"v_mov_b32 {v(vT2)}, {v(lreg)}", "s_nop 1", f"v_permlane32_swap_b32 {v(vT)}, {v(vT2)}", "s_nop 1",
              f"v_add_f32 {v(vT)}, {v(vT)}, {v(vT2)}")
            if with_check:
                I(f"v_mul_f32 {v(vU)}, 0, {v(vT)}" if O == OL else f"v_fma_f32 {v(vU)}, {v(vT)}, 0, {v(vU)}")
            I(f"v_rcp_f32 {v(vT)}, {v(vT)}")
            I(f"s_lshl_b32 {s(sT)}, {s(sq)}, 18", f"s_lshl_b32 {s(sT2)}, {s(sHead)}, 13", f"s_add_u32 {s(sT)}, {s(sT)}, {s(sT2)}", f"s_add_u32 {s(sT)}, {s(sT)}, {LY.WS_CTX}",
              f"s_add_u32 {s(sT2)}, {s(sT)}, 4096")
            for f in range(8):
                base = O + (f >> 1) * 16 + (f & 1) * 8
                tb = TMP + (f % 2) * 12 if False else (KF + (f % 4) * 12)
                for i in range(8): I(f"v_accvgpr_read_b32 {v(tb+i)}, {a(base+i)}")
                for i in range(8): I(f"v_mul_f32 {v(tb+i)}, {v(vT)}, {v(tb+i)}")
                for i in range(4): I(f"v_cvt_pk_bf16_f32 {v(tb+8+i)}, {v(tb+2*i)}, {v(tb+2*i+1)}")
                I(f"buffer_store_dwordx4 {v(tb+8,4)}, {v(vL16)}, {s(SW,4)}, {s(sT if f < 4 else sT2)} offen offset:{(f%4)*1024}{STF}")
                if with_check:
                    I("s_nop 0", f"v_mfma_f32_32x32x16_bf16 {v(CK,16)}, {v(ZR,4)}, {v(tb+8,4)}, {'0' if first else v(CK,16)}")
                    first = False
    epilogue(True)
    I("s_nop 7", "s_nop 7")
    I(f"v_add_f32 {v(vU)}, {v(vU)}, {v(CK)}", "s_nop 0", f"v_cmp_u_f32 vcc, {v(vU)}, {v(vU)}", f"s_cbranch_vccnz L_{label}_slow" if not ex else "s_nop 0")
    if os.environ.get("STAMPS"):
        I("v_mov_b32 v250, s60", "v_mov_b32 v252, 0", "s_lshl_b32 s96, s2, 6", "s_add_u32 s96, s96, 40", f"s_add_u32 s96, s96, {LY.WS_STAMP}",
          f"buffer_store_dword v250, v252, {s(SW,4)}, s96 offen") if False else None
    I(f"L_{label}_tail:")
    relayout_finish(k, sHead, sWave, sPair, vL16, SW)
    k.stamp(3)
    k.stampval(5, "s60")
    I("s_endpgm")
    for tag, two in rares:
        I(f"L_{label}_rare_{tag}:")
        if os.environ.get("STAMPS"): I(f"s_add_u32 s60, s60, 1")
        I(rare(tag, two))
    I(f"L_{label}_slow:")
    k.stamp(4)
    sN, sKa, sVa = sEnd, sKsrc, sVsrc
    vM, vA, vMx, vDs = TMP + 24, TMP + 25, TMP + 26, TMP + 27
    for (O, Q, lreg, sq) in ((OL, QL, LLOW, sQlo), (OH, QH, LA, sQhi)):
        tg = "lo" if O == OL else "hi"
        for i in range(64): I(f"v_accvgpr_write_b32 {a(O+i)}, 0")
        I(f"v_mov_b32 {v(lreg)}, 0", f"v_mov_b32 {v(vM)}, 0xff7fffff")
        I(f"v_and_b32 {v(vT)}, 31, v0", f"v_lshrrev_b32 {v(vT2)}, 5, v0", f"v_lshlrev_b32 {v(vT2)}, 2, {v(vT2)}", f"v_sub_u32 {v(vT)}, {v(vT)}, {v(vT2)}",
          f"s_lshl_b32 {s(sT)}, {s(sq)}, 5", f"v_add_u32 {v(vDs)}, {s(sT)}, {v(vT)}", f"v_cvt_f32_i32 {v(vDs)}, {v(vDs)}")
        I(f"s_add_u32 {s(sN)}, {s(sq)}, 1", f"s_mov_b32 {s(sIt)}, 0")
        I(f"s_lshl_b32 {s(sKa)}, {s(sHead)}, 19", f"s_add_u32 {s(sVa)}, {s(sKa)}, {LY.WS_VA}")
        if LY.WS_KA: I(f"s_add_u32 {s(sKa)}, {s(sKa)}, {LY.WS_KA}")
        I(f"L_{label}_slow_{tg}:")
        I(f"s_add_u32 {s(sT)}, {s(sKa)}, 4096", f"s_add_u32 {s(sT2)}, {s(sVa)}, 4096")
        for j in range(8): I(f"buffer_load_dwordx4 {kf(j)}, {v(vL16)}, {s(SW,4)}, {s(sKa if j < 4 else sT)} offen offset:{(j%4)*1024}")
        for j in range(8): I(f"buffer_load_dwordx4 {vf(j)}, {v(vL16)}, {s(SW,4)}, {s(sVa if j < 4 else sT2)} offen offset:{(j%4)*1024}")
        I(f"v_mov_b32 {v(vA)}, 0")
        I(mask_ops(0, vA, vDs))
        I("s_waitcnt vmcnt(0)")
        I(QK(0, Q, v(CM[0], 16)), "s_nop 7", "s_nop 7")
        b = S[0]
        I(f"v_max3_f32 {v(vMx)}, {v(b)}, {v(b+1)}, {v(b+2)}")
        for i in range(3, 15, 2): I(f"v_max3_f32 {v(vMx)}, {v(vMx)}, {v(b+i)}, {v(b+i+1)}")
        I(f"v_max3_f32 {v(vMx)}, {v(vMx)}, {v(b+15)}, {v(vM)}", f"v_mov_b32 {v(vT2)}, {v(vMx)}", "s_nop 1",
          f"v_permlane32_swap_b32 {v(vMx)}, {v(vT2)}", "s_nop 1", f"v_max_f32 {v(vMx)}, {v(vMx)}, {v(vT2)}",
          f"v_sub_f32 {v(vA)}, {v(vM)}, {v(vMx)}", f"v_exp_f32 {v(vA)}, {v(vA)}", f"v_mov_b32 {v(vM)}, {v(vMx)}")
        for i in range(16): I(f"v_sub_f32 {v(b+i)}, {v(b+i)}, {v(vMx)}")
        for i in range(16): I(f"v_exp_f32 {v(b+i)}, {v(b+i)}")
        I(f"v_mul_f32 {v(lreg)}, {v(vA)}, {v(lreg)}")
        for i in range(16): I(f"v_add_f32 {v(lreg)}, {v(lreg)}, {v(b+i)}")
        for i in range(64):
            t = TMP + (i % 4)
            I(f"v_accvgpr_read_b32 {v(t)}, {a(O+i)}", f"v_mul_f32 {v(t)}, {v(vA)}, {v(t)}", f"v_accvgpr_write_b32 {a(O+i)}, {v(t)}")
        I(sm_cvt(0, 0), sm_cvt(0, 4), "s_nop 1", PV(0, O), "s_nop 7", "s_nop 7")
        I(f"s_add_u32 {s(sKa)}, {s(sKa)}, 8192", f"s_add_u32 {s(sVa)}, {s(sVa)}, 8192", f"s_add_u32 {s(sIt)}, {s(sIt)}, 1", f"s_cmp_lt_u32 {s(sIt)}, {s(sN)}", f"s_cbranch_scc1 L_{label}_slow_{tg}")
    epilogue(False)
    I(f"s_branch L_{label}_tail")
```

```python
from gen_common import *
import math, struct, os
def f32bits(x): return struct.unpack("<I", struct.pack("<f", x))[0]
BIAS = 96
THR = 2.0 ** 64
CH = LY.CHB
SLOT = 19456
LDS_B = 3 * SLOT

def gen_attb(k, wgsub=0, label="B", prefetch=False):
    I = k.I
    ex = os.environ.get("EXP", "")
    SW = 4
    sHead, sChunk, sWave, sT, sT2, sIt, sDma, sM0, sSlotN = 16, 17, 18, 19, 20, 21, 22, 23, 24
    sLo = 28
    sThr = 30
    sQb = 31
    vL16, vK0, vK1, vV, vK0n, vK1n, vT, vT2, vT3, vT4 = 1, 2, 3, 4, 5, 6, 7, 8, 9, 10
    Q0, Q1a, Q1b = 12, 16, 18
    KF = [20, 24]
    KL = [28, 32]
    VF = [36, 44]
    P = [52, 60]
    S = [68, 84]
    NM = 100
    O = 116
    I(f"s_load_dwordx2 s[12:13], s[0:1], 88")
    I(f"v_lshrrev_b32 {v(vT)}, 6, v0", "v_and_b32 v0, 63, v0", "s_nop 0", f"v_readfirstlane_b32 {s(sWave)}, {v(vT)}")
    if wgsub: I(f"s_sub_u32 {s(sT2)}, s2, {wgsub}")
    else: I(f"s_mov_b32 {s(sT2)}, s2")
    I(f"s_and_b32 {s(sT)}, {s(sT2)}, 7", f"s_lshr_b32 {s(sT2)}, {s(sT2)}, 3",
      f"s_and_b32 {s(sChunk)}, {s(sT2)}, 7", f"s_lshr_b32 {s(sT2)}, {s(sT2)}, 3", f"s_lshl_b32 {s(sHead)}, {s(sT)}, 2", f"s_add_u32 {s(sHead)}, {s(sHead)}, {s(sT2)}")
    I("s_waitcnt lgkmcnt(0)")
    k.srd(SW, 12, LY.WS_END)
    I(f"v_lshlrev_b32 {v(vL16)}, 4, v0")
    I(f"s_mul_i32 {s(sDma)}, {s(sHead)}, {LY.HEADB}", f"s_add_u32 {s(sDma)}, {s(sDma)}, {LY.WS_KVB}", f"s_lshl_b32 {s(sT)}, {s(sWave)}, 11",
      f"s_add_u32 {s(sDma)}, {s(sDma)}, {s(sT)}")
    I(f"s_mov_b32 {s(sM0)}, {s(sT)}")
    sD3 = 25
    I(f"s_lshl_b32 {s(sT)}, {s(sWave)}, 10", f"s_sub_u32 {s(sD3)}, 16384, {s(sT)}")
    def dma_chunk(tag):
        L = [f"s_mov_b32 m0, {s(sM0)}", f"s_cmp_ge_u32 {s(sWave)}, 3",
             f"buffer_load_dwordx4 {v(vL16)}, {s(SW,4)}, {s(sDma)} offen lds",
             f"buffer_load_dwordx4 {v(vL16)}, {s(SW,4)}, {s(sDma)} offen offset:1024 lds",
             f"s_cbranch_scc1 L_{label}_dskip_{tag}",
             f"s_add_u32 m0, {s(sM0)}, {s(sD3)}", f"s_add_u32 {s(sT)}, {s(sDma)}, {s(sD3)}",
             f"buffer_load_dwordx4 {v(vL16)}, {s(SW,4)}, {s(sT)} offen lds", f"L_{label}_dskip_{tag}:"]
        L += [f"s_add_u32 {s(sDma)}, {s(sDma)}, {CH}", f"s_add_u32 {s(sM0)}, {s(sM0)}, {SLOT}",
              f"s_cmp_ge_u32 {s(sM0)}, {3*SLOT}", f"s_cselect_b32 {s(sT)}, {3*SLOT}, 0", f"s_sub_u32 {s(sM0)}, {s(sM0)}, {s(sT)}"]
        return L
    I(dma_chunk("p0"))
    I(f"s_lshl_b32 {s(sQb)}, {s(sChunk)}, 3", f"s_add_u32 {s(sQb)}, {s(sQb)}, {s(sWave)}")
    I(f"s_lshl_b32 {s(sT)}, {s(sHead)}, 6", f"s_add_u32 {s(sT)}, {s(sT)}, {s(sQb)}", f"s_lshl_b32 {s(sT2)}, {s(sT)}, 10", f"s_add_u32 {s(sT2)}, {s(sT2)}, {LY.WS_QB0}")
    I(f"buffer_load_dwordx4 {v(Q0,4)}, {v(vL16)}, {s(SW,4)}, {s(sT2)} offen")
    I(f"v_and_b32 {v(vT)}, 31, v0", f"v_lshlrev_b32 {v(vT2)}, 2, {v(vT)}", f"s_lshl_b32 {s(sT2)}, {s(sT)}, 7", f"s_add_u32 {s(sT2)}, {s(sT2)}, {LY.WS_QB1}")
    I(f"buffer_load_dword {v(Q1a)}, {v(vT2)}, {s(SW,4)}, {s(sT2)} offen")
    I(dma_chunk("p1"))
    vPF, vDum, sPF, sPS = 132, 133, 32, 33
    if prefetch:
        I(f"s_and_b32 {s(sT)}, s2, 7", f"s_lshr_b32 {s(sT2)}, s2, 3", f"s_and_b32 {s(34)}, {s(sT2)}, 3", f"s_lshr_b32 {s(35)}, {s(sT2)}, 2",
          f"s_lshl_b32 {s(sT)}, {s(sT)}, 2", f"s_add_u32 {s(36)}, {s(sT)}, {s(34)}")
        I(f"s_cmp_ge_u32 {s(sWave)}, 4", f"s_cbranch_scc1 L_{label}_pfc")
        I(f"s_lshl_b32 {s(sT)}, {s(sWave)}, 6", f"v_add_u32 {v(vPF)}, {s(sT)}, v0", f"v_mul_u32_u24 {v(vDum)}, 2731, {v(vPF)}", f"v_lshrrev_b32 {v(vDum)}, 16, {v(vDum)}",
          f"v_mul_u32_u24 {v(vT3)}, 24, {v(vDum)}", f"v_sub_u32 {v(vPF)}, {v(vPF)}, {v(vT3)}", f"v_lshlrev_b32 {v(vPF)}, 7, {v(vPF)}",
          f"v_mul_u32_u24 {v(vDum)}, 18432, {v(vDum)}", f"v_add_u32 {v(vPF)}, {v(vPF)}, {v(vDum)}")
        I(f"s_mul_i32 {s(sPF)}, {s(34)}, {64*18432}", f"s_mul_i32 {s(sT)}, {s(35)}, 3072", f"s_add_u32 {s(sPF)}, {s(sPF)}, {s(sT)}", f"s_add_u32 {s(sPF)}, {s(sPF)}, {LY.WS_WOA}",
          f"s_mov_b32 {s(sPS)}, {9*18432}", f"s_branch L_{label}_pfd")
        I(f"L_{label}_pfc:")
        I(f"s_lshr_b32 {s(sT)}, {s(sWave)}, 1", f"s_and_b32 {s(sT)}, {s(sT)}, 1", f"s_mul_i32 {s(sT)}, {s(sT)}, 6", f"s_add_u32 {s(sT)}, {s(sT)}, {s(35)}")
        I(f"s_and_b32 {s(sT2)}, {s(sWave)}, 1", f"s_lshl_b32 {s(sT2)}, {s(sT2)}, 13", f"v_lshlrev_b32 {v(vPF)}, 7, v0", f"v_add_u32 {v(vPF)}, {s(sT2)}, {v(vPF)}")
        I(f"s_lshr_b32 {s(sT2)}, {s(sT)}, 1", f"s_lshl_b32 {s(sPF)}, {s(sT2)}, 16", f"s_and_b32 {s(sT2)}, {s(sT)}, 1", f"s_lshl_b32 {s(37)}, {s(36)}, 1", f"s_add_u32 {s(sT2)}, {s(sT2)}, {s(37)}",
          f"s_lshl_b32 {s(sT2)}, {s(sT2)}, 18", f"s_add_u32 {s(sPF)}, {s(sPF)}, {s(sT2)}", f"s_add_u32 {s(sPF)}, {s(sPF)}, {LY.WS_CTX}", f"s_mov_b32 {s(sPS)}, {9*1024}")
        I(f"s_cmp_ge_u32 {s(sT)}, 8", f"s_cselect_b32 {s(sPF)}, 0x70000000, {s(sPF)}")
        I(f"L_{label}_pfd:")
        I(f"s_cmp_ge_u32 s2, 192", f"s_cselect_b32 {s(sPF)}, 0x70000000, {s(sPF)}", f"s_cselect_b32 {s(sPS)}, 0, {s(sPS)}")
        I(f"buffer_load_dword {v(vDum)}, {v(vPF)}, {s(SW,4)}, {s(sPF)} offen", f"s_add_u32 {s(sPF)}, {s(sPF)}, {s(sPS)}")
    I(f"v_cmp_gt_u32 {s(sLo,2)}, 32, v0")
    I(f"v_mov_b32 {v(vK0)}, {v(vL16)}", f"v_lshlrev_b32 {v(vK1)}, 4, {v(vT)}", f"v_add_u32 {v(vK1)}, 8192, {v(vK1)}")
    I(f"v_lshrrev_b32 {v(vT2)}, 5, v0", f"v_mul_u32_u24 {v(vT2)}, 304, {v(vT2)}", f"v_min_u32 {v(vT3)}, 18, {v(vT)}",
      f"v_lshl_add_u32 {v(vV)}, {v(vT3)}, 4, {v(vT2)}", f"v_add_u32 {v(vV)}, 9216, {v(vV)}")
    I(f"v_add_u32 {v(vK0n)}, {SLOT}, {v(vK0)}", f"v_add_u32 {v(vK1n)}, {SLOT}, {v(vK1)}", f"s_mov_b32 {s(sSlotN)}, {SLOT}")
    for i in range(8): I(f"v_mov_b32 {v(VF[1]+i)}, 0")
    for i in range(16): I(f"v_mov_b32 {v(O+i)}, 0")
    for i in range(8): I(f"v_mov_b32 {v(P[1]+i)}, 0")
    I(f"s_mov_b32 {s(sThr)}, {f32bits(THR)}")
    I(f"s_waitcnt vmcnt({3 if prefetch else 2})", "s_barrier")
    I(f"v_cndmask_b32 {v(Q1a)}, 0, {v(Q1a)}, {s(sLo,2)}", f"v_mov_b32 {v(Q1a+1)}, 0", f"v_mov_b32 {v(Q1b)}, 0", "s_nop 0", f"v_mov_b32 {v(Q1b+1)}, {v(Q1a)}")
    def rdK(st, nxt=False):
        a0, a1 = (vK0n, vK1n) if nxt else (vK0, vK1)
        L = [f"ds_read_b128 {v(KF[st&1],4)}, {v(a0)} offset:{st*1024}"]
        if st % 4 == 0: L.append(f"ds_read_b128 {v(KL[(st>>2)&1],4)}, {v(a1)} offset:{(st>>2)*512}")
        return L
    def rdV(st):
        return [f"ds_read_b128 {v(VF[st&1],4)}, {v(vV)} offset:{(2*st)*608}", f"ds_read_b128 {v(VF[st&1]+4,4)}, {v(vV)} offset:{(2*st+1)*608}"]
    def QK(st, c=None):
        cc = v(NM,16) if c is None else c
        kl = KL[(st >> 2) & 1] + (2 if (st & 2) else 0)
        q1 = Q1b if (st & 1) else Q1a
        return [f"v_mfma_f32_32x32x8bf16_1k {v(S[st&1],16)}, {v(kl,2)}, {v(q1,2)}, {cc}",
                f"v_mfma_f32_32x32x16_bf16 {v(S[st&1],16)}, {v(KF[st&1],4)}, {v(Q0,4)}, {v(S[st&1],16)}"]
    def PV(st):
        return [f"v_mfma_f32_32x32x16_bf16 {v(O,16)}, {v(VF[st&1],4)}, {v(P[st&1],4)}, {v(O,16)}",
                f"v_mfma_f32_32x32x16_bf16 {v(O,16)}, {v(VF[st&1]+4,4)}, {v(P[st&1]+4,4)}, {v(O,16)}"]
    def SM(st):
        b, p = S[st & 1], P[st & 1]
        L = []
        for i in range(0, 16, 2):
            L += [f"v_exp_f32 {v(b+i)}, {v(b+i)}", f"v_exp_f32 {v(b+i+1)}, {v(b+i+1)}"]
            if i >= 2: L.append(f"v_cvt_pk_bf16_f32 {v(p+i//2-1)}, {v(b+i-2)}, {v(b+i-1)}")
        L += [f"v_cvt_pk_bf16_f32 {v(p+7)}, {v(b+14)}, {v(b+15)}"]
        return L
    I(rdK(0), rdK(1), "s_waitcnt lgkmcnt(0)")
    I(QK(0, c="0"))
    I("s_nop 7", "s_nop 7")
    b = S[0]
    I(f"v_max3_f32 {v(vT)}, {v(b)}, {v(b+1)}, {v(b+2)}")
    for i in range(3, 15, 2): I(f"v_max3_f32 {v(vT)}, {v(vT)}, {v(b+i)}, {v(b+i+1)}")
    I(f"v_max_f32 {v(vT)}, {v(vT)}, {v(b+15)}", f"v_mov_b32 {v(vT2)}, {v(vT)}", "s_nop 1",
      f"v_permlane32_swap_b32 {v(vT)}, {v(vT2)}", "s_nop 1", f"v_max_f32 {v(vT)}, {v(vT)}, {v(vT2)}",
      f"v_add_f32 {v(vT)}, 0x{f32bits(float(BIAS)):08x}, {v(vT)}")
    for i in range(16): I(f"v_sub_f32 {v(NM+i)}, 0, {v(vT)}")
    for i in range(16): I(f"v_sub_f32 {v(b+i)}, {v(b+i)}, {v(vT)}")
    def rare():
        L = ["s_nop 7", "s_nop 7"]
        kx, al = vT, vT2
        L += [f"v_frexp_exp_i32_f32 {v(kx)}, {v(O+10)}", f"v_add_u32 {v(kx)}, 0x{BIAS:x}, {v(kx)}", f"v_max_i32 {v(kx)}, 0, {v(kx)}",
              f"v_mov_b32 {v(vT3)}, {v(kx)}", "s_nop 1", f"v_permlane32_swap_b32 {v(kx)}, {v(vT3)}", "s_nop 1",
              f"v_cvt_f32_i32 {v(vT3)}, {v(kx)}", f"v_sub_u32 {v(al)}, 0, {v(kx)}"]
        for i in range(16): L.append(f"v_ldexp_f32 {v(O+i)}, {v(O+i)}, {v(al)}")
        for i in range(16): L.append(f"v_sub_f32 {v(NM+i)}, {v(NM+i)}, {v(vT3)}")
        for i in range(16): L.append(f"v_sub_f32 {v(S[0]+i)}, {v(S[0]+i)}, {v(vT3)}")
        for i in range(8):
            L += [f"v_lshlrev_b32 {v(vT3)}, 16, {v(P[1]+i)}", f"v_and_b32 {v(vT4)}, 0xffff0000, {v(P[1]+i)}",
                  f"v_ldexp_f32 {v(vT3)}, {v(vT3)}, {v(al)}", f"v_ldexp_f32 {v(vT4)}, {v(vT4)}, {v(al)}",
                  f"v_cvt_pk_bf16_f32 {v(P[1]+i)}, {v(vT3)}, {v(vT4)}"]
        L += ["s_nop 1"]
        return L
    def stage(u):
        pre = []
        if u == 6:
            if os.environ.get("WAITSTAT"):
                pre += ["s_memtime s[40:41]", "s_waitcnt lgkmcnt(0)", "s_waitcnt vmcnt(0)", "s_memtime s[42:43]", "s_waitcnt lgkmcnt(0)", "s_barrier", "s_memtime s[44:45]", "s_waitcnt lgkmcnt(0)",
                        "s_sub_u32 s46, s42, s40", "s_add_u32 s48, s48, s46", "s_sub_u32 s46, s44, s42", "s_add_u32 s49, s49, s46"]
            else: pre += ["s_waitcnt vmcnt(0)", "s_barrier"]
        sm = SM(u)
        kload = rdK((u + 2) % 8, nxt=(u >= 6))
        loads = kload + rdV(u)
        m = QK((u + 1) % 8) + PV((u + 7) % 8)
        if os.environ.get("BPRIO"):
            m = [[f"s_setprio {os.environ['BPRIO']}", x, "s_setprio 0"] for x in m]
        else: m = [[x] for x in m]
        out = list(pre) + ["s_waitcnt lgkmcnt(0)"]
        ins = {0: m[0], 4: m[1], 7: loads[:2], 10: m[2], 13: loads[2:], 16: m[3]}
        if u == 6: ins[19] = ["@DMA"]
        if u == 0 and prefetch: ins[2] = [f"buffer_load_dword {v(vDum)}, {v(vPF)}, {s(SW,4)}, {s(sPF)} offen", f"s_add_u32 {s(sPF)}, {s(sPF)}, {s(sPS)}"]
        for i, l in enumerate(sm):
            if i == len(sm) - 1 and u != 7: pass
            out.append(l); out += ins.get(i, [])
        return out
    k.stamp(1)
    if os.environ.get("WAITSTAT"): I("s_mov_b32 s48, 0", "s_mov_b32 s49, 0")
    I(f"s_mov_b32 {s(sIt)}, 0")
    I(f"L_{label}_loop:")
    I(f"v_cmp_lt_f32 vcc, {s(sThr)}, {v(O+10)}", f"s_cbranch_vccnz L_{label}_rare" if not ex else "s_nop 0", f"L_{label}_rare_ret:")
    body = []
    for u in range(8): body += stage(u)
    full = []
    for l in body:
        if l == "@DMA":
            full += [f"s_cmp_ge_u32 {s(sIt)}, 6", f"s_cbranch_scc1 L_{label}_nodma"] + dma_chunk("lp") + [f"L_{label}_nodma:"]
        else: full.append(l)
    def keep(l):
        if "nolds" in ex and (l.startswith("ds_read")): return False
        if "nomfma" in ex and l.startswith("v_mfma"): return False
        if "nocvt" in ex and l.startswith("v_cvt_pk"): return False
        if "noexp" in ex and l.startswith("v_exp"): return False
        if "nobar" in ex and l.startswith("s_barrier"): return False
        return True
    I([l for l in full if keep(l)])
    I(f"s_add_u32 {s(sSlotN)}, {s(sSlotN)}, {SLOT}", f"s_cmp_ge_u32 {s(sSlotN)}, {3*SLOT}", f"s_cselect_b32 {s(sT)}, {3*SLOT}, 0", f"s_sub_u32 {s(sSlotN)}, {s(sSlotN)}, {s(sT)}",
      f"s_sub_u32 {s(sT)}, {SLOT}, {s(sT)}")
    I(f"v_sub_u32 {v(vT)}, {v(vK0n)}, {v(vK0)}", f"v_add_u32 {v(vV)}, {v(vV)}, {v(vT)}",
      f"v_mov_b32 {v(vK0)}, {v(vK0n)}", f"v_mov_b32 {v(vK1)}, {v(vK1n)}",
      f"v_add_u32 {v(vK0n)}, {s(sT)}, {v(vK0n)}", f"v_add_u32 {v(vK1n)}, {s(sT)}, {v(vK1n)}")
    I(f"s_add_u32 {s(sIt)}, {s(sIt)}, 1", f"s_cmp_lt_u32 {s(sIt)}, 8", f"s_cbranch_scc1 L_{label}_loop")
    nb = [l for l in body if l != "@DMA"]
    chk = [f"v_cmp_lt_f32 vcc, {s(sThr)}, {v(O+10)}"]
    if not os.environ.get("WAITSTAT"): check(rdK(0) + rdK(1) + ["s_waitcnt lgkmcnt(0)"] + QK(0) + ["s_nop 7", "s_nop 7"] + nb + ["s_nop 3"] * 3 + chk + nb, "attb_loop")
    gap_report(nb, "attb_loop")
    k.stamp(2)
    I(PV(7))
    I("s_nop 7", "s_nop 7")
    I(f"v_mov_b32 {v(vT)}, 0")
    for i in range(11): I(f"v_fma_f32 {v(vT)}, {v(O+i)}, 0, {v(vT)}")
    I(f"v_cmp_u_f32 vcc, {v(vT)}, {v(vT)}", f"s_cbranch_vccnz L_{label}_slow" if not ex else "s_nop 0", f"L_{label}_epi:")
    I(f"v_lshlrev_b32 {v(vT4)}, 4, v0", f"v_and_b32 {v(vT4)}, 0x1ff, {v(vT4)}")
    I(f"s_lshr_b32 {s(sT)}, {s(sHead)}, 3", f"s_add_u32 {s(sT)}, {s(sT)}, 32", f"s_lshl_b32 {s(sT)}, {s(sT)}, 10",
      f"s_lshr_b32 {s(sT2)}, {s(sHead)}, 2", f"s_and_b32 {s(sT2)}, {s(sT2)}, 1", f"s_lshl_b32 {s(sT2)}, {s(sT2)}, 9", f"s_add_u32 {s(sT)}, {s(sT)}, {s(sT2)}",
      f"s_and_b32 {s(sT2)}, {s(sHead)}, 3", f"s_lshl_b32 {s(sT2)}, {s(sT2)}, 2", f"s_add_u32 {s(sT)}, {s(sT)}, {s(sT2)}")
    I(f"s_mul_i32 {s(sT2)}, {s(sQb)}, 36864", f"s_add_u32 {s(sT2)}, {s(sT2)}, {LY.WS_OB}", f"s_add_u32 {s(sDma)}, {s(sT2)}, {s(sT)}",
      f"s_lshl_b32 {s(sT)}, {s(sHead)}, 10", f"s_add_u32 {s(sM0)}, {s(sT2)}, {s(sT)}")
    I(f"v_mov_b32 {v(vT)}, {v(O+10)}", f"v_mov_b32 {v(vT2)}, {v(O+10)}", "s_nop 1", f"v_permlane32_swap_b32 {v(vT)}, {v(vT2)}", "s_nop 1",
      f"v_rcp_f32 {v(vT)}, {v(vT)}", "s_nop 0")
    for i in range(10): I(f"v_mul_f32 {v(O+i)}, {v(vT)}, {v(O+i)}")
    for i in range(5): I(f"v_cvt_pk_bf16_f32 {v(P[0]+i)}, {v(O+2*i)}, {v(O+2*i+1)}")
    I(f"buffer_store_dwordx4 {v(P[0],4)}, {v(vL16)}, {s(SW,4)}, {s(sM0)} offen")
    I(f"s_mov_b64 exec, {s(sLo,2)}", f"buffer_store_dword {v(P[0]+4)}, {v(vT4)}, {s(SW,4)}, {s(sDma)} offen", "s_mov_b64 exec, -1")
    k.stamp(3)
    if os.environ.get("WAITSTAT"): k.stampval(4, "s48"); k.stampval(5, "s49")
    I("s_endpgm")
    I(f"L_{label}_rare:"); I(rare()); I(f"s_branch L_{label}_rare_ret")
    I(f"L_{label}_slow:")
    vM, vA, vMx, vOffV, vOffK1 = NM, NM + 2, NM + 3, NM + 4, NM + 5
    I(f"v_and_b32 {v(vT)}, 31, v0", f"v_lshlrev_b32 {v(vOffK1)}, 4, {v(vT)}", f"v_add_u32 {v(vOffK1)}, 8192, {v(vOffK1)}",
      f"v_lshrrev_b32 {v(vT2)}, 5, v0", f"v_mul_u32_u24 {v(vT2)}, 304, {v(vT2)}", f"v_min_u32 {v(vT3)}, 18, {v(vT)}", f"v_lshl_add_u32 {v(vOffV)}, {v(vT3)}, 4, {v(vT2)}",
      f"v_add_u32 {v(vOffV)}, 9216, {v(vOffV)}")
    I(f"v_mov_b32 {v(vM)}, 0xff7fffff", f"v_mov_b32 {v(KL[0]+1)}, 0")
    for i in range(16): I(f"v_mov_b32 {v(O+i)}, 0")
    I(f"s_mov_b32 {s(sIt)}, 0")
    I(f"L_{label}_slow_loop:")
    sA, sB, sC = sDma, sM0, sSlotN
    I(f"s_mul_i32 {s(sA)}, {s(sHead)}, {LY.HEADB}", f"s_add_u32 {s(sA)}, {s(sA)}, {LY.WS_KVB}", f"s_lshr_b32 {s(sT)}, {s(sIt)}, 3", f"s_mul_i32 {s(sT)}, {s(sT)}, {CH}",
      f"s_add_u32 {s(sA)}, {s(sA)}, {s(sT)}", f"s_and_b32 {s(sT)}, {s(sIt)}, 7",
      f"s_lshr_b32 {s(sT2)}, {s(sT)}, 2", f"s_lshl_b32 {s(sT2)}, {s(sT2)}, 9", f"s_add_u32 {s(sB)}, {s(sA)}, {s(sT2)}", f"s_and_b32 {s(sT2)}, {s(sT)}, 3", f"s_lshl_b32 {s(sT2)}, {s(sT2)}, 2", f"s_add_u32 {s(sB)}, {s(sB)}, {s(sT2)}",
      f"s_mul_i32 {s(sT2)}, {s(sT)}, 1216", f"s_add_u32 {s(sC)}, {s(sA)}, {s(sT2)}",
      f"s_lshl_b32 {s(sT)}, {s(sT)}, 10", f"s_add_u32 {s(sA)}, {s(sA)}, {s(sT)}")
    I(f"buffer_load_dwordx4 {v(KF[0],4)}, {v(vL16)}, {s(SW,4)}, {s(sA)} offen", f"buffer_load_dword {v(KL[0])}, {v(vOffK1)}, {s(SW,4)}, {s(sB)} offen",
      f"buffer_load_dwordx4 {v(VF[0],4)}, {v(vOffV)}, {s(SW,4)}, {s(sC)} offen", f"buffer_load_dwordx4 {v(VF[0]+4,4)}, {v(vOffV)}, {s(SW,4)}, {s(sC)} offen offset:608",
      "s_waitcnt vmcnt(0)")
    b = S[0]
    I(QK(0, c="0"), "s_nop 7", "s_nop 7")
    I(f"v_max3_f32 {v(vMx)}, {v(b)}, {v(b+1)}, {v(b+2)}")
    for i in range(3, 15, 2): I(f"v_max3_f32 {v(vMx)}, {v(vMx)}, {v(b+i)}, {v(b+i+1)}")
    I(f"v_max3_f32 {v(vMx)}, {v(vMx)}, {v(b+15)}, {v(vM)}", f"v_mov_b32 {v(vT2)}, {v(vMx)}", "s_nop 1",
      f"v_permlane32_swap_b32 {v(vMx)}, {v(vT2)}", "s_nop 1", f"v_max_f32 {v(vMx)}, {v(vMx)}, {v(vT2)}",
      f"v_sub_f32 {v(vA)}, {v(vM)}, {v(vMx)}", f"v_exp_f32 {v(vA)}, {v(vA)}", f"v_mov_b32 {v(vM)}, {v(vMx)}")
    for i in range(16): I(f"v_sub_f32 {v(b+i)}, {v(b+i)}, {v(vMx)}")
    for i in range(16): I(f"v_exp_f32 {v(b+i)}, {v(b+i)}")
    for i in range(16): I(f"v_mul_f32 {v(O+i)}, {v(vA)}, {v(O+i)}")
    for i in range(8): I(f"v_cvt_pk_bf16_f32 {v(P[0]+i)}, {v(b+2*i)}, {v(b+2*i+1)}")
    I("s_nop 1", PV(0), "s_nop 7", "s_nop 7")
    I(f"s_add_u32 {s(sIt)}, {s(sIt)}, 1", f"s_cmp_lt_u32 {s(sIt)}, 64", f"s_cbranch_scc1 L_{label}_slow_loop", f"s_branch L_{label}_epi")
```

```python
from asmlib import *
import layouts as LY
NAME = "concat_heads__compressed_kv_cla__softmax_full_mha__prompt"
HEADER = """; Kernarg layout for this problem (96 bytes, ptrs only, base s[0:1]):
"""
class Kern:
    def __init__(self, label, nvgpr, accum, nsgpr=102):
        self.label = label; self.nvgpr = nvgpr; self.accum = accum; self.nsgpr = nsgpr
        self.lines = []; self.stamp_base = 0; self.sv = (250, 252)
    def I(self, *ls):
        for l in ls:
            if isinstance(l, (list, tuple)): self.I(*l)
            else: self.lines.append("    " + l.strip() if not l.strip().endswith(":") else l.strip())
    def srd(self, base_s, ptr_s, nbytes, off=0):
        if off:
            self.I(f"s_add_u32 {s(base_s)}, {s(ptr_s)}, {off}", f"s_addc_u32 {s(base_s+1)}, {s(ptr_s+1)}, 0")
        else:
            self.I(f"s_mov_b32 {s(base_s)}, {s(ptr_s)}", f"s_mov_b32 {s(base_s+1)}, {s(ptr_s+1)}")
        self.I(f"s_mov_b32 {s(base_s+2)}, {nbytes}", f"s_mov_b32 {s(base_s+3)}, 0x00020000")
    def stamp(self, slot, tmp=88):
        import os
        if not os.environ.get("STAMPS"): return
        self.I(f"s_memrealtime {s(tmp,2)}", f"s_memtime {s(tmp+10,2)}", f"s_load_dwordx2 {s(tmp+2,2)}, s[0:1], 88", "s_waitcnt lgkmcnt(0)",
               f"s_add_u32 {s(tmp+4)}, {s(tmp+2)}, {LY.WS_STAMP + self.stamp_base}", f"s_addc_u32 {s(tmp+5)}, {s(tmp+3)}, 0",
               f"s_mov_b32 {s(tmp+6)}, 0x100000", f"s_mov_b32 {s(tmp+7)}, 0x00020000",
               f"s_lshl_b32 {s(tmp+8)}, s2, 6", f"s_add_u32 {s(tmp+8)}, {s(tmp+8)}, {slot*8}",
               f"v_mov_b32 v{self.sv[0]}, {s(tmp)}", f"v_mov_b32 v{self.sv[0]+1}, {s(tmp+10)}", f"v_mov_b32 v{self.sv[1]}, 0",
               f"buffer_store_dwordx2 v[{self.sv[0]}:{self.sv[0]+1}], v{self.sv[1]}, {s(tmp+4,4)}, {s(tmp+8)} offen")
    def stampval(self, slot, sreg, tmp=88):
        import os
        if not os.environ.get("STAMPS"): return
        self.I(f"s_load_dwordx2 {s(tmp+2,2)}, s[0:1], 88", "s_waitcnt lgkmcnt(0)",
               f"s_add_u32 {s(tmp+4)}, {s(tmp+2)}, {LY.WS_STAMP + self.stamp_base}", f"s_addc_u32 {s(tmp+5)}, {s(tmp+3)}, 0",
               f"s_mov_b32 {s(tmp+6)}, 0x100000", f"s_mov_b32 {s(tmp+7)}, 0x00020000",
               f"s_lshl_b32 {s(tmp+8)}, s2, 6", f"s_add_u32 {s(tmp+8)}, {s(tmp+8)}, {slot*8}",
               f"v_mov_b32 v{self.sv[0]}, {sreg}", f"v_mov_b32 v{self.sv[0]+1}, {sreg}", f"v_mov_b32 v{self.sv[1]}, 0",
               f"buffer_store_dwordx2 v[{self.sv[0]}:{self.sv[0]+1}], v{self.sv[1]}, {s(tmp+4,4)}, {s(tmp+8)} offen")
    def code_prefetch(self, tag, start, end, nlog2, sslice, sbase, vtmp, backwards):
        import os
        if os.environ.get("NOCPF"): return
        I = self.I
        c = f"(((({end}-{start})>>7)+{(1 << nlog2) - 1})>>{nlog2})"
        I(f"s_getpc_b64 {s(sbase,2)}", f"L_pc_{tag}:")
        I(f"s_add_u32 {s(sbase)}, {s(sbase)}, {start}-L_pc_{tag}", f"s_addc_u32 {s(sbase+1)}, {s(sbase+1)}, {'-1' if backwards else '0'}")
        I(f"s_mul_i32 {s(sbase+2)}, {s(sslice)}, {c}", f"v_min_u32 {v(vtmp)}, {c}-1, v0", f"v_add_u32 {v(vtmp)}, {s(sbase+2)}, {v(vtmp)}",
          f"v_min_u32 {v(vtmp)}, (({end}-{start})>>7)-1, {v(vtmp)}", f"v_lshlrev_b32 {v(vtmp)}, 7, {v(vtmp)}",
          f"global_load_dword {v(vtmp+1)}, {v(vtmp)}, {s(sbase,2)}")
    def text(self):
        out = [f".text", f".globl {self.label}", ".p2align 8", f".type {self.label},@function", f"{self.label}:"]
        out += self.lines
        out += [f"L_end_{self.label}:"]
        return "\n".join(out) + "\n"
    def desc(self):
        return f""".amdhsa_kernel {self.label}
  .amdhsa_next_free_vgpr {self.nvgpr}
  .amdhsa_next_free_sgpr {self.nsgpr}
  .amdhsa_accum_offset {self.accum}
  .amdhsa_group_segment_fixed_size 0
  .amdhsa_kernarg_size 96
  .amdhsa_user_sgpr_count 2
  .amdhsa_user_sgpr_kernarg_segment_ptr 1
  .amdhsa_system_sgpr_workgroup_id_x 1
  .amdhsa_float_denorm_mode_32 3
.end_amdhsa_kernel
"""
def assemble_file(launches, kerns):
    out = HEADER
    for lab, g, b, lds in launches:
        out += f"; @launch kernel={lab} grid=({g},1,1) block=({b},1,1) lds={lds}\n"
    out += '.amdgcn_target "amdgcn-amd-amdhsa--gfx950"\n'
    for k in kerns: out += k.text()
    out += '.section .rodata,"a"\n'
    for k in kerns: out += ".p2align 6\n" + k.desc()
    return out
```

```python
from gen_common import *
from gen_attb import gen_attb, LDS_B
from gen_oproj import oproj_tile
import os
LDS_M = LDS_B + 98304

def gen_mix():
    k = Kern("mix_kernel", nvgpr=168, accum=168); k.stamp_base = 131072
    I = k.I
    k.sv = (164, 166)
    I("s_cmp_ge_u32 s2, 256", "s_cbranch_scc1 L_mix_end")
    I("v_lshrrev_b32 v3, 6, v0", "s_nop 0", "v_readfirstlane_b32 s21, v3", "s_cmp_ge_u32 s21, 8", "s_cbranch_scc1 L_mix_O")
    k.stamp(0)
    I("s_lshr_b32 s3, s2, 3", "s_lshl_b32 s3, s3, 3", "s_add_u32 s3, s3, s21", "v_and_b32 v162, 63, v0", "v_mov_b32 v163, v0", "v_mov_b32 v0, v162")
    k.code_prefetch("mx", "mix_kernel", "L_end_mix_kernel", 8, 3, 8, 160, True)
    I("v_mov_b32 v0, v163")
    gen_attb(k, prefetch=bool(os.environ.get('MIXPF')))
    I("L_mix_O:", "s_cmp_ge_u32 s2, 192", "s_cbranch_scc1 L_mix_end")
    I("s_sub_u32 s21, s21, 8", "v_and_b32 v0, 63, v0")
    oproj_tile(k, "M", True, 3, barriers=[int(x) for x in os.environ.get('OBAR', '4,12,19,27,34,42,49,57,64').split(',')], wave_reg=21, lds_base=LDS_B, ACC=10, BUF=106, prio=int(os.environ.get("OPRIO", 0)))
    k.stampval(6, "s21") if False else None
    I("L_mix_end:", "s_endpgm")
    return k
```

```python
from gen_common import *
import os

def oproj_tile(k, tag, isA, D, barriers=None, wave_reg=None, lds_base=0, ACC=16, BUF=112, prio=None):
    I = k.I
    SW, SO = 4, 8
    sC0, sC1, sW, sT, sT2, sMT, sNT, sCnt, sOB = 16, 17, 18, 19, 20, 22, 23, 24, 25
    sWave = wave_reg
    vL16, vRow, vT = 1, 2, 3
    NK = 64 if isA else 9
    I("s_load_dwordx2 s[12:13], s[0:1], 88", "s_load_dwordx2 s[14:15], s[0:1], 72")
    I(f"v_lshlrev_b32 {v(vL16)}, 4, v0")
    I(f"v_and_b32 {v(vT)}, 31, v0", f"v_mul_u32_u24 {v(vRow)}, 2304, {v(vT)}", f"v_lshrrev_b32 {v(vT)}, 5, v0", f"v_lshl_add_u32 {v(vRow)}, {v(vT)}, 3, {v(vRow)}")
    I(f"s_and_b32 {s(sT)}, s2, 7", f"s_lshr_b32 {s(sT2)}, s2, 3")
    I(f"s_and_b32 {s(sMT)}, {s(sT2)}, 3", f"s_lshl_b32 {s(sT)}, {s(sT)}, 2", f"s_add_u32 {s(sMT)}, {s(sMT)}, {s(sT)}", f"s_lshr_b32 {s(sNT)}, {s(sT2)}, 2")
    I("s_waitcnt lgkmcnt(0)")
    k.srd(SW, 12, LY.WS_END); k.srd(SO, 14, 2048 * 2304)
    if isA:
        I(f"s_lshl_b32 {s(sC0)}, {s(sMT)}, 19", f"s_lshl_b32 {s(sT)}, {s(sWave)}, 16", f"s_add_u32 {s(sC0)}, {s(sC0)}, {s(sT)}",
          f"s_add_u32 {s(sC0)}, {s(sC0)}, {LY.WS_CTX}", f"s_add_u32 {s(sC1)}, {s(sC0)}, 262144")
        I(f"s_mul_i32 {s(sW)}, {s(sWave)}, {64*18432}", f"s_mul_i32 {s(sT)}, {s(sNT)}, 3072", f"s_add_u32 {s(sW)}, {s(sW)}, {s(sT)}", f"s_add_u32 {s(sW)}, {s(sW)}, {LY.WS_WOA}")
    else:
        I(f"s_mul_i32 {s(sC0)}, {s(sMT)}, {2*36864}", f"s_mul_i32 {s(sT)}, {s(sWave)}, {9*1024}", f"s_add_u32 {s(sC0)}, {s(sC0)}, {s(sT)}",
          f"s_add_u32 {s(sC0)}, {s(sC0)}, {LY.WS_OB}", f"s_add_u32 {s(sC1)}, {s(sC0)}, 36864")
        I(f"s_mul_i32 {s(sW)}, {s(sWave)}, {9*18432}", f"s_mul_i32 {s(sT)}, {s(sNT)}, 3072", f"s_add_u32 {s(sW)}, {s(sW)}, {s(sT)}", f"s_add_u32 {s(sW)}, {s(sW)}, {LY.WS_WOB}")
    if prio is not None: I(f"s_setprio {prio}")
    def buf(j, f): return v(BUF + (j * 5 + f) * 4, 4)
    def loads(j):
        L = [f"buffer_load_dwordx4 {buf(j,0)}, {v(vL16)}, {s(SW,4)}, {s(sC0)} offen", f"buffer_load_dwordx4 {buf(j,1)}, {v(vL16)}, {s(SW,4)}, {s(sC1)} offen"]
        for t in range(3): L.append(f"buffer_load_dwordx4 {buf(j,2+t)}, {v(vL16)}, {s(SW,4)}, {s(sW)} offen" + (f" offset:{t*1024}" if t else ""))
        L += [f"s_add_u32 {s(sC0)}, {s(sC0)}, 1024", f"s_add_u32 {s(sC1)}, {s(sC1)}, 1024", f"s_add_u32 {s(sW)}, {s(sW)}, 18432"]
        return L
    def mfmas(j, first=False):
        L = []
        for tq in range(2):
            for tn in range(3):
                ac = v(ACC + (tq * 3 + tn) * 16, 16)
                L.append(f"v_mfma_f32_32x32x16_bf16 {ac}, {buf(j,2+tn)}, {buf(j,tq)}, {'0' if first else ac}")
        return L
    seq = []
    for j in range(min(D, NK)): seq += loads(j)
    if barriers is None:
        out = []
        for ks in range(NK):
            j = ks % D
            rem = min(D - 1, NK - 1 - ks)
            out.append(f"s_waitcnt vmcnt({5*rem})"); out += mfmas(j, ks == 0)
            if ks + D < NK: out += loads(j)
        if NK > 2 * D and NK % D == 0:
            I(seq)
            body0 = []
            for j in range(D): body0 += [f"s_waitcnt vmcnt({5*(D-1)})"] + mfmas(j, j == 0) + loads(j)
            I(body0)
            I(f"s_mov_b32 {s(sCnt)}, {NK // D - 2}", f"L_op_loop_{tag}:")
            body = []
            for j in range(D): body += [f"s_waitcnt vmcnt({5*(D-1)})"] + mfmas(j) + loads(j)
            I(body, f"s_sub_u32 {s(sCnt)}, {s(sCnt)}, 1", f"s_cmp_lg_u32 {s(sCnt)}, 0", f"s_cbranch_scc1 L_op_loop_{tag}")
            tail = []
            for j in range(D): tail += [f"s_waitcnt vmcnt({5*(D-1-j)})"] + mfmas(j)
            I(tail)
            check(seq + body0 + body + body + tail, f"oproj_{tag}")
        else:
            I(seq, out); check(seq + out, f"oproj_{tag}")
    else:
        I(seq)
        done = 0
        if os.environ.get("WAITSTAT"): I("s_mov_b32 s49, 0", "s_memtime s[50:51]")
        allc = list(seq)
        bounds = list(barriers)
        ks = 0
        n = 0
        for bi, upto in enumerate(bounds):
            while ks < upto:
                j = ks % D
                rem = min(D - 1, NK - 1 - ks)
                o = [f"s_waitcnt vmcnt({5*rem})"] + mfmas(j, ks == 0)
                if ks + D < NK: o += loads(j)
                I(o); allc += o
                ks += 1
            if bi < len(bounds) - 1:
                if os.environ.get("WAITSTAT"): I("s_memtime s[40:41]", "s_waitcnt lgkmcnt(0)", "s_barrier", "s_memtime s[44:45]", "s_waitcnt lgkmcnt(0)", "s_sub_u32 s46, s44, s40", "s_add_u32 s49, s49, s46")
                else: I("s_barrier")
        check(allc, f"oproj_{tag}")
    if barriers is not None and os.environ.get("WAITSTAT"):
        I("s_memtime s[52:53]", "s_waitcnt lgkmcnt(0)", "s_sub_u32 s52, s52, s50"); k.stampval(6, "s52"); k.stampval(7, "s49")
    I("s_nop 7", "s_nop 7")
    vA, vA2 = 4, 5
    I(f"s_mul_i32 {s(sT)}, {s(sWave)}, 24576", f"s_add_u32 {s(sT)}, {s(sT)}, {lds_base}", f"v_add_u32 {v(vA)}, {s(sT)}, {v(vL16)}")
    for u in range(24): I(f"ds_write_b128 {v(vA)}, {v(ACC + u*4, 4)} offset:{u*1024}")
    I("s_waitcnt lgkmcnt(0)", "s_barrier")
    I(f"s_mul_i32 {s(sT)}, {s(sWave)}, 6144", f"s_add_u32 {s(sT)}, {s(sT)}, {lds_base}", f"v_add_u32 {v(vA)}, {s(sT)}, {v(vL16)}", f"v_add_u32 {v(vA2)}, 49152, {v(vA)}")
    R = ACC
    for i in range(6):
        for p in range(4):
            base = vA if p < 2 else vA2
            I(f"ds_read_b128 {v(R + (i*4+p)*4, 4)}, {v(base)} offset:{(p%2)*24576 + i*1024}")
    I(f"s_mul_i32 {s(sOB)}, {s(sMT)}, {64*2304}", f"s_mul_i32 {s(sT)}, {s(sNT)}, 192", f"s_add_u32 {s(sOB)}, {s(sOB)}, {s(sT)}")
    if not isA: I(f"s_add_u32 {s(sOB)}, {s(sOB)}, 1152")
    for i in range(6):
        I(f"s_waitcnt lgkmcnt({min(15, 4*(5-i))})")
        b = R + i * 16
        for e in range(4):
            I(f"v_add_f32 {v(b+e)}, {v(b+e)}, {v(b+4+e)}", f"v_add_f32 {v(b+8+e)}, {v(b+8+e)}, {v(b+12+e)}")
        for e in range(4): I(f"v_add_f32 {v(b+e)}, {v(b+e)}, {v(b+8+e)}")
        I(f"v_cvt_pk_bf16_f32 {v(b)}, {v(b)}, {v(b+1)}", f"v_cvt_pk_bf16_f32 {v(b+1)}, {v(b+2)}, {v(b+3)}")
        I(f"s_mul_i32 {s(sT)}, {s(sWave)}, 6", f"s_add_u32 {s(sT)}, {s(sT)}, {i}",
          f"s_lshr_b32 {s(sT2)}, {s(sT)}, 2", f"s_and_b32 {s(sT)}, {s(sT)}, 3", f"s_lshl_b32 {s(sT)}, {s(sT)}, 4",
          f"s_cmp_ge_u32 {s(sT2)}, 3", f"s_cselect_b32 {s(26)}, {32*2304 - 3*64}, 0",
          f"s_lshl_b32 {s(sT2)}, {s(sT2)}, 6", f"s_add_u32 {s(sT)}, {s(sT)}, {s(sT2)}", f"s_add_u32 {s(sT)}, {s(sT)}, {s(26)}", f"s_add_u32 {s(sT)}, {s(sT)}, {s(sOB)}")
        I(f"buffer_store_dwordx2 {v(b,2)}, {v(vRow)}, {s(SO,4)}, {s(sT)} offen")

def gen_oprojb():
    k = Kern("oprojb_kernel", nvgpr=288, accum=288 if False else 256); k.stamp_base = 196608
    k.nvgpr = 320; k.accum = 256
    I = k.I
    I("s_cmp_ge_u32 s2, 192", "s_cbranch_scc1 L_opb_end")
    k.sv = (6, 8)
    k.stamp(0)
    I("v_lshrrev_b32 v3, 6, v0", "v_and_b32 v0, 63, v0", "s_nop 0", "v_readfirstlane_b32 s21, v3")
    I("s_lshr_b32 s3, s2, 3", "s_lshl_b32 s3, s3, 2", "s_add_u32 s3, s3, s21", "s_and_b32 s3, s3, 63")
    k.code_prefetch("ob", "oprojb_kernel", "L_end_oprojb_kernel", 6, 3, 28, 250, True)
    oproj_tile(k, "B", False, 7, wave_reg=21, ACC=12, BUF=108)
    k.stamp(3)
    I("L_opb_end:", "s_endpgm")
    k.nvgpr = 256; k.accum = 256
    return k

def gen_oproj():
    k = Kern("oproj_kernel", nvgpr=256, accum=256); k.stamp_base = 196608
    I = k.I
    k.sv = (6, 8)
    I("s_cmp_ge_u32 s2, 192", "s_cbranch_scc1 L_op_end")
    k.stamp(0)
    I("v_lshrrev_b32 v3, 6, v0", "v_and_b32 v0, 63, v0", "s_nop 0", "v_readfirstlane_b32 s21, v3")
    oproj_tile(k, "A", True, int(os.environ.get("OPD", 4)), wave_reg=21, ACC=12, BUF=108)
    k.stamp(3)
    I("L_op_end:", "s_endpgm")
    return k
```

```python
from gen_common import *
import struct, os
def f32bits(x): return struct.unpack("<I", struct.pack("<f", x))[0]
RB, PB = 0, 65536
LDS_P = 163840
OOB = 0xF0000000
STF = (' ' + os.environ['STF']) if os.environ.get('STF') else ''
STQ = ' ' + os.environ.get('STQ', 'sc1')
STAGES = []
kk = 0
for grp in range(4):
    STAGES += [("K", kk), ("K", kk + 1), ("B", 2 * grp), ("B", 2 * grp + 1)]; kk += 2
STAGES += [("K", 8), ("K", 9), ("B", 8)] + [("K", i) for i in range(10, 16)]
GQ = len(STAGES)
STAGES += [("Q", i) for i in range(9)]
GE = len(STAGES)
PITEMS = []
STAGE_P = []
for g_, (ph_, i_) in enumerate(STAGES):
    it = ("K", i_ >> 1) if ph_ == "K" else (("B", i_ >> 1) if ph_ == "B" else ("Q", i_))
    if it not in PITEMS: PITEMS.append(it)
    STAGE_P.append(PITEMS.index(it))
UE = len(PITEMS)
LAST_USER = [max(g_ for g_, u_ in enumerate(STAGE_P) if u_ == u) for u in range(UE)]
def ph(g): return STAGES[g][0]
def ix(g): return STAGES[g][1]

def csel(dst, x, y):
    return [f"s_mov_b32 {s(dst)}, {y}", f"s_cselect_b32 {s(dst)}, {x}, {s(dst)}"]

def gen_proj():
    k = Kern("proj_kernel", nvgpr=512, accum=256); k.sv = (38, 1)
    I = k.I
    SXKV, SWKV, SXQ, SWQ, SXB, SWB, SWS, SWOA, SWOB = 8, 12, 16, 20, 24, 28, 32, 36, 40
    (sWave, sT, sT2, sT3, sXcd, sJ, sIsV, sBt, sWm, sWn, sXkvB, sWkvB, sXqB, sWqB, sXbB, sWbB, sM1024, sM2048) = range(68, 86)
    sBsc = 57
    sQout, sCA, sNtB, sMtB, sF = 52, 53, 54, 55, 56
    sKVo = 44
    vXa, vXb, vW, vWB = 2, 4, 6, 8
    aXP, aXP2, aWR, aXR, aWP, aWP2, aXB, aWB, aWB2, vL16 = 9, 13, 17, 21, 25, 27, 29, 33, 35, 37
    vT, vT2 = 38, 39
    XF = [40, 56]; WF = [72, 88]; TT = 104; UU = 120
    BA = 128; BADR = 192; BONE = 224; BTMP = 232; PFV = 244; QA = 128
    I("s_cmp_ge_u32 s2, 256", "s_cbranch_scc1 L_pj_end")
    k.stamp(0)
    I("s_load_dwordx16 s[48:63], s[0:1], 0", "s_load_dwordx2 s[64:65], s[0:1], 64", "s_load_dwordx2 s[66:67], s[0:1], 88")
    I(f"v_lshrrev_b32 {v(vT)}, 6, v0", "v_and_b32 v0, 63, v0", "s_nop 0", f"v_readfirstlane_b32 {s(sWave)}, {v(vT)}")
    I(f"s_and_b32 {s(sXcd)}, s2, 7", f"s_lshr_b32 {s(sJ)}, s2, 3")
    I(f"s_lshl_b32 s3, {s(sJ)}, 2", f"s_add_u32 s3, s3, {s(sWave)}")
    k.code_prefetch("pj", "proj_kernel", "L_end_proj_kernel", 7, 3, 4, 250, True)
    I(f"s_lshl_b32 s3, s2, 2", f"s_add_u32 s3, s3, {s(sWave)}")
    k.code_prefetch("pj2", "atta_kernel", "L_end_oprojb_kernel", 10, 3, 4, 252, False)
    def xoff(dst, stride, par):
        I(f"v_lshrrev_b32 {v(vT)}, 4, v0", f"v_add_u32 {v(vT)}, {4*par}, {v(vT)}", f"v_and_b32 {v(vT2)}, 7, v0", f"v_xor_b32 {v(vT)}, {v(vT)}, {v(vT2)}",
          f"v_lshlrev_b32 {v(vT)}, 4, {v(vT)}", f"v_lshrrev_b32 {v(vT2)}, 3, v0", f"v_mul_u32_u24 {v(vT2)}, {stride}, {v(vT2)}", f"v_add_u32 {v(dst)}, {v(vT)}, {v(vT2)}")
    for par in range(2):
        xoff(vXa + par, 1024, par)
        I(f"v_lshrrev_b32 {v(vT)}, 5, v0", f"v_add_u32 {v(vT2)}, {2*par}, {v(vT)}", f"v_lshlrev_b32 {v(vT2)}, 2, {v(vT2)}", f"v_and_b32 {v(vW+par)}, 31, v0",
          f"v_xor_b32 {v(vW+par)}, {v(vW+par)}, {v(vT2)}", f"v_lshlrev_b32 {v(vW+par)}, 4, {v(vW+par)}", f"v_lshlrev_b32 {v(vT)}, 13, {v(vT)}", f"v_add_u32 {v(vW+par)}, {v(vW+par)}, {v(vT)}")
    I(f"s_lshl_b32 {s(sM1024)}, {s(sWave)}, 12", f"s_lshl_b32 {s(sM2048)}, {s(sWave)}, 13")
    sRh, sCq, sMtK, sNtK = 86, 87, 92, 93
    I(f"s_and_b32 {s(sRh)}, {s(sXcd)}, 1", f"s_lshr_b32 {s(sCq)}, {s(sXcd)}, 1")
    I(f"s_and_b32 {s(sMtK)}, {s(sJ)}, 3", f"s_lshl_b32 {s(sT)}, {s(sRh)}, 2", f"s_add_u32 {s(sMtK)}, {s(sMtK)}, {s(sT)}",
      f"s_lshr_b32 {s(sNtK)}, {s(sJ)}, 2", f"s_lshl_b32 {s(sT)}, {s(sCq)}, 3", f"s_add_u32 {s(sNtK)}, {s(sNtK)}, {s(sT)}",
      f"s_lshr_b32 {s(sIsV)}, {s(sNtK)}, 4", f"s_and_b32 {s(sNtK)}, {s(sNtK)}, 15")
    I(f"s_lshl_b32 {s(sXkvB)}, {s(sMtK)}, 18", f"s_lshl_b32 {s(sT)}, {s(sWave)}, 16", f"s_add_u32 {s(sXkvB)}, {s(sXkvB)}, {s(sT)}")
    I(f"s_lshl_b32 {s(sWkvB)}, {s(sWave)}, 16", f"s_lshl_b32 {s(sT)}, {s(sNtK)}, 9", f"s_add_u32 {s(sWkvB)}, {s(sWkvB)}, {s(sT)}")
    I("s_waitcnt lgkmcnt(0)")
    I(f"s_cmp_eq_u32 {s(sIsV)}, 0", f"s_cselect_b32 {s(SWKV)}, s54, s56", f"s_cselect_b32 {s(SWKV+1)}, s55, s57",
      f"s_mov_b32 {s(SWKV+2)}, {512*8192}", f"s_mov_b32 {s(SWKV+3)}, 0x00020000")
    k.srd(SXKV, 50, 2048 * 1024)
    def dma(vreg, srd, sbase, soff, ldsreg, ldsoff):
        return [f"s_add_u32 m0, {s(ldsreg)}, {ldsoff}", f"s_add_u32 {s(sT)}, {s(sbase)}, {soff}", f"buffer_load_dwordx4 {v(vreg)}, {s(srd,4)}, {s(sT)} offen lds"]
    def Ritem(g):
        slot = RB + (g % 4) * 16384
        if ph(g) == "B":
            return [dma(vXb + (j & 1), SXB, sXbB, ix(g) * 128 + j * 8 * 1152, sM1024, slot + j * 1024) for j in range(4)]
        if ph(g) == "K":
            return [dma(vW + (j & 1), SWKV, sWkvB, (32 * ix(g) + 2 * j) * 8192, sM1024, slot + j * 1024) for j in range(4)]
        return [dma(vXb + (j & 1), SXQ, sXqB, ix(g) * 128 + j * 8 * 1152, sM1024, slot + j * 1024) for j in range(4)]
    def Pitem(u):
        slot = PB + (u % 3) * 32768
        kind, i = PITEMS[u]
        if kind == "B":
            o = []
            for tt in (2 * i, 2 * i + 1):
                if tt < 9: o += [dma(vWB, SWB, sWbB, (64 * tt + 4 * j) * 3456, sM1024, slot + (tt & 1) * 16384 + j * 1024) for j in range(4)]
            return o
        if kind == "K":
            return [dma(vXa + (j & 1), SXKV, sXkvB, i * 128 + j * 8 * 1024, sM2048, slot + j * 1024) for j in range(8)]
        return [dma(vW + (j & 1), SWQ, sWqB, (64 * i + 2 * j) * 8192, sM2048, slot + j * 1024) for j in range(8)]
    vmlog = []
    def issue(order):
        for kind, idx in order:
            for d in (Ritem(idx) if kind == "R" else Pitem(idx)):
                I(d); vmlog.append((kind, idx))
    if not os.environ.get("NOCPF"): vmlog += [("E", 0), ("E", 0)]
    issue([("R", 0), ("P", 0), ("R", 1)])
    I(f"v_lshlrev_b32 {v(vL16)}, 4, v0")
    for par in range(2): xoff(vXb + par, 1152, par)
    I(f"v_lshrrev_b32 {v(vT)}, 4, v0", f"v_lshlrev_b32 {v(vT2)}, 2, {v(vT)}", f"v_and_b32 {v(vWB)}, 15, v0", f"v_xor_b32 {v(vWB)}, {v(vWB)}, {v(vT2)}",
      f"v_lshlrev_b32 {v(vWB)}, 4, {v(vWB)}", f"v_mul_u32_u24 {v(vT)}, 3456, {v(vT)}", f"v_add_u32 {v(vWB)}, {v(vWB)}, {v(vT)}")
    k.srd(SXB, 60, 2048 * 1152); k.srd(SWB, 62, 576 * 3456); k.srd(SXQ, 48, 2048 * 1152); k.srd(SWQ, 52, 576 * 8192)
    k.srd(SWS, 66, LY.WS_END); k.srd(SWOA, 58, 4096 * 1152); k.srd(SWOB, 64, 576 * 1152)
    I(f"s_lshr_b32 {s(sWm)}, {s(sWave)}, 1", f"s_and_b32 {s(sWn)}, {s(sWave)}, 1")
    sMt, sN0 = sT2, sT3
    I(f"s_lshl_b32 {s(sT)}, {s(sNtK)}, 1", f"s_add_u32 {s(sT)}, {s(sT)}, {s(sWn)}", f"s_lshl_b32 {s(sT)}, {s(sT)}, 19", f"s_lshl_b32 {s(sF)}, {s(sMtK)}, 3", f"s_lshl_b32 {s(sMt)}, {s(sWm)}, 2", f"s_add_u32 {s(sF)}, {s(sF)}, {s(sMt)}",
      f"s_lshl_b32 {s(sF)}, {s(sF)}, 13", f"s_add_u32 {s(sT)}, {s(sT)}, {s(sF)}")
    I(f"s_cmp_eq_u32 {s(sIsV)}, 0", csel(sF, LY.WS_KA, LY.WS_VA), csel(sMt, 2048, 1024), csel(sN0, 1024, 4096), f"s_add_u32 {s(sT)}, {s(sT)}, {s(sF)}")
    for tn in range(4):
        I(f"s_mul_i32 {s(sF)}, {s(sMt)}, {tn}", f"s_add_u32 {s(sKVo+2*tn)}, {s(sT)}, {s(sF)}", f"s_add_u32 {s(sKVo+2*tn+1)}, {s(sKVo+2*tn)}, {s(sN0)}")
    I(f"s_and_b32 {s(sMt)}, {s(sJ)}, 7", f"s_lshl_b32 {s(sT)}, {s(sRh)}, 3", f"s_add_u32 {s(sMt)}, {s(sMt)}, {s(sT)}",
      f"s_lshr_b32 {s(sN0)}, {s(sJ)}, 3", f"s_lshl_b32 {s(sT)}, {s(sCq)}, 2", f"s_add_u32 {s(sN0)}, {s(sN0)}, {s(sT)}")
    I(f"s_lshl_b32 {s(sT)}, {s(sMt)}, 2", f"s_add_u32 {s(sT)}, {s(sT)}, {s(sWave)}", f"s_mul_i32 {s(sXqB)}, {s(sT)}, {32*1152}")
    I(f"s_lshl_b32 {s(sWqB)}, {s(sWave)}, 17", f"s_lshl_b32 {s(sT)}, {s(sN0)}, 9", f"s_add_u32 {s(sWqB)}, {s(sWqB)}, {s(sT)}")
    I(f"s_lshl_b32 {s(sT)}, {s(sN0)}, 1", f"s_add_u32 {s(sT)}, {s(sT)}, {s(sWm)}", f"s_lshl_b32 {s(sT)}, {s(sT)}, 19", f"s_lshl_b32 {s(sF)}, {s(sMt)}, 15", f"s_add_u32 {s(sT)}, {s(sT)}, {s(sF)}",
      f"s_lshl_b32 {s(sF)}, {s(sWn)}, 12", f"s_add_u32 {s(sT)}, {s(sT)}, {s(sF)}", f"s_add_u32 {s(sQout)}, {s(sT)}, {LY.WS_QA}")
    I(f"s_mov_b32 {s(sCA)}, 0x{f32bits(LY.CA):08x}")
    I(f"s_and_b32 {s(sMtB)}, {s(sJ)}, 7", f"s_lshl_b32 {s(sT)}, {s(sRh)}, 3", f"s_add_u32 {s(sMtB)}, {s(sMtB)}, {s(sT)}")
    I(f"s_lshl_b32 {s(sNtB)}, {s(sCq)}, 2", f"s_cmp_eq_u32 {s(sCq)}, 3", f"s_cselect_b32 {s(sT)}, 1, 0", f"s_sub_u32 {s(sNtB)}, {s(sNtB)}, {s(sT)}",
      f"s_lshr_b32 {s(sT)}, {s(sJ)}, 3", f"s_add_u32 {s(sNtB)}, {s(sNtB)}, {s(sT)}")
    I(f"s_cmp_ge_u32 {s(sNtB)}, 9", f"s_cselect_b32 {s(sBt)}, 1, 0", f"s_cmp_ge_u32 {s(sCq)}, 2", f"s_cselect_b32 {s(sF)}, 3, 99", f"s_cmp_eq_u32 {s(sT)}, {s(sF)}", f"s_cselect_b32 {s(sBt)}, 2, {s(sBt)}")
    I(f"s_lshl_b32 {s(sT)}, {s(sMtB)}, 2", f"s_add_u32 {s(sT)}, {s(sT)}, {s(sWave)}", f"s_mul_i32 {s(sXbB)}, {s(sT)}, {32*1152}")
    I(f"s_mul_i32 {s(sWbB)}, {s(sWave)}, {16*3456}", f"s_lshl_b32 {s(sT)}, {s(sNtB)}, 8", f"s_add_u32 {s(sWbB)}, {s(sWbB)}, {s(sT)}")
    issue([("P", 2), ("P", 1), ("R", 2), ("R", 3)])
    if "samesrc" in os.environ.get("EXP", ""):
        I(f"s_mul_i32 {s(sXqB)}, {s(sWave)}, {32*1152}", f"s_lshl_b32 {s(sWqB)}, {s(sWave)}, 17", f"s_mul_i32 {s(sXbB)}, {s(sWave)}, {32*1152}", f"s_mul_i32 {s(sWbB)}, {s(sWave)}, {16*3456}")
    if "samedst" in os.environ.get("EXP", ""):
        for i in range(8): I(f"s_mov_b32 {s(sKVo+i)}, {i*8192*4}")
        I(f"s_mov_b32 {s(sQout)}, 0")
    I(f"v_and_b32 {v(vT)}, 31, v0", f"v_lshlrev_b32 {v(TT)}, 7, {v(vT)}", f"v_lshrrev_b32 {v(TT+1)}, 5, v0", f"v_lshrrev_b32 {v(TT+2)}, 1, v0", f"v_and_b32 {v(TT+2)}, 7, {v(TT+2)}")
    for ks in range(4):
        I(f"v_add_u32 {v(vT)}, {2*ks}, {v(TT+1)}", f"v_xor_b32 {v(vT)}, {v(vT)}, {v(TT+2)}", f"v_lshl_add_u32 {v(aXR+ks)}, {v(vT)}, 4, {v(TT)}")
        I(f"s_lshl_b32 {s(sT)}, {s(sWm)}, 14", f"s_add_u32 {s(sT)}, {s(sT)}, {PB}", f"v_add_u32 {v(aXP+ks)}, {s(sT)}, {v(aXR+ks)}", f"v_add_u32 {v(aXP2+ks)}, 65536, {v(aXP+ks)}")
        I(f"s_lshl_b32 {s(sT)}, {s(sWm)}, 13", f"v_add_u32 {v(aXB+ks)}, {s(sT)}, {v(aXR+ks)}")
    I(f"v_lshrrev_b32 {v(TT)}, 5, v0", f"v_lshlrev_b32 {v(TT)}, 3, {v(TT)}", f"v_and_b32 {v(TT+1)}, 15, v0", f"v_lshrrev_b32 {v(TT+1)}, 2, {v(TT+1)}",
      f"v_add_u32 {v(TT)}, {v(TT)}, {v(TT+1)}", f"v_lshlrev_b32 {v(TT+1)}, 2, {v(TT+1)}",
      f"v_lshrrev_b32 {v(TT+2)}, 4, v0", f"v_and_b32 {v(TT+2)}, 1, {v(TT+2)}", f"v_lshlrev_b32 {v(TT+2)}, 1, {v(TT+2)}",
      f"v_and_b32 {v(TT+3)}, 3, v0", f"v_lshrrev_b32 {v(TT+3)}, 1, {v(TT+3)}", f"v_add_u32 {v(TT+2)}, {v(TT+2)}, {v(TT+3)}",
      f"v_and_b32 {v(TT+3)}, 1, v0", f"v_lshlrev_b32 {v(TT+3)}, 3, {v(TT+3)}")
    def waddr(dst, cb_s_mul, cb_reg, cb_const, rowshift, base):
        I(f"s_mul_i32 {s(sT)}, {s(cb_reg)}, {cb_s_mul}", f"s_add_u32 {s(sT)}, {s(sT)}, {cb_const}", f"v_xor_b32 {v(vT)}, {s(sT)}, {v(TT+1)}", f"v_add_u32 {v(vT)}, {v(vT)}, {v(TT+2)}",
          f"v_lshl_add_u32 {v(vT)}, {v(vT)}, 4, {v(TT+3)}", f"v_lshl_add_u32 {v(dst)}, {v(TT)}, {rowshift}, {v(vT)}")
        if base: I(f"v_add_u32 {v(dst)}, {base}, {v(dst)}")
    for tn in range(2):
        waddr(aWB + tn, 8, sWn, 4 * tn, 8, PB); I(f"v_add_u32 {v(aWB2+tn)}, 65536, {v(aWB+tn)}")
    for tn in range(4): waddr(aWR + tn, 16, sWn, 4 * tn, 9, RB)
    for tn in range(2):
        waddr(aWP + tn, 8, sWave, 4 * tn, 9, PB); I(f"v_add_u32 {v(aWP2+tn)}, 65536, {v(aWP+tn)}")
    for i in range(34): I(f"v_mov_b32 {v(BADR+i)}, 0x{OOB:08x}")
    for i in range(4): I(f"v_mov_b32 {v(BONE+2+i)}, 0x3f803f80")
    b_addr(k, locals())
    pf = []
    I(f"s_lshl_b32 {s(sT)}, s2, 2", f"s_add_u32 {s(sT)}, {s(sT)}, {s(sWave)}")
    for i, (srd, nlines) in enumerate(((SXB, 18432), (SWB, 15552), (SXQ, 18432), (SWQ, 36864), (SWOA, 36864), (SWOB, 5184))):
        c = -(-nlines // 1024)
        I(f"s_mul_i32 {s(sT2)}, {s(sT)}, {c}", f"v_add_u32 {v(PFV+i)}, {s(sT2)}, v0", f"v_lshlrev_b32 {v(PFV+i)}, 7, {v(PFV+i)}",
          f"v_mov_b32 {v(vT)}, 0x{OOB:08x}", f"v_cmp_gt_u32 vcc, {c}, v0", "s_nop 1", f"v_cndmask_b32 {v(PFV+i)}, {v(vT)}, {v(PFV+i)}, vcc")
        pf.append(f"buffer_load_dword {v(PFV+8)}, {v(PFV+i)}, {s(srd,4)}, 0 offen")
    if os.environ.get("NOPF"): pf = []

    def xf(b, t): return v(XF[b] + 4 * t, 4)
    def wf(b, t): return v(WF[b] + 4 * t, 4)
    def wf2(b, t, rd): return v(WF[b] + 4 * t + 2 * rd, 2)
    def stage_p(g): return STAGE_P[g]
    def last_user(u): return LAST_USER[u]
    def nks(g): return 2 if ph(g) == "K" else 4
    def reads(g, ks, b):
        L = []
        sl = stage_p(g) % 3
        if ph(g) == "B":
            for tm in range(2): L.append(f"ds_read_b128 {xf(b,tm)}, {v(aXB+ks)} offset:{(g%4)*16384 + tm*4096}")
            for tn in range(2):
                base, off = (aWB, sl * 32768) if sl < 2 else (aWB2, 0)
                for rd in range(2): L.append(f"ds_read_b64_tr_b16 {wf2(b,tn,rd)}, {v(base+tn)} offset:{off + (ix(g) & 1) * 16384 + ks*4096 + rd*1024}")
        elif ph(g) == "K":
            kk = 2 * (ix(g) & 1) + ks
            for tm in range(4):
                base, off = (aXP, sl * 32768) if sl < 2 else (aXP2, 0)
                L.append(f"ds_read_b128 {xf(b,tm)}, {v(base+kk)} offset:{off + tm*4096}")
            for tn in range(4):
                for rd in range(2): L.append(f"ds_read_b64_tr_b16 {wf2(b,tn,rd)}, {v(aWR+tn)} offset:{(g%4)*16384 + ks*8192 + rd*2048}")
        else:
            for tm in range(4): L.append(f"ds_read_b128 {xf(b,tm)}, {v(aXR+ks)} offset:{(g%4)*16384 + tm*4096}")
            for tn in range(2):
                base, off = (aWP, sl * 32768) if sl < 2 else (aWP2, 0)
                for rd in range(2): L.append(f"ds_read_b64_tr_b16 {wf2(b,tn,rd)}, {v(base+tn)} offset:{off + ks*8192 + rd*2048}")
        return L
    def mfmas(g, ks, b, var):
        first = ix(g) == 0 and ks == 0
        L = []
        if ph(g) == "B":
            for tm in range(2):
                for tn in range(2):
                    ac = v(BA + (tm * 2 + tn) * 16, 16)
                    A, B = (wf(b, tn), xf(b, tm)) if var[1] == "QK" else (xf(b, tm), wf(b, tn))
                    L.append(f"v_mfma_f32_32x32x16_bf16 {ac}, {A}, {B}, {'0' if first else ac}")
        elif ph(g) == "K":
            for tm in range(4):
                for tn in range(4):
                    ac = a((tm * 4 + tn) * 16, 16)
                    A, B = (wf(b, tn), xf(b, tm)) if var[0] == "K" else (xf(b, tm), wf(b, tn))
                    L.append(f"v_mfma_f32_32x32x16_bf16 {ac}, {A}, {B}, {'0' if first else ac}")
        else:
            for tm in range(4):
                for tn in range(2):
                    ac = v(QA + (tm * 2 + tn) * 16, 16)
                    L.append(f"v_mfma_f32_32x32x16_bf16 {ac}, {wf(b,tn)}, {xf(b,tm)}, {'0' if first else ac}")
        return L
    def kv_epi():
        L = []
        for tm in range(4):
            for tn in range(4):
                base = (tm * 4 + tn) * 16
                for i in range(16): L.append(f"v_accvgpr_read_b32 {v(TT+i)}, {a(base+i)}")
                for i in range(8): L.append(f"v_cvt_pk_bf16_f32 {v(UU+i)}, {v(TT+2*i)}, {v(TT+2*i+1)}")
                for f in range(2):
                    L.append((f"s_add_u32 {s(sT2)}, {s(sKVo+2*tn+f)}, {tm*8192}", f"buffer_store_dwordx4 {v(UU+4*f,4)}, {v(vL16)}, {s(SWS,4)}, {s(sT2)} offen{STF}"))
        return L
    def q_epi():
        L = []
        for tm in range(4):
            for tn in range(2):
                base = QA + (tm * 2 + tn) * 16
                for i in range(16): L.append(f"v_mul_f32 {v(base+i)}, {s(sCA)}, {v(base+i)}")
                for i in range(8): L.append(f"v_cvt_pk_bf16_f32 {v(base+i)}, {v(base+2*i)}, {v(base+2*i+1)}")
                if tn == 0: L.append(f"s_add_u32 {s(sT2)}, {s(sQout)}, {tm*8192}")
                for f in range(2):
                    L.append(f"buffer_store_dwordx4 {v(base+4*f,4)}, {v(vL16)}, {s(SWS,4)}, {s(sT2)} offen offset:{(2*tn+f)*1024}{STQ}")
        return L
    def b_epi():
        L = []; n = 0
        for tm in range(2):
            for tn in range(2):
                base = BA + (tm * 2 + tn) * 16
                for p in range(8):
                    r = BTMP + (n % 8); n += 1
                    L += [f"v_mul_f32 {v(base+2*p)}, {s(sBsc)}, {v(base+2*p)}", f"v_mul_f32 {v(base+2*p+1)}, {s(sBsc)}, {v(base+2*p+1)}",
                          f"v_cvt_pk_bf16_f32 {v(r)}, {v(base+2*p)}, {v(base+2*p+1)}", f"buffer_store_dword {v(r)}, {v(BADR + (tm*2+tn)*8 + p)}, {s(SWS,4)}, 0 offen"]
        for st in range(4):
            for tn in range(2):
                L.append(f"buffer_store_dwordx4 {v(BONE+2,4)}, {v(BADR+32+tn)}, {s(SWS,4)}, {s(4+st)} offen")
        return L

    def run_segment(g0, g1, var, epi_ops, vml, carry, epi_lo=0, epi_lim=None, epi2=None, epi2_lo=0):
        lastg = GE - 1
        backbone = []; ctl = {}; rd_streams = []; bars = []
        for g in range(g0, g1):
            n = nks(g)
            for ks in range(n):
                m = mfmas(g, ks, ks & 1, var)
                start = len(backbone); backbone += m; L = len(m)
                if ks < n - 1: nxt = reads(g, ks + 1, (ks + 1) & 1)
                elif g + 1 <= lastg: nxt = reads(g + 1, 0, 0)
                else: nxt = []
                hi = start + L - (3 if L >= 8 else 2)
                if nxt: rd_streams.append([(r, start, hi) for r in nxt])
                if ks == n - 2: ctl[start + L - 1] = ("BAR", g); bars.append((start + L - 1, g))
                else: ctl[start + L - 1] = "W"
        n = len(backbone)
        dma_stream = []
        nextbar = lambda x: min([bg for bg, _ in bars if bg > x], default=n - 1)
        if carry: dma_stream += [((tag, d), 0, max(0, nextbar(-1) - 1)) for tag, d in carry]
        carry_out = []
        for bg, g in bars:
            items = []
            if g + 4 <= lastg: items += [(("R", g + 4), d) for d in Ritem(g + 4)]
            u = stage_p(g)
            if last_user(u) == g and u + 3 < UE: items += [(("P", u + 3), d) for d in Pitem(u + 3)]
            nb = [x for x, _ in bars if x > bg]
            if nb: dma_stream += [(it, bg + 1, nb[0] - 1) for it in items]
            else:
                room = (n - 1 - bg) // 2
                take = min(len(items), room) if g1 <= lastg else len(items)
                dma_stream += [(it, bg + 1, n - 1) for it in items[:take]]
                carry_out = items[take:]
        streams = [[(tuple(d), e, l) for (tag, d), e, l in dma_stream]] if dma_stream else [[]]
        streams += rd_streams
        if epi_ops: streams.append([(o, epi_lo, n - 1 if epi_lim is None else epi_lim) for o in epi_ops])
        if epi2: streams.append([(o, epi2_lo, n - 1) for o in epi2])
        base = [0] * n
        for gp, c in ctl.items(): base[gp] += 8 if c != "W" else 4
        asg, load = anneal(n, base, streams)
        slots = {gp: [] for gp in range(n)}
        for si in list(range(1, len(streams))) + [0]:
            for (op, e, l), gp, idx in zip(streams[si], asg[si], range(len(streams[si]))):
                slots[gp].append((op, dma_stream[idx][0][0] if si == 0 else None))
        out = []
        for gi in range(n):
            out.append(backbone[gi])
            for op, tag in slots[gi]:
                ls = list(op) if isinstance(op, tuple) else [op]
                out += ls
                if tag is not None: vml.append(tag)
                else:
                    for l in ls:
                        if l.startswith("buffer_"): vml.append(("E", 0))
            c = ctl.get(gi)
            if c == "W": out.append("s_waitcnt lgkmcnt(0)")
            elif c is not None:
                g = c[1]
                need = [("R", g + 1), ("P", stage_p(g + 1))] if g + 1 <= lastg else []
                if need:
                    assert all(x in vml for x in need), (g, need)
                    idx = max(i for i, tg in enumerate(vml) if tg in need)
                    out.append(f"s_waitcnt vmcnt({min(len(vml) - 1 - idx, 63)}) lgkmcnt(0)")
                else: out.append("s_waitcnt lgkmcnt(0)")
                out.append("s_barrier")
        ex = os.environ.get("EXP", "")
        def keep(l):
            if "nolds" in ex and l.startswith("ds_read"): return False
            if "nomfma" in ex and l.startswith("v_mfma"): return False
            if "nodma" in ex and l.startswith("buffer_load"): return False
            if "nost" in ex and l.startswith("buffer_store"): return False
            if "nobst" in ex and l.startswith("buffer_store_dword "): return False
            if "nokst" in ex and l.startswith("buffer_store_dwordx4") and "v[12" in l: return False
            return True
        if "novm" in ex: out = [("s_waitcnt lgkmcnt(0)" if l.startswith("s_waitcnt vmcnt") else l) for l in out]
        if ex: out = [l for l in out if keep(l)]
        if os.environ.get("VERB"): print(f"seg {g0}-{g1} {var}: loads", load[:96])
        return out, carry_out

    nafter = len(vmlog) - 1 - max(i for i, tg in enumerate(vmlog) if tg in (("R", 0), ("P", 0)))
    I(f"s_waitcnt vmcnt({nafter})", "s_barrier")
    vml = list(vmlog)
    k.stamp(1)
    I(reads(0, 0, 0), "s_waitcnt lgkmcnt(0)")
    gB = max(g for g in range(GQ) if ph(g) == "B") + 1
    I(f"s_lshl_b32 {s(sT)}, {s(sIsV)}, 1", f"s_min_u32 {s(sT2)}, {s(sBt)}, 1", f"s_add_u32 {s(sT)}, {s(sT)}, {s(sT2)}")
    I(f"s_cmp_eq_u32 {s(sT)}, 1", "s_cbranch_scc1 L_pj_c1", f"s_cmp_eq_u32 {s(sT)}, 2", "s_cbranch_scc1 L_pj_c2", f"s_cmp_eq_u32 {s(sT)}, 3", "s_cbranch_scc1 L_pj_c3")
    segs = {}
    for ci, var in enumerate((("K", "QK"), ("K", "V"), ("V", "QK"), ("V", "V"))):
        if ci: I(f"L_pj_c{ci}:")
        vm1 = list(vml)
        sg, c1 = run_segment(0, gB, var, pf, vm1, [], epi_lo=32, epi_lim=200)
        I(sg)
        I(f"s_branch L_pj_{var[0]}2")
        segs[var] = sg
    k2 = {}
    be = b_epi()
    for kv in ("K", "V"):
        I(f"L_pj_{kv}2:")
        if kv == "K": k.stamp(2)
        vm2 = list(vm1)
        sg, c2 = run_segment(gB, GQ, (kv, "V"), be, vm2, c1, epi_lo=2, epi_lim=185)
        I(sg)
        if kv == "K": I("s_branch L_pj_Q")
        k2[kv] = sg
    I("L_pj_Q:")
    k.stamp(3)
    segQ, _ = run_segment(GQ, GE, ("K", "V"), kv_epi(), vm2, c2, epi_lo=4)
    I(segQ)
    k.stamp(4)
    I("s_nop 7", "s_nop 7"); I(q_epi())
    k.stamp(5)
    I("L_pj_end:", "s_endpgm")
    flat = lambda L: [l for l in L if not l.endswith(":") and not l.startswith("s_cbranch")]
    pre = reads(0, 0, 0) + ["s_waitcnt lgkmcnt(0)"]
    check(pre + flat(segs[("K", "QK")]) + flat(k2["K"]) + flat(segQ) + ["s_nop 7", "s_nop 7"] + q_epi(), "proj_K_QK")
    check(pre + flat(segs[("V", "V")]) + flat(k2["V"]) + flat(segQ), "proj_V_V")
    return k

def b_addr(k, L):
    I = k.I
    sT, sT2, sT3, sWm, sWn, sNtB, sMtB, sF, sBt, sBsc = (L[x] for x in ("sT", "sT2", "sT3", "sWm", "sWn", "sNtB", "sMtB", "sF", "sBt", "sBsc"))
    TT, vT, vT2, BADR = L["TT"], L["vT"], L["vT2"], L["BADR"]
    I(f"s_mov_b32 {s(sBsc)}, 0x3f800000")
    for st in range(4): I(f"s_mov_b32 {s(4+st)}, 0")
    I(f"s_cmp_lg_u32 {s(sBt)}, 0", "s_cbranch_scc1 L_pj_adrV")
    vTab, vMain, vLeft, vIdx = TT + 8, TT + 9, TT + 11, TT + 13
    sIsK, sC0 = 94, 95
    I(f"s_lshl_b32 {s(sC0)}, {s(sNtB)}, 7", f"s_lshl_b32 {s(sT)}, {s(sWn)}, 6", f"s_add_u32 {s(sC0)}, {s(sC0)}, {s(sT)}")
    I(f"s_cmp_ge_u32 {s(sC0)}, 576", f"s_cselect_b32 {s(sIsK)}, 1, 0", csel(sBsc, "0x3f800000", f"0x{f32bits(LY.CB):08x}"), f"s_cselect_b32 {s(sT)}, 576, 0", f"s_sub_u32 {s(sC0)}, {s(sC0)}, {s(sT)}")
    I(f"v_and_b32 {v(vT)}, 31, v0", f"v_lshlrev_b32 {v(vT2)}, 1, {v(vT)}", f"v_add_u32 {v(vT2)}, {s(sC0)}, {v(vT2)}",
      f"v_mul_u32_u24 {v(TT)}, 3641, {v(vT2)}", f"v_lshrrev_b32 {v(TT)}, 16, {v(TT)}",
      f"v_mul_u32_u24 {v(TT+1)}, 18, {v(TT)}", f"v_sub_u32 {v(TT+1)}, {v(vT2)}, {v(TT+1)}")
    I(f"v_lshrrev_b32 {v(TT+2)}, 2, {v(TT+1)}", f"v_and_b32 {v(TT+2)}, 1, {v(TT+2)}", f"v_lshlrev_b32 {v(TT+2)}, 9, {v(TT+2)}",
      f"v_and_b32 {v(TT+3)}, 3, {v(TT+1)}", f"v_lshrrev_b32 {v(TT+3)}, 1, {v(TT+3)}", f"v_lshrrev_b32 {v(TT+4)}, 3, {v(TT+1)}", f"v_lshl_add_u32 {v(TT+3)}, {v(TT+4)}, 1, {v(TT+3)}",
      f"v_lshl_add_u32 {v(TT+2)}, {v(TT+3)}, 2, {v(TT+2)}")
    I(f"s_cmp_eq_u32 {s(sIsK)}, 0", csel(sT, 65536, LY.HEADB), csel(sT2, 8192, LY.HEADB))
    I(f"v_mul_lo_u32 {v(TT+3)}, {v(TT)}, {s(sT)}", f"v_add_u32 {v(TT+2)}, {v(TT+2)}, {v(TT+3)}",
      f"v_mul_lo_u32 {v(TT+3)}, {v(TT)}, {s(sT2)}", f"v_or_b32 {v(TT+3)}, 0x80000000, {v(TT+3)}",
      f"v_cmp_eq_u32 vcc, 16, {v(TT+1)}", "s_nop 1", f"v_cndmask_b32 {v(vTab)}, {v(TT+2)}, {v(TT+3)}, vcc")
    for tm in range(2):
        I(f"s_lshl_b32 {s(sT)}, {s(sMtB)}, 2", f"s_lshl_b32 {s(sT2)}, {s(sWm)}, 1", f"s_add_u32 {s(sT)}, {s(sT)}, {s(sT2)}", f"s_add_u32 {s(sT)}, {s(sT)}, {tm}")
        I(f"s_lshl_b32 {s(sF)}, {s(sT)}, 10", f"s_add_u32 {s(sF)}, {s(sF)}, {LY.WS_QB0}", f"s_lshl_b32 {s(sT3)}, {s(sT)}, 7", f"s_add_u32 {s(sT3)}, {s(sT3)}, {LY.WS_QB1}")
        I(f"s_cmp_eq_u32 {s(sIsK)}, 0", f"s_cbranch_scc1 L_pj_qdone_{tm}")
        I(f"s_lshr_b32 {s(sT2)}, {s(sT)}, 3", f"s_mul_i32 {s(sT2)}, {s(sT2)}, {LY.CHB}", f"s_add_u32 {s(sT2)}, {s(sT2)}, {LY.WS_KVB}",
          f"s_and_b32 {s(sF)}, {s(sT)}, 7", f"s_lshl_b32 {s(sF)}, {s(sF)}, 10", f"s_add_u32 {s(sF)}, {s(sF)}, {s(sT2)}",
          f"s_and_b32 {s(sT3)}, {s(sT)}, 4", f"s_lshl_b32 {s(sT3)}, {s(sT3)}, 7", f"s_add_u32 {s(sT3)}, {s(sT3)}, {s(sT2)}", f"s_add_u32 {s(sT3)}, {s(sT3)}, 8192",
          f"s_and_b32 {s(sT2)}, {s(sT)}, 3", f"s_lshl_b32 {s(sT2)}, {s(sT2)}, 2", f"s_add_u32 {s(sT3)}, {s(sT3)}, {s(sT2)}")
        I(f"L_pj_qdone_{tm}:")
        I(f"s_cmp_eq_u32 {s(sIsK)}, 0", f"s_cselect_b32 {s(sT2)}, 2, 4")
        I(f"v_and_b32 {v(vT)}, 31, v0", f"v_lshlrev_b32 {v(vMain+tm)}, 4, {v(vT)}", f"v_add_u32 {v(vMain+tm)}, {s(sF)}, {v(vMain+tm)}",
          f"v_lshlrev_b32 {v(vLeft+tm)}, {s(sT2)}, {v(vT)}", f"v_add_u32 {v(vLeft+tm)}, {s(sT3)}, {v(vLeft+tm)}")
    I(f"v_lshrrev_b32 {v(vIdx)}, 5, v0", f"v_lshlrev_b32 {v(vIdx)}, 3, {v(vIdx)}")
    G = 56
    for tn in range(2):
        for p in range(8):
            i0 = 16 * tn + (p & 1) + 4 * (p >> 1)
            I(f"v_add_u32 {v(vT)}, {i0*4}, {v(vIdx)}", f"ds_bpermute_b32 {v(G+tn*8+p)}, {v(vT)}, {v(vTab)}")
    I("s_waitcnt lgkmcnt(0)")
    for tn in range(2):
        for p in range(8):
            g = G + tn * 8 + p
            I(f"v_cmp_gt_i32 vcc, 0, {v(g)}", f"v_and_b32 {v(g)}, 0x7fffffff, {v(g)}", "s_nop 0")
            for tm in range(2):
                d = BADR + (tm * 2 + tn) * 8 + p
                I(f"v_cndmask_b32 {v(d)}, {v(vMain+tm)}, {v(vLeft+tm)}, vcc", f"v_add_u32 {v(d)}, {v(d)}, {v(g)}")
    I("s_branch L_pj_adrD")
    I("L_pj_adrV:", f"s_cmp_eq_u32 {s(sBt)}, 2", "s_cbranch_scc1 L_pj_adrD")
    for tm in range(2):
        for f in range(2):
            I(f"s_lshl_b32 {s(sT)}, {s(sMtB)}, 3", f"s_lshl_b32 {s(sT2)}, {s(sWm)}, 2", f"s_add_u32 {s(sT)}, {s(sT)}, {s(sT2)}", f"s_add_u32 {s(sT)}, {s(sT)}, {2*tm+f}",
              f"s_lshr_b32 {s(sT2)}, {s(sT)}, 4", f"s_mul_i32 {s(sT2)}, {s(sT2)}, {LY.CHB}", f"s_and_b32 {s(sT)}, {s(sT)}, 15", f"s_mul_i32 {s(sT)}, {s(sT)}, 608",
              f"s_add_u32 {s(sT)}, {s(sT)}, {s(sT2)}", f"s_add_u32 {s(4 + 2*tm + f)}, {s(sT)}, {LY.WS_KVB + 9216}")
    for tn in range(2):
        I(f"s_lshl_b32 {s(sT)}, {s(sNtB)}, 7", f"s_lshl_b32 {s(sT2)}, {s(sWn)}, 6", f"s_add_u32 {s(sT)}, {s(sT)}, {s(sT2)}", f"s_add_u32 {s(sT)}, {s(sT)}, {32*tn}", f"s_sub_u32 {s(sT)}, {s(sT)}, 1152")
        I(f"v_and_b32 {v(vT)}, 31, v0", f"v_add_u32 {v(vT)}, {s(sT)}, {v(vT)}",
          f"v_mul_u32_u24 {v(vT2)}, 3641, {v(vT)}", f"v_lshrrev_b32 {v(vT2)}, 16, {v(vT2)}",
          f"v_mul_u32_u24 {v(TT)}, 18, {v(vT2)}", f"v_sub_u32 {v(TT)}, {v(vT)}, {v(TT)}",
          f"s_mov_b32 {s(sT2)}, {LY.HEADB}", f"v_mul_lo_u32 {v(vT2)}, {v(vT2)}, {s(sT2)}",
          f"v_lshl_add_u32 {v(vT2)}, {v(TT)}, 4, {v(vT2)}",
          f"v_lshrrev_b32 {v(TT+1)}, 5, v0", f"v_mul_u32_u24 {v(TT+1)}, 304, {v(TT+1)}", f"v_add_u32 {v(vT2)}, {v(vT2)}, {v(TT+1)}",
          f"v_mov_b32 {v(TT+2)}, 0x{OOB:08x}",
          f"v_cmp_gt_u32 vcc, 576, {v(vT)}", "s_nop 1", f"v_cndmask_b32 {v(TT+3)}, {v(TT+2)}, {v(vT2)}, vcc",
          f"v_add_u32 {v(vT2)}, 16, {v(TT+3)}", f"v_cmp_eq_u32 vcc, 17, {v(TT)}", "s_nop 1", f"v_cndmask_b32 {v(BADR+32+tn)}, {v(TT+2)}, {v(vT2)}, vcc")
        for tm in range(2):
            for p in range(8):
                d = BADR + (tm * 2 + tn) * 8 + p
                I(f"s_add_u32 {s(sT)}, {s(4 + 2*tm + (p >> 2))}, {(p & 3) * 4}", f"v_add_u32 {v(d)}, {s(sT)}, {v(TT+3)}")
    I("L_pj_adrD:")
```

```python
from gen_common import *
SA, SB, SWS2 = 36, 40, 44
sFr, sKs, sNtr, sA, sA2, sDst, sT, sT2 = 48, 49, 50, 51, 52, 53, 54, 55

def relayout_issue(k, sHead, sWave, sPair, vL16):
    I = k.I
    I(f"s_cmp_lg_u32 {s(sPair)}, 7", "s_cbranch_scc1 L_rl_noissue")
    I("s_barrier")
    I("s_load_dwordx2 s[56:57], s[0:1], 40")
    I(f"s_lshl_b32 {s(sFr)}, {s(sHead)}, 2", f"s_add_u32 {s(sFr)}, {s(sFr)}, {s(sWave)}", f"s_mul_i32 {s(sA)}, {s(sFr)}, 36864", f"s_mul_i32 {s(sA2)}, {s(sWave)}, 36864")
    I("s_waitcnt lgkmcnt(0)")
    k.srd(SA, 56, 4096 * 1152)
    for grp in range(9):
        I(f"s_add_u32 m0, {s(sA2)}, {grp*4096}", f"s_add_u32 {s(sT)}, {s(sA)}, {grp*4096}")
        for j in range(4): I(f"buffer_load_dwordx4 {v(vL16)}, {s(SA,4)}, {s(sT)} offen" + (f" offset:{j*1024}" if j else "") + " lds")
    I("L_rl_noissue:")

def relayout_finish(k, sHead, sWave, sPair, vL16, SW):
    I = k.I
    I(f"s_cmp_eq_u32 {s(sPair)}, 6", "s_cbranch_scc1 L_rl_B", f"s_cmp_lg_u32 {s(sPair)}, 7", "s_cbranch_scc1 L_rl_done")
    vB = 16
    I(f"s_lshl_b32 {s(sFr)}, {s(sHead)}, 2", f"s_add_u32 {s(sFr)}, {s(sFr)}, {s(sWave)}", f"s_mul_i32 {s(sA2)}, {s(sWave)}, 36864")
    I(f"v_lshrrev_b32 {v(vB)}, 5, v0", f"v_lshlrev_b32 {v(vB)}, 2, {v(vB)}", f"v_and_b32 {v(vB+1)}, 15, v0", f"v_lshrrev_b32 {v(vB+1)}, 2, {v(vB+1)}", f"v_add_u32 {v(vB)}, {v(vB)}, {v(vB+1)}",
      f"v_mul_u32_u24 {v(vB)}, 1152, {v(vB)}", f"v_lshrrev_b32 {v(vB+1)}, 4, v0", f"v_and_b32 {v(vB+1)}, 1, {v(vB+1)}", f"v_lshl_add_u32 {v(vB)}, {v(vB+1)}, 5, {v(vB)}",
      f"v_and_b32 {v(vB+1)}, 3, v0", f"v_lshl_add_u32 {v(vB)}, {v(vB+1)}, 3, {v(vB)}", f"v_add_u32 {v(vB)}, {s(sA2)}, {v(vB)}")
    I(f"s_mul_i32 {s(sDst)}, {s(sFr)}, {2*18432}", f"s_add_u32 {s(sDst)}, {s(sDst)}, {LY.WS_WOA}")
    I("s_waitcnt vmcnt(0)")
    for bt in range(3):
        for e in range(12):
            f = bt * 12 + e; ks, nt = f // 18, f % 18
            for rd in range(2):
                I(f"ds_read_b64_tr_b16 {v(24 + bt*48 + e*4 + rd*2, 2)}, {v(vB)} offset:{(16*ks + 8*rd)*1152 + nt*64}")
            if e == 6: I("s_waitcnt lgkmcnt(8)")
    for bt in range(3):
        I(f"s_waitcnt lgkmcnt(0)")
        for e in range(12):
            if e % 4 == 0: I(f"s_add_u32 {s(sT)}, {s(sDst)}, {(bt*12+e)*1024}")
            I(f"buffer_store_dwordx4 {v(24 + bt*48 + e*4, 4)}, {v(vL16)}, {s(SW,4)}, {s(sT)} offen" + (f" offset:{(e%4)*1024}" if e % 4 else ""))
    I("s_branch L_rl_done")
    I("L_rl_B:")
    I("s_load_dwordx2 s[56:57], s[0:1], 64")
    I(f"s_lshl_b32 {s(sFr)}, {s(sHead)}, 2", f"s_add_u32 {s(sFr)}, {s(sFr)}, {s(sWave)}")
    vG = 16
    I(f"v_and_b32 {v(vG)}, 31, v0", f"v_lshlrev_b32 {v(vG)}, 1, {v(vG)}", f"v_lshrrev_b32 {v(vG+1)}, 5, v0",
      f"v_mul_u32_u24 {v(vG+2)}, {4*1152}, {v(vG+1)}", f"v_add_u32 {v(vG+2)}, {v(vG+2)}, {v(vG)}",
      f"v_mul_u32_u24 {v(vG+3)}, {72*1152}, {v(vG+1)}", f"v_add_u32 {v(vG+3)}, {v(vG+3)}, {v(vG)}")
    I("s_waitcnt lgkmcnt(0)")
    k.srd(SB, 56, 576 * 1152)
    rows_main = [0, 1, 2, 3, 8, 9, 10, 11]
    rows_left = [0, 1, 18, 19, 36, 37, 54, 55]
    def divmod18(src):
        return [f"s_mul_i32 {s(sKs)}, {s(src)}, 3641", f"s_lshr_b32 {s(sKs)}, {s(sKs)}, 16", f"s_mul_i32 {s(sNtr)}, {s(sKs)}, 18", f"s_sub_u32 {s(sNtr)}, {s(src)}, {s(sNtr)}"]
    def rl_loads(tt, vb, rows):
        o = []
        for e, r in enumerate(rows):
            off = r * 1152
            if off <= 4095: o.append(f"buffer_load_ushort {v(tt+e)}, {v(vb)}, {s(SB,4)}, {s(sA)} offen offset:{off}")
            else:
                o.append(f"s_add_u32 {s(sA2)}, {s(sA)}, {off}"); o.append(f"buffer_load_ushort {v(tt+e)}, {v(vb)}, {s(SB,4)}, {s(sA2)} offen")
        return o
    def wob_loads(tt, tag):
        I(divmod18(sT2), f"s_lshl_b32 {s(sNtr)}, {s(sNtr)}, 6", f"s_cmp_ge_u32 {s(sKs)}, 32", f"s_cbranch_scc1 L_rl_left_{tag}")
        I(f"s_mul_i32 {s(sA)}, {s(sKs)}, {18*1152}", f"s_add_u32 {s(sA)}, {s(sA)}, {s(sNtr)}"); I(rl_loads(tt, vG + 2, rows_main)); I(f"s_branch L_rl_wdone_{tag}")
        I(f"L_rl_left_{tag}:", f"s_sub_u32 {s(sKs)}, {s(sKs)}, 32", f"s_mul_i32 {s(sA)}, {s(sKs)}, {144*1152}", f"s_add_u32 {s(sA)}, {s(sA)}, {16*1152}", f"s_add_u32 {s(sA)}, {s(sA)}, {s(sNtr)}")
        I(rl_loads(tt, vG + 3, rows_left)); I(f"L_rl_wdone_{tag}:")
    def rl_store(tt):
        o = [f"v_lshl_or_b32 {v(tt+8+e)}, {v(tt+2*e+1)}, 16, {v(tt+2*e)}" for e in range(4)]
        o.append(f"buffer_store_dwordx4 {v(tt+8,4)}, {v(vL16)}, {s(SW,4)}, {s(sDst)} offen")
        return o
    GT = 24
    for i in range(5):
        I(f"s_add_u32 {s(sT2)}, {s(sFr)}, {128*i}"); wob_loads(GT + i * 12, f"b{i}")
    I(f"s_add_u32 {s(sT2)}, {s(sFr)}, 640", f"s_cmp_ge_u32 {s(sT2)}, 648", "s_cbranch_scc1 L_rl_r5a")
    wob_loads(GT + 60, "b5")
    I("L_rl_r5a:", "s_waitcnt vmcnt(0)")
    for i in range(5):
        I(f"s_add_u32 {s(sDst)}, {s(sFr)}, {128*i}", f"s_lshl_b32 {s(sDst)}, {s(sDst)}, 10", f"s_add_u32 {s(sDst)}, {s(sDst)}, {LY.WS_WOB}"); I(rl_store(GT + i * 12))
    I(f"s_add_u32 {s(sT2)}, {s(sFr)}, 640", f"s_cmp_ge_u32 {s(sT2)}, 648", "s_cbranch_scc1 L_rl_done")
    I(f"s_lshl_b32 {s(sDst)}, {s(sT2)}, 10", f"s_add_u32 {s(sDst)}, {s(sDst)}, {LY.WS_WOB}"); I(rl_store(GT + 60))
    I("L_rl_done:")
```

```python
import sys, os
from gen_common import *
from gen_oproj import gen_oproj, gen_oprojb
from gen_attb import gen_attb, LDS_B
from gen_atta import gen_atta, LDS_A
from gen_proj import gen_proj, LDS_P
from gen_mix import gen_mix, LDS_M
if __name__ == "__main__":
    ka = Kern("atta_kernel", nvgpr=512, accum=256); ka.stamp_base = 65536
    ka.I("s_cmp_ge_u32 s2, 256", "s_cbranch_scc1 L_atta_exit"); ka.stamp(0)
    gen_atta(ka)
    ka.I("L_atta_exit:", "s_endpgm")
    if os.environ.get("NOMIX"):
        kb = Kern("attb_kernel", nvgpr=256, accum=256); kb.stamp_base = 131072
        kb.I("s_cmp_ge_u32 s2, 256", "s_cbranch_scc1 L_attb_exit"); kb.stamp(0)
        gen_attb(kb)
        kb.I("L_attb_exit:", "s_endpgm")
        kerns = [gen_proj(), ka, kb, gen_oproj(), gen_oprojb()]
        launches = [("proj_kernel", 256, 256, LDS_P), ("atta_kernel", 256, 256, LDS_A), ("attb_kernel", 256, 512, LDS_B), ("oproj_kernel", 192, 256, 98304), ("oprojb_kernel", 192, 256, 98304)]
    else:
        from gen_mix import FUSE_OB
        kerns = [gen_proj(), ka, gen_mix()] + ([] if FUSE_OB else [gen_oprojb()])
        launches = [("proj_kernel", 256, 256, LDS_P), ("atta_kernel", 256, 256, LDS_A), ("mix_kernel", 256, 768, LDS_M)] + ([] if FUSE_OB else [("oprojb_kernel", 192, 256, 98304)])
    txt = assemble_file(launches, kerns)
    out = sys.argv[1] if len(sys.argv) > 1 else f"cdna_kernels/{NAME}.s"
    open(out, "w").write(txt)
    print("wrote", out, len(txt))
```

```python
from gen_common import *
from gen_relayout import relayout_issue, relayout_finish
import struct, os
def f32bits(x): return struct.unpack("<I", struct.pack("<f", x))[0]
BIAS = 96
THR = 2.0 ** 64
KRING, VRING = 4, 4
VBASE = KRING * 16384
LDS_A = 131072 + 20480
BIG = 1.0e30
STF = ' ' + os.environ.get('STQ', 'sc1')
BUDGET = int(os.environ.get('BUDGET', 20))

def gen_atta(k, label="A"):
    I = k.I
    ex = os.environ.get("EXP", "")
    SW = 4
    (sHead, sPair, sWave, sT, sT2, sIt, sKsrc, sVsrc, sWK, sWV, sNT, sTile, sR, sX, sVcur, sThr, sQlo, sQhi, sEnd, sT3) = range(16, 36)
    vL16, vT, vT2, vT3, vT4, vKc, vKn, vVc, vD0, vD1, vU, vL16V = 1, 2, 3, 4, 5, 6, 7, 8, 9, 10, 11, 15
    LA, LB, LLOW = 12, 13, 14
    S = [16, 32]; NM = [48, 64]; CM = [80, 96]; P = [112, 120]; KF = 128; VF = 160; TMP = 192
    SEL, LS = 224, 228
    MSUM = bool(os.environ.get('MSUM'))
    OL, OH, QL, QH = 0, 64, 128, 160
    def kf(j): return v(KF + 4 * j, 4)
    def vf(j): return v(VF + 4 * j, 4)
    if os.environ.get("STAMPS"): I("s_mov_b32 s60, 0")
    I("s_load_dwordx2 s[12:13], s[0:1], 88", "s_load_dwordx2 s[56:57], s[0:1], 40")
    I(f"v_lshrrev_b32 {v(vT)}, 6, v0", "v_and_b32 v0, 63, v0", "s_nop 0", f"v_readfirstlane_b32 {s(sWave)}, {v(vT)}")
    I(f"s_and_b32 {s(sT)}, s2, 7", f"s_lshr_b32 {s(sT2)}, s2, 3", f"s_and_b32 {s(sPair)}, {s(sT2)}, 7", f"s_lshr_b32 {s(sT2)}, {s(sT2)}, 3",
      f"s_lshl_b32 {s(sHead)}, {s(sT)}, 2", f"s_add_u32 {s(sHead)}, {s(sHead)}, {s(sT2)}")
    I(f"s_lshr_b32 s3, s2, 3", "s_lshl_b32 s3, s3, 2", f"s_add_u32 s3, s3, {s(sWave)}")
    k.code_prefetch("aa", "atta_kernel", "L_end_atta_kernel", 7, 3, 8, 250, True)
    I("s_waitcnt lgkmcnt(0)")
    k.srd(SW, 12, LY.WS_END)
    I(f"v_lshlrev_b32 {v(vL16)}, 4, v0")
    I(f"s_lshl_b32 {s(sT)}, {s(sPair)}, 1", f"s_sub_u32 {s(sNT)}, 32, {s(sT)}")
    I(f"s_lshl_b32 {s(sT)}, {s(sHead)}, 19", f"s_lshl_b32 {s(sT2)}, {s(sWave)}, 12", f"s_add_u32 {s(sKsrc)}, {s(sT)}, {s(sT2)}",
      f"s_add_u32 {s(sVsrc)}, {s(sKsrc)}, {LY.WS_VA}")
    if LY.WS_KA: I(f"s_add_u32 {s(sKsrc)}, {s(sKsrc)}, {LY.WS_KA}")
    I(f"s_mov_b32 {s(sWK)}, {s(sT2)}", f"s_add_u32 {s(sWV)}, {s(sT2)}, {VBASE}")
    def ld(src, j): return f"buffer_load_dwordx4 {v(vL16)}, {s(SW,4)}, {s(src)} offen" + (f" offset:{j*1024}" if j else "") + " lds"
    def dma_static(isK, slot):
        src = sKsrc if isK else sVsrc
        return [f"s_add_u32 m0, {s(sWK if isK else sWV)}, {slot*16384}", "s_nop 0"] + [ld(src, j) for j in range(4)] + [f"s_add_u32 {s(src)}, {s(src)}, 16384"]
    def dmaK0(): return dma_static(True, 0)
    I(dma_static(True, 0))
    I(f"s_lshl_b32 {s(sQlo)}, {s(sPair)}, 2", f"s_add_u32 {s(sQlo)}, {s(sQlo)}, {s(sWave)}",
      f"s_lshl_b32 {s(sT)}, {s(sPair)}, 2", f"s_sub_u32 {s(sQhi)}, 60, {s(sT)}", f"s_add_u32 {s(sQhi)}, {s(sQhi)}, {s(sWave)}")
    for (sq, base) in ((sQlo, QL), (sQhi, QH)):
        I(f"s_lshl_b32 {s(sT)}, {s(sHead)}, 6", f"s_add_u32 {s(sT)}, {s(sT)}, {s(sq)}", f"s_lshl_b32 {s(sT)}, {s(sT)}, 13", f"s_add_u32 {s(sT)}, {s(sT)}, {LY.WS_QA}",
          f"s_add_u32 {s(sT2)}, {s(sT)}, 4096")
        for j in range(8):
            I(f"buffer_load_dwordx4 {a(base+4*j,4)}, {v(vL16)}, {s(SW,4)}, {s(sT if j < 4 else sT2)} offen offset:{(j%4)*1024}")
    I(f"v_and_b32 {v(vT)}, 31, v0", f"v_lshrrev_b32 {v(vT2)}, 5, v0", f"v_lshlrev_b32 {v(vT2)}, 2, {v(vT2)}", f"v_sub_u32 {v(vT)}, {v(vT)}, {v(vT2)}")
    for (sq, vd) in ((sQlo, vD0), (sQhi, vD1)):
        I(f"s_lshl_b32 {s(sT)}, {s(sq)}, 5", f"v_add_u32 {v(vd)}, {s(sT)}, {v(vT)}", f"v_cvt_f32_i32 {v(vd)}, {v(vd)}")
    for i in range(128): I(f"v_accvgpr_write_b32 {a(i)}, 0")
    I(f"v_mov_b32 {v(LA)}, 0", f"v_mov_b32 {v(LB)}, 0", f"s_mov_b32 {s(sThr)}, {f32bits(THR)}")
    I(f"v_lshrrev_b32 {v(vT)}, 2, v0", f"v_lshrrev_b32 {v(vT2)}, 4, v0", f"v_xor_b32 {v(vT)}, {v(vT)}, {v(vT2)}", f"v_and_b32 {v(vT)}, 1, {v(vT)}",
      f"v_mov_b32 {v(vT2)}, 0x3f803f80", f"v_cmp_eq_u32 vcc, 0, {v(vT)}", "s_nop 1")
    for i in range(4): I(f"v_cndmask_b32 {v(SEL+i)}, 0, {v(vT2)}, vcc")
    I(f"s_mov_b32 {s(sR)}, 0", f"s_mov_b32 {s(sX)}, 0x8000", f"s_mov_b32 {s(sTile)}, 0")
    I(f"v_add_u32 {v(vKn)}, 16384, {v(vL16)}", f"v_add_u32 {v(vL16V)}, {VBASE}, {v(vL16)}", f"v_mov_b32 {v(vVc)}, {v(vL16V)}")

    I(dma_static(False, 0), dma_static(True, 1), dma_static(True, 2))
    relayout_issue(k, sWave, vL16)
    I(dma_static(False, 1), dma_static(True, 3))
    def rdK(j, base, step): return f"ds_read_b128 {kf(j)}, {v(base)} offset:{step*8192 + j*1024}"
    def rdV(j, step): return f"ds_read_b128 {vf(j)}, {v(vVc)} offset:{step*8192 + j*1024}"
    def QK(sb, Q, C):
        return [f"v_mfma_f32_32x32x16_bf16 {v(S[sb],16)}, {kf(j)}, {a(Q+4*j,4)}, {C if j == 0 else v(S[sb],16)}" for j in range(8)]
    def PV(pb, O):
        return [f"v_mfma_f32_32x32x16_bf16 {a(O+16*(j%4),16)}, {vf(j)}, {v(P[pb]+4*(j//4),4)}, {a(O+16*(j%4),16)}" for j in range(8)]
    def sm_ea(sb, l):
        L = []
        b = S[sb]
        for i in range(16):
            L.append(f"v_exp_f32 {v(b+i)}, {v(b+i)}")
            if i >= 2: L.append(f"v_add_f32 {v(l)}, {v(l)}, {v(b+i-2)}")
        L += [f"v_add_f32 {v(l)}, {v(l)}, {v(b+14)}", f"v_add_f32 {v(l)}, {v(l)}, {v(b+15)}"]
        return L
    def sm_cvt(sb, lo): return [f"v_cvt_pk_bf16_f32 {v(P[sb]+i)}, {v(S[sb]+2*i)}, {v(S[sb]+2*i+1)}" for i in range(lo, lo + 4)]
    def mask_ops(cb, nm, vd):
        L = [f"v_mul_f32 {v(vU)}, 0x{f32bits(BIG):08x}, {v(vd)}"]
        for r in range(16):
            c = (r & 3) + 8 * (r >> 2)
            L += [f"v_add_f32 {v(CM[cb]+r)}, 0x{f32bits(-(c - 0.5) * BIG):08x}, {v(vU)}"]
        for r in range(16):
            L += [f"v_min_f32 {v(CM[cb]+r)}, {v(nm)}, {v(CM[cb]+r)}"]
        L += [f"v_subrev_f32 {v(vd)}, 0x{f32bits(32.0):08x}, {v(vd)}" if False else f"v_add_f32 {v(vd)}, 0x{f32bits(-32.0):08x}, {v(vd)}"]
        return L

    EA1 = sm_ea(1, LB); CV1 = sm_cvt(1, 0) + sm_cvt(1, 4)
    NSPLIT = int(os.environ.get('NSPLIT', 14))
    A1 = EA1[:NSPLIT]; B1 = EA1[NSPLIT:] + CV1
    noadd = lambda L: [l for l in L if not l.startswith("v_add_f32")]
    NS2 = int(os.environ.get('NSPLIT2', 8))
    E1x = noadd(EA1); A1x = E1x[:NS2]; B1x = E1x[NS2:] + CV1
    def rowsum(pb, half): return f"v_mfma_f32_16x16x32_bf16 {v(LS,4)}, {v(SEL,4)}, {v(P[pb]+4*half,4)}, {v(LS,4)}"
    def build(mode, sit, masked=(False, False), prep=None, extra=None):
        if mode == "P1":   Qa, Qb, Oa, Ob, Na, Nb = QL, QH, OL, OH, NM[0], NM[1]
        elif mode == "HY": Qa, Qb, Oa, Ob, Na, Nb = QH, QH, OL, OH, NM[1], NM[1]
        else:              Qa, Qb, Oa, Ob, Na, Nb = QH, QH, OH, OH, NM[1], NM[1]
        Ca = v(CM[0], 16) if masked[0] else v(Na, 16)
        Cb = v(CM[1], 16) if masked[1] else v(Nb, 16)
        m = QK(0, Qa, Ca) + QK(1, Qb, Cb) + PV(0, Oa) + PV(1, Ob)
        fixed = {g: [] for g in range(32)}
        pre = {g: [] for g in range(32)}
        if extra:
            for g, ls in extra.items(): pre[g] += ls
        if mode == "P1":
            for j in range(8): fixed[8 + j].append(rdV(j, sit))
            for j in range(8): fixed[24 + j].append(rdK(j, vKc, sit))
            waits = {15: 4, 19: 0, 31: 4, 3: 0}
        elif mode == "HY":
            for j in range(8): fixed[j].append(rdK(j, vKc, 1))
            for j in range(8): fixed[8 + j].append(rdV(j, 1))
            for j in range(8): fixed[24 + j].append(rdK(j, vKn, 0))
            waits = {3: 4, 7: 4, 11: 4, 15: 4, 19: 0, 31: 4}
        elif mode == "P2":
            for j in range(8): fixed[j].append(rdK(j, vKc, 1))
            for j in range(8): fixed[8 + j].append(rdV(j, 0))
            for j in range(8): fixed[16 + j].append(rdV(j, 1))
            for j in range(8): fixed[24 + j].append(rdK(j, vKn, 0))
            waits = {3: 4, 7: 4, 11: 4, 15: 4, 19: 4, 23: 4, 27: 4, 31: 4}
        else:
            for j in range(8): fixed[8 + j].append(rdV(j, 0))
            for j in range(8): fixed[16 + j].append(rdV(j, 1))
            waits = {15: 4, 19: 4, 23: 4, 27: 0}
        allfixed = {g: pre[g] + fixed[g] + ([f"s_waitcnt lgkmcnt({waits[g]})"] if g in waits else []) for g in range(32)}
        p2 = MSUM and mode in ("P2", "DR")
        own2 = MSUM and mode in ("HY", "P2")
        if p2:
            for g, (pb, hf) in {17: (0, 0), 21: (0, 1), 25: (1, 0), 29: (1, 1)}.items(): pre[g] = [rowsum(pb, hf)] + pre[g]
            allfixed = {g: pre[g] + fixed[g] + ([f"s_waitcnt lgkmcnt({waits[g]})"] if g in waits else []) for g in range(32)}
        streams = [[(l, 0, 7) for l in (B1x if p2 else B1)]]
        if mode != "DR":
            ea0 = noadd(sm_ea(0, LA)) if own2 else sm_ea(0, LA)
            streams.append([(l, 9, 25) for l in ea0] + [(l, 19, 29) for l in sm_cvt(0, 0)] + [(l, 23, 30) for l in sm_cvt(0, 4)])
            streams.append([(l, 17, 31) for l in (A1x if own2 else A1)])
        if prep:
            for (cb, nm, vd) in prep:
                streams.append([(l, 10 if cb == 0 else 18, 31) for l in mask_ops(cb, nm, vd)])
        placed, load = schedule(32, allfixed, streams, budget=BUDGET if not prep else 32)
        out = []
        for g in range(32):
            if mode == "DR" and g < 16: pass
            else: out.append(m[g])
            body = pre[g] + fixed[g] + placed.get(g, [])
            if g in waits: body.append(f"s_waitcnt lgkmcnt({waits[g]})")
            out += body
        def keep(l):
            if "nolds" in ex and l.startswith("ds_read"): return False
            if "nomfma" in ex and l.startswith("v_mfma"): return False
            if "nocvt" in ex and l.startswith("v_cvt_pk"): return False
            if "noexp" in ex and l.startswith("v_exp"): return False
            if "noadd" in ex and l.startswith("v_add_f32"): return False
            if "nobar" in ex and l.startswith("s_barrier"): return False
            if "nodma" in ex and (l.startswith("buffer_load")): return False
            if "novm" in ex and l.startswith("s_waitcnt vmcnt"): return False
            if "nolg" in ex and l.startswith("s_waitcnt lgkm"): return False
            if "novalu" in ex and (l.startswith("v_exp") or l.startswith("v_add_f32") or l.startswith("v_cvt_pk")): return False
            return True
        return [l for l in out if keep(l)]

    def tile_ctl(tag, nvm=8, doK=True, doV=True):
        d = {}
        d[7] = [f"s_waitcnt vmcnt({nvm})", "s_barrier"]
        g = 8
        if doK:
            d.setdefault(8, []).append(f"s_or_b32 m0, {s(sR)}, {s(sWK)}")
            for j in range(4): d.setdefault(10 + 2 * j, []).append(ld(sKsrc, j))
            d.setdefault(17, []).append(f"s_add_u32 {s(sKsrc)}, {s(sKsrc)}, 16384")
        if doV:
            d.setdefault(17, []).append(f"s_add_u32 m0, {s(sX)}, {s(sWV)}")
            for j in range(4): d.setdefault(18 + 2 * j, []).append(ld(sVsrc, j))
            d.setdefault(25, []).append(f"s_add_u32 {s(sVsrc)}, {s(sVsrc)}, 16384")
        return d
    def check_ops(tag, two):
        if MSUM and not two: L = [f"v_cmp_lt_f32 vcc, {s(sThr)}, {v(LS)}"]
        else: L = [f"v_max_f32 {v(vT)}, {v(LA)}, {v(LB)}", f"v_cmp_lt_f32 vcc, {s(sThr)}, {v(vT)}"]
        L += [f"s_cbranch_vccnz L_{label}_rare_{tag}" if not ex else "s_nop 0", f"L_{label}_ret_{tag}:"]
        return L
    def adv_scalar():
        return {26: [f"s_add_u32 {s(sR)}, {s(sR)}, 16384", f"s_add_u32 {s(sTile)}, {s(sTile)}, 1"],
                27: [f"s_and_b32 {s(sR)}, {s(sR)}, 0xffff"],
                28: [f"s_xor_b32 {s(sX)}, {s(sR)}, 0x8000", f"v_add_u32 {v(vVc)}, {s(sR)}, {v(vL16V)}"]}
    def merge(*ds):
        o = {}
        for d in ds:
            for g, ls in d.items(): o.setdefault(g, []).extend(ls)
        return o
    P1HEAD = {1: [f"v_mov_b32 {v(vKc)}, {v(vKn)}", f"v_add_u32 {v(vKn)}, {s(sX)}, {v(vL16)}"]}
    P2HEAD = {1: [f"v_add_u32 {v(vKn)}, {s(sX)}, {v(vL16)}"], 12: [f"v_mov_b32 {v(vKc)}, {v(vKn)}"]}
    HYX = {12: [f"v_mov_b32 {v(vKc)}, {v(vKn)}"]}
    def advance(): return []
    def rare(tag, two):
        L = ["s_nop 7", "s_nop 7"]
        def scale_p(pb, al):
            o = []
            for i in range(8):
                o += [f"v_lshlrev_b32 {v(vT3)}, 16, {v(P[pb]+i)}", f"v_and_b32 {v(vT4)}, 0xffff0000, {v(P[pb]+i)}",
                      f"v_ldexp_f32 {v(vT3)}, {v(vT3)}, {v(al)}", f"v_ldexp_f32 {v(vT4)}, {v(vT4)}, {v(al)}", f"v_cvt_pk_bf16_f32 {v(P[pb]+i)}, {v(vT3)}, {v(vT4)}"]
            return o
        def kof(src_regs):
            o = [f"v_mov_b32 {v(vT)}, {v(src_regs[0])}"]
            for r in src_regs[1:]: o.append(f"v_add_f32 {v(vT)}, {v(vT)}, {v(r)}")
            o += [f"v_mov_b32 {v(vT2)}, {v(vT)}", "s_nop 1", f"v_permlane32_swap_b32 {v(vT)}, {v(vT2)}", "s_nop 1", f"v_add_f32 {v(vT)}, {v(vT)}, {v(vT2)}",
                  f"v_frexp_exp_i32_f32 {v(TMP)}, {v(vT)}", f"v_add_u32 {v(TMP)}, 0x{BIAS:x}, {v(TMP)}", f"v_max_i32 {v(TMP)}, 0, {v(TMP)}",
                  f"v_cvt_f32_i32 {v(TMP+2)}, {v(TMP)}", f"v_sub_u32 {v(TMP+1)}, 0, {v(TMP)}"]
            return o
        def scale_o(O):
            o = []
            for i in range(64):
                t = TMP + 4 + (i % 4)
                o += [f"v_accvgpr_read_b32 {v(t)}, {a(O+i)}", f"v_ldexp_f32 {v(t)}, {v(t)}, {v(TMP+1)}", f"v_accvgpr_write_b32 {a(O+i)}, {v(t)}"]
            return o
        def sub16(base): return [f"v_sub_f32 {v(base+i)}, {v(base+i)}, {v(TMP+2)}" for i in range(16)]
        if two:
            for q in range(2):
                L += kof([LA if q == 0 else LB])
                L += [f"v_ldexp_f32 {v(LA if q == 0 else LB)}, {v(LA if q == 0 else LB)}, {v(TMP+1)}"]
                L += scale_o(OL if q == 0 else OH) + scale_p(q, TMP + 1) + sub16(S[q]) + sub16(NM[q])
        else:
            if MSUM:
                L += [f"v_frexp_exp_i32_f32 {v(TMP)}, {v(LS)}", f"v_add_u32 {v(TMP)}, 0x{BIAS:x}, {v(TMP)}", f"v_max_i32 {v(TMP)}, 0, {v(TMP)}",
                      f"v_cvt_f32_i32 {v(TMP+2)}, {v(TMP)}", f"v_sub_u32 {v(TMP+1)}, 0, {v(TMP)}"]
                L += [f"v_ldexp_f32 {v(LS+i)}, {v(LS+i)}, {v(TMP+1)}" for i in range(4)]
            else:
                L += kof([LA, LB])
                L += [f"v_ldexp_f32 {v(LA)}, {v(LA)}, {v(TMP+1)}", f"v_ldexp_f32 {v(LB)}, {v(LB)}, {v(TMP+1)}"]
            L += scale_o(OH) + scale_p(0, TMP + 1) + scale_p(1, TMP + 1) + sub16(S[0]) + sub16(S[1]) + sub16(NM[1])
        L += ["s_nop 1", f"s_branch L_{label}_ret_{tag}"]
        return L
    rares = []

    I("s_waitcnt vmcnt(33)", "s_barrier")
    k.stamp(6)
    for j in range(8): I(rdK(j, vL16, 0))
    I(f"s_cmp_lg_u32 {s(sPair)}, 0", f"s_cbranch_scc1 L_{label}_nomask0")
    I(f"v_mov_b32 {v(TMP)}, 0")
    I(mask_ops(0, TMP, vD0))
    I("s_waitcnt lgkmcnt(0)")
    I(QK(0, QL, v(CM[0], 16)))
    I(f"s_branch L_{label}_m0done")
    I(f"L_{label}_nomask0:", f"v_add_f32 {v(vD0)}, 0x{f32bits(-32.0):08x}, {v(vD0)}", "s_waitcnt lgkmcnt(0)")
    I(QK(0, QL, "0"))
    I(f"L_{label}_m0done:", f"v_add_f32 {v(vD1)}, 0x{f32bits(-32.0):08x}, {v(vD1)}", "s_waitcnt vmcnt(25)")
    I(QK(1, QH, "0"))
    for j in range(8): I(rdK(j, vL16, 1))
    I("s_nop 7", "s_nop 7")
    for q in range(2):
        b = S[q]
        I(f"v_max3_f32 {v(vT)}, {v(b)}, {v(b+1)}, {v(b+2)}")
        for i in range(3, 15, 2): I(f"v_max3_f32 {v(vT)}, {v(vT)}, {v(b+i)}, {v(b+i+1)}")
        I(f"v_max_f32 {v(vT)}, {v(vT)}, {v(b+15)}", f"v_mov_b32 {v(vT2)}, {v(vT)}", "s_nop 1",
          f"v_permlane32_swap_b32 {v(vT)}, {v(vT2)}", "s_nop 1", f"v_max_f32 {v(vT)}, {v(vT)}, {v(vT2)}",
          f"v_add_f32 {v(vT)}, 0x{f32bits(float(BIAS)):08x}, {v(vT)}")
        for i in range(16): I(f"v_sub_f32 {v(NM[q]+i)}, 0, {v(vT)}")
        for i in range(16): I(f"v_sub_f32 {v(b+i)}, {v(b+i)}, {v(vT)}")
    I(sm_ea(0, LA), "s_nop 0", sm_cvt(0, 0), sm_cvt(0, 4), A1)
    I("s_waitcnt lgkmcnt(0)")
    k.stamp(1)
    I(f"s_lshl_b32 {s(sEnd)}, {s(sPair)}, 1", f"s_sub_u32 {s(sEnd)}, {s(sEnd)}, 1")
    I(f"s_cmp_lt_i32 {s(sEnd)}, 1", f"s_cbranch_scc1 L_{label}_p1m_enter")
    I(f"L_{label}_p1:")
    e = tile_ctl("p1"); e[8] = e.get(8, []) + check_ops("p1", True)
    b1 = build("P1", 0, extra=merge(e, P1HEAD)); b2 = build("P1", 1, extra=adv_scalar())
    I(b1, b2, advance())
    I(f"s_cmp_lt_i32 {s(sTile)}, {s(sEnd)}", f"s_cbranch_scc1 L_{label}_p1")
    rares.append(("p1", True))
    flat = lambda L: [l for l in L if not l.endswith(":") and not l.startswith("s_cbranch")]
    pro = [rdK(j, vL16, 1) for j in range(8)] + A1 + ["s_waitcnt lgkmcnt(0)"]
    check(pro + flat(b1 + b2 + advance()) * 2, "atta_p1"); gap_report(flat(b1 + b2 + advance()), "atta_p1")
    I(f"L_{label}_p1m_enter:")
    I(f"s_lshl_b32 {s(sT)}, {s(sTile)}, 6", f"v_cvt_f32_u32 {v(vT)}, {s(sT)}", f"v_sub_f32 {v(vD0)}, {v(vD0)}, {v(vT)}")
    I(mask_ops(0, NM[0], vD0))
    I(f"s_lshl_b32 {s(sEnd)}, {s(sPair)}, 1", f"s_add_u32 {s(sEnd)}, {s(sEnd)}, 1")
    I(f"L_{label}_p1m:")
    e = tile_ctl("p1m"); e[8] = e.get(8, []) + check_ops("p1m", True)
    b1 = build("P1", 0, masked=(True, False), prep=[(0, NM[0], vD0)], extra=merge(e, P1HEAD))
    b2 = build("P1", 1, masked=(True, False), prep=[(0, NM[0], vD0)], extra=adv_scalar())
    I(b1, b2, advance())
    I(f"s_cmp_lt_u32 {s(sTile)}, {s(sEnd)}", f"s_cbranch_scc1 L_{label}_p1m")
    rares.append(("p1m", True))
    check(pro + flat(b1 + b2 + advance()) * 2, "atta_p1m"); gap_report(flat(b1 + b2 + advance()), "atta_p1m")
    e = tile_ctl("p1l"); e[8] = e.get(8, []) + check_ops("p1lm", True)
    I(f"s_lshl_b32 {s(sT)}, {s(sTile)}, 6", f"s_add_u32 {s(sT)}, {s(sT)}, 32", f"v_cvt_f32_u32 {v(vT)}, {s(sT)}", f"v_sub_f32 {v(vD1)}, {v(vD1)}, {v(vT)}")
    b1 = build("P1", 0, masked=(True, False), extra=merge(e, P1HEAD))
    I(b1)
    rares.append(("p1lm", True))
    I(mask_ops(0, NM[1], vD1), mask_ops(1, NM[1], vD1))
    I(f"v_mov_b32 {v(LLOW)}, {v(LA)}", f"v_mov_b32 {v(LA)}, 0")
    b2 = build("HY", 1, masked=(True, True), extra=merge(HYX, adv_scalar()))
    I(b2, advance())
    if MSUM:
        I(f"v_mov_b32 {v(vT)}, {v(LB)}", f"v_mov_b32 {v(vT2)}, {v(LB)}", "s_nop 1", f"v_permlane32_swap_b32 {v(vT)}, {v(vT2)}", "s_nop 1")
        for i in range(4): I(f"v_add_f32 {v(LS+i)}, {v(vT)}, {v(vT2)}")
    check(pro + flat(b1) + flat(b2), "atta_hy")
    I(f"s_sub_u32 {s(sEnd)}, {s(sNT)}, 3")
    I(f"s_cmp_ge_u32 {s(sTile)}, {s(sEnd)}", f"s_cbranch_scc1 L_{label}_p2m_enter")
    I(f"L_{label}_p2:")
    e = tile_ctl("p2"); e[8] = e.get(8, []) + check_ops("p2", False)
    b1 = build("P2", 0, extra=merge(e, P2HEAD, adv_scalar()))
    I(b1, advance())
    I(f"s_cmp_lt_u32 {s(sTile)}, {s(sEnd)}", f"s_cbranch_scc1 L_{label}_p2")
    rares.append(("p2", False))
    check(pro + flat(b1 + advance()) * 3, "atta_p2"); gap_report(flat(b1 + advance()), "atta_p2")
    I(f"L_{label}_p2m_enter:")
    I(f"v_and_b32 {v(vT)}, 31, v0", f"v_lshrrev_b32 {v(vT2)}, 5, v0", f"v_lshlrev_b32 {v(vT2)}, 2, {v(vT2)}", f"v_sub_u32 {v(vT)}, {v(vT)}, {v(vT2)}",
      f"s_lshl_b32 {s(sT)}, {s(sQhi)}, 5", f"s_lshl_b32 {s(sT2)}, {s(sTile)}, 6", f"s_add_u32 {s(sT2)}, {s(sT2)}, 64", f"s_sub_i32 {s(sT)}, {s(sT)}, {s(sT2)}",
      f"v_add_u32 {v(vD1)}, {s(sT)}, {v(vT)}", f"v_cvt_f32_i32 {v(vD1)}, {v(vD1)}")
    I(f"s_sub_u32 {s(sEnd)}, {s(sNT)}, 1")
    I(f"L_{label}_p2m:")
    I(mask_ops(0, NM[1], vD1), mask_ops(1, NM[1], vD1))
    e = tile_ctl("p2m", nvm=4, doK=False); e[8] = e.get(8, []) + check_ops("p2m", False)
    b1 = build("P2", 0, masked=(True, True), extra=merge(e, P2HEAD, adv_scalar()))
    I(b1, advance())
    I(f"s_cmp_lt_u32 {s(sTile)}, {s(sEnd)}", f"s_cbranch_scc1 L_{label}_p2m")
    rares.append(("p2m", False))
    e = {7: ["s_waitcnt vmcnt(4)", "s_barrier"]}
    b1 = build("DR", 0, extra=e)
    I(b1)
    check(pro + flat(build("P2", 0)) + flat(b1), "atta_dr")
    k.stamp(2)
    I("s_nop 7", "s_nop 7")
    if MSUM: I(f"v_mul_f32 {v(LA)}, 0.5, {v(LS)}")
    else: I(f"v_add_f32 {v(LA)}, {v(LA)}, {v(LB)}")
    ZR, CK = S[0], S[1]
    def epilogue(with_check):
        if with_check:
            for i in range(4): I(f"v_mov_b32 {v(ZR+i)}, 0")
        first = True
        for (O, lreg, sq) in ((OL, LLOW, sQlo), (OH, LA, sQhi)):
            I(f"v_mov_b32 {v(vT)}, {v(lreg)}", f"v_mov_b32 {v(vT2)}, {v(lreg)}", "s_nop 1", f"v_permlane32_swap_b32 {v(vT)}, {v(vT2)}", "s_nop 1",
              f"v_add_f32 {v(vT)}, {v(vT)}, {v(vT2)}")
            if with_check:
                I(f"v_mul_f32 {v(vU)}, 0, {v(vT)}" if O == OL else f"v_fma_f32 {v(vU)}, {v(vT)}, 0, {v(vU)}")
            I(f"v_rcp_f32 {v(vT)}, {v(vT)}")
            I(f"s_lshl_b32 {s(sT)}, {s(sq)}, 18", f"s_lshl_b32 {s(sT2)}, {s(sHead)}, 13", f"s_add_u32 {s(sT)}, {s(sT)}, {s(sT2)}", f"s_add_u32 {s(sT)}, {s(sT)}, {LY.WS_CTX}",
              f"s_add_u32 {s(sT2)}, {s(sT)}, 4096")
            for f in range(8):
                base = O + (f >> 1) * 16 + (f & 1) * 8
                tb = TMP + (f % 2) * 12 if False else (KF + (f % 4) * 12)
                for i in range(8): I(f"v_accvgpr_read_b32 {v(tb+i)}, {a(base+i)}")
                for i in range(8): I(f"v_mul_f32 {v(tb+i)}, {v(vT)}, {v(tb+i)}")
                for i in range(4): I(f"v_cvt_pk_bf16_f32 {v(tb+8+i)}, {v(tb+2*i)}, {v(tb+2*i+1)}")
                I(f"buffer_store_dwordx4 {v(tb+8,4)}, {v(vL16)}, {s(SW,4)}, {s(sT if f < 4 else sT2)} offen offset:{(f%4)*1024}{STF}")
                if with_check:
                    I("s_nop 0", f"v_mfma_f32_32x32x16_bf16 {v(CK,16)}, {v(ZR,4)}, {v(tb+8,4)}, {'0' if first else v(CK,16)}")
                    first = False
    epilogue(True)
    I("s_nop 7", "s_nop 7")
    I(f"v_add_f32 {v(vU)}, {v(vU)}, {v(CK)}", "s_nop 0", f"v_cmp_u_f32 vcc, {v(vU)}, {v(vU)}", f"s_cbranch_vccnz L_{label}_slow" if not ex else "s_nop 0")
    if os.environ.get("STAMPS"):
        I("v_mov_b32 v250, s60", "v_mov_b32 v252, 0", "s_lshl_b32 s96, s2, 6", "s_add_u32 s96, s96, 40", f"s_add_u32 s96, s96, {LY.WS_STAMP}",
          f"buffer_store_dword v250, v252, {s(SW,4)}, s96 offen") if False else None
    I(f"L_{label}_tail:")
    k.stamp(7)
    relayout_finish(k, sWave, vL16, SW)
    k.stamp(3)
    k.stampval(5, "s60")
    I("s_endpgm")
    for tag, two in rares:
        I(f"L_{label}_rare_{tag}:")
        if os.environ.get("STAMPS"): I(f"s_add_u32 s60, s60, 1")
        I(rare(tag, two))
    I(f"L_{label}_slow:")
    k.stamp(4)
    sN, sKa, sVa = sEnd, sKsrc, sVsrc
    vM, vA, vMx, vDs = TMP + 24, TMP + 25, TMP + 26, TMP + 27
    for (O, Q, lreg, sq) in ((OL, QL, LLOW, sQlo), (OH, QH, LA, sQhi)):
        tg = "lo" if O == OL else "hi"
        for i in range(64): I(f"v_accvgpr_write_b32 {a(O+i)}, 0")
        I(f"v_mov_b32 {v(lreg)}, 0", f"v_mov_b32 {v(vM)}, 0xff7fffff")
        I(f"v_and_b32 {v(vT)}, 31, v0", f"v_lshrrev_b32 {v(vT2)}, 5, v0", f"v_lshlrev_b32 {v(vT2)}, 2, {v(vT2)}", f"v_sub_u32 {v(vT)}, {v(vT)}, {v(vT2)}",
          f"s_lshl_b32 {s(sT)}, {s(sq)}, 5", f"v_add_u32 {v(vDs)}, {s(sT)}, {v(vT)}", f"v_cvt_f32_i32 {v(vDs)}, {v(vDs)}")
        I(f"s_add_u32 {s(sN)}, {s(sq)}, 1", f"s_mov_b32 {s(sIt)}, 0")
        I(f"s_lshl_b32 {s(sKa)}, {s(sHead)}, 19", f"s_add_u32 {s(sVa)}, {s(sKa)}, {LY.WS_VA}")
        if LY.WS_KA: I(f"s_add_u32 {s(sKa)}, {s(sKa)}, {LY.WS_KA}")
        I(f"L_{label}_slow_{tg}:")
        I(f"s_add_u32 {s(sT)}, {s(sKa)}, 4096", f"s_add_u32 {s(sT2)}, {s(sVa)}, 4096")
        for j in range(8): I(f"buffer_load_dwordx4 {kf(j)}, {v(vL16)}, {s(SW,4)}, {s(sKa if j < 4 else sT)} offen offset:{(j%4)*1024}")
        for j in range(8): I(f"buffer_load_dwordx4 {vf(j)}, {v(vL16)}, {s(SW,4)}, {s(sVa if j < 4 else sT2)} offen offset:{(j%4)*1024}")
        I(f"v_mov_b32 {v(vA)}, 0")
        I(mask_ops(0, vA, vDs))
        I("s_waitcnt vmcnt(0)")
        I(QK(0, Q, v(CM[0], 16)), "s_nop 7", "s_nop 7")
        b = S[0]
        I(f"v_max3_f32 {v(vMx)}, {v(b)}, {v(b+1)}, {v(b+2)}")
        for i in range(3, 15, 2): I(f"v_max3_f32 {v(vMx)}, {v(vMx)}, {v(b+i)}, {v(b+i+1)}")
        I(f"v_max3_f32 {v(vMx)}, {v(vMx)}, {v(b+15)}, {v(vM)}", f"v_mov_b32 {v(vT2)}, {v(vMx)}", "s_nop 1",
          f"v_permlane32_swap_b32 {v(vMx)}, {v(vT2)}", "s_nop 1", f"v_max_f32 {v(vMx)}, {v(vMx)}, {v(vT2)}",
          f"v_sub_f32 {v(vA)}, {v(vM)}, {v(vMx)}", f"v_exp_f32 {v(vA)}, {v(vA)}", f"v_mov_b32 {v(vM)}, {v(vMx)}")
        for i in range(16): I(f"v_sub_f32 {v(b+i)}, {v(b+i)}, {v(vMx)}")
        for i in range(16): I(f"v_exp_f32 {v(b+i)}, {v(b+i)}")
        I(f"v_mul_f32 {v(lreg)}, {v(vA)}, {v(lreg)}")
        for i in range(16): I(f"v_add_f32 {v(lreg)}, {v(lreg)}, {v(b+i)}")
        for i in range(64):
            t = TMP + (i % 4)
            I(f"v_accvgpr_read_b32 {v(t)}, {a(O+i)}", f"v_mul_f32 {v(t)}, {v(vA)}, {v(t)}", f"v_accvgpr_write_b32 {a(O+i)}, {v(t)}")
        I(sm_cvt(0, 0), sm_cvt(0, 4), "s_nop 1", PV(0, O), "s_nop 7", "s_nop 7")
        I(f"s_add_u32 {s(sKa)}, {s(sKa)}, 8192", f"s_add_u32 {s(sVa)}, {s(sVa)}, 8192", f"s_add_u32 {s(sIt)}, {s(sIt)}, 1", f"s_cmp_lt_u32 {s(sIt)}, {s(sN)}", f"s_cbranch_scc1 L_{label}_slow_{tg}")
    epilogue(False)
    I(f"s_branch L_{label}_tail")
```

```python
from gen_common import *
from gen_attb import gen_attb, LDS_B
from gen_oproj import oproj_tile
from gen_relayout import relayout_wob
import os
LDS_M = LDS_B + 98304

def gen_mix():
    k = Kern("mix_kernel", nvgpr=168, accum=168); k.stamp_base = 131072
    I = k.I
    k.sv = (164, 166)
    I("s_cmp_ge_u32 s2, 256", "s_cbranch_scc1 L_mix_end")
    I("v_lshrrev_b32 v3, 6, v0", "s_nop 0", "v_readfirstlane_b32 s21, v3", "s_cmp_ge_u32 s21, 8", "s_cbranch_scc1 L_mix_O")
    k.stamp(0)
    I("s_lshr_b32 s3, s2, 3", "s_lshl_b32 s3, s3, 3", "s_add_u32 s3, s3, s21", "v_and_b32 v162, 63, v0", "v_mov_b32 v163, v0", "v_mov_b32 v0, v162")
    k.code_prefetch("mx", "mix_kernel", "L_end_mix_kernel", 8, 3, 8, 160, True)
    I("v_mov_b32 v0, v163")
    gen_attb(k, prefetch=bool(os.environ.get('MIXPF')))
    I("L_mix_O:", "s_cmp_ge_u32 s2, 192", "s_cbranch_scc1 L_mix_W")
    I("s_sub_u32 s21, s21, 8", "v_and_b32 v0, 63, v0")
    oproj_tile(k, "M", True, 3, barriers=[int(x) for x in os.environ.get('OBAR', '4,12,19,27,34,42,49,57,64').split(',')], wave_reg=21, lds_base=LDS_B, ACC=10, BUF=106, prio=int(os.environ.get("OPRIO", 0)))
    k.stampval(6, "s21") if False else None
    I("s_endpgm")
    I("L_mix_W:", "s_sub_u32 s21, s21, 8", "v_and_b32 v0, 63, v0", "s_sub_u32 s20, s2, 192", "s_lshl_b32 s20, s20, 2", "s_add_u32 s20, s20, s21")
    I("s_load_dwordx2 s[12:13], s[0:1], 88", "v_lshlrev_b32 v1, 4, v0", "s_waitcnt lgkmcnt(0)")
    k.srd(4, 12, LY.WS_END)
    relayout_wob(k, 20, 1, 4, 256)
    I("L_mix_end:", "s_endpgm")
    return k
```

```python
from gen_common import *
import struct, os
def f32bits(x): return struct.unpack("<I", struct.pack("<f", x))[0]
RB, PB = 0, 65536
LDS_P = 163840
OOB = 0xF0000000
STF = (' ' + os.environ['STF']) if os.environ.get('STF') else ''
STQ = ' ' + os.environ.get('STQ', 'sc1')
STAGES = []
kk = 0
for grp in range(4):
    STAGES += [("K", kk), ("K", kk + 1), ("B", 2 * grp), ("B", 2 * grp + 1)]; kk += 2
STAGES += [("K", 8), ("K", 9), ("B", 8)] + [("K", i) for i in range(10, 16)]
GQ = len(STAGES)
STAGES += [("Q", i) for i in range(9)]
GE = len(STAGES)
PITEMS = []
STAGE_P = []
for g_, (ph_, i_) in enumerate(STAGES):
    it = ("K", i_ >> 1) if ph_ == "K" else (("B", i_ >> 1) if ph_ == "B" else ("Q", i_))
    if it not in PITEMS: PITEMS.append(it)
    STAGE_P.append(PITEMS.index(it))
UE = len(PITEMS)
LAST_USER = [max(g_ for g_, u_ in enumerate(STAGE_P) if u_ == u) for u in range(UE)]
def ph(g): return STAGES[g][0]
def ix(g): return STAGES[g][1]

def csel(dst, x, y):
    return [f"s_mov_b32 {s(dst)}, {y}", f"s_cselect_b32 {s(dst)}, {x}, {s(dst)}"]

def gen_proj():
    k = Kern("proj_kernel", nvgpr=512, accum=256); k.sv = (38, 1)
    I = k.I
    SXKV, SWKV, SXQ, SWQ, SXB, SWB, SWS, SWOA, SWOB = 8, 12, 16, 20, 24, 28, 32, 36, 40
    (sWave, sT, sT2, sT3, sXcd, sJ, sIsV, sBt, sWm, sWn, sXkvB, sWkvB, sXqB, sWqB, sXbB, sWbB, sM1024, sM2048) = range(68, 86)
    sBsc = 57
    sQout, sCA, sNtB, sMtB, sF = 52, 53, 54, 55, 56
    sKVo = 44
    vXa, vXb, vW, vWB = 2, 4, 6, 8
    aXP, aXP2, aWR, aXR, aWP, aWP2, aXB, aWB, aWB2, vL16 = 9, 13, 17, 21, 25, 27, 29, 33, 35, 37
    vT, vT2 = 38, 39
    XF = [40, 56]; WF = [72, 88]; TT = 104; UU = 120
    BA = 128; BADR = 192; BONE = 224; BTMP = 232; PFV = 244; QA = 128
    I("s_cmp_ge_u32 s2, 256", "s_cbranch_scc1 L_pj_end")
    k.stamp(0)
    I("s_load_dwordx16 s[48:63], s[0:1], 0", "s_load_dwordx2 s[64:65], s[0:1], 64", "s_load_dwordx2 s[66:67], s[0:1], 88")
    I(f"v_lshrrev_b32 {v(vT)}, 6, v0", "v_and_b32 v0, 63, v0", "s_nop 0", f"v_readfirstlane_b32 {s(sWave)}, {v(vT)}")
    I(f"s_and_b32 {s(sXcd)}, s2, 7", f"s_lshr_b32 {s(sJ)}, s2, 3")
    I(f"s_lshl_b32 s3, {s(sJ)}, 2", f"s_add_u32 s3, s3, {s(sWave)}")
    k.code_prefetch("pj", "proj_kernel", "L_end_proj_kernel", 7, 3, 4, 250, True)
    I(f"s_lshl_b32 s3, s2, 2", f"s_add_u32 s3, s3, {s(sWave)}")
    k.code_prefetch("pj2", "atta_kernel", "L_end_oprojb_kernel", 10, 3, 4, 252, False)
    def xoff(dst, stride, par):
        I(f"v_lshrrev_b32 {v(vT)}, 4, v0", f"v_add_u32 {v(vT)}, {4*par}, {v(vT)}", f"v_and_b32 {v(vT2)}, 7, v0", f"v_xor_b32 {v(vT)}, {v(vT)}, {v(vT2)}",
          f"v_lshlrev_b32 {v(vT)}, 4, {v(vT)}", f"v_lshrrev_b32 {v(vT2)}, 3, v0", f"v_mul_u32_u24 {v(vT2)}, {stride}, {v(vT2)}", f"v_add_u32 {v(dst)}, {v(vT)}, {v(vT2)}")
    for par in range(2):
        xoff(vXa + par, 1024, par)
        I(f"v_lshrrev_b32 {v(vT)}, 5, v0", f"v_add_u32 {v(vT2)}, {2*par}, {v(vT)}", f"v_lshlrev_b32 {v(vT2)}, 2, {v(vT2)}", f"v_and_b32 {v(vW+par)}, 31, v0",
          f"v_xor_b32 {v(vW+par)}, {v(vW+par)}, {v(vT2)}", f"v_lshlrev_b32 {v(vW+par)}, 4, {v(vW+par)}", f"v_lshlrev_b32 {v(vT)}, 13, {v(vT)}", f"v_add_u32 {v(vW+par)}, {v(vW+par)}, {v(vT)}")
    I(f"s_lshl_b32 {s(sM1024)}, {s(sWave)}, 12", f"s_lshl_b32 {s(sM2048)}, {s(sWave)}, 13")
    sRh, sCq, sMtK, sNtK = 86, 87, 92, 93
    I(f"s_and_b32 {s(sRh)}, {s(sXcd)}, 1", f"s_lshr_b32 {s(sCq)}, {s(sXcd)}, 1")
    I(f"s_and_b32 {s(sMtK)}, {s(sJ)}, 3", f"s_lshl_b32 {s(sT)}, {s(sRh)}, 2", f"s_add_u32 {s(sMtK)}, {s(sMtK)}, {s(sT)}",
      f"s_lshr_b32 {s(sNtK)}, {s(sJ)}, 2", f"s_lshl_b32 {s(sT)}, {s(sCq)}, 3", f"s_add_u32 {s(sNtK)}, {s(sNtK)}, {s(sT)}",
      f"s_lshr_b32 {s(sIsV)}, {s(sNtK)}, 4", f"s_and_b32 {s(sNtK)}, {s(sNtK)}, 15")
    I(f"s_lshl_b32 {s(sXkvB)}, {s(sMtK)}, 18", f"s_lshl_b32 {s(sT)}, {s(sWave)}, 16", f"s_add_u32 {s(sXkvB)}, {s(sXkvB)}, {s(sT)}")
    I(f"s_lshl_b32 {s(sWkvB)}, {s(sWave)}, 16", f"s_lshl_b32 {s(sT)}, {s(sNtK)}, 9", f"s_add_u32 {s(sWkvB)}, {s(sWkvB)}, {s(sT)}")
    I("s_waitcnt lgkmcnt(0)")
    I(f"s_cmp_eq_u32 {s(sIsV)}, 0", f"s_cselect_b32 {s(SWKV)}, s54, s56", f"s_cselect_b32 {s(SWKV+1)}, s55, s57",
      f"s_mov_b32 {s(SWKV+2)}, {512*8192}", f"s_mov_b32 {s(SWKV+3)}, 0x00020000")
    k.srd(SXKV, 50, 2048 * 1024)
    def dma(vreg, srd, sbase, soff, ldsreg, ldsoff):
        return [f"s_add_u32 m0, {s(ldsreg)}, {ldsoff}", f"s_add_u32 {s(sT)}, {s(sbase)}, {soff}", f"buffer_load_dwordx4 {v(vreg)}, {s(srd,4)}, {s(sT)} offen lds"]
    def Ritem(g):
        slot = RB + (g % 4) * 16384
        if ph(g) == "B":
            return [dma(vXb + (j & 1), SXB, sXbB, ix(g) * 128 + j * 8 * 1152, sM1024, slot + j * 1024) for j in range(4)]
        if ph(g) == "K":
            return [dma(vW + (j & 1), SWKV, sWkvB, (32 * ix(g) + 2 * j) * 8192, sM1024, slot + j * 1024) for j in range(4)]
        return [dma(vXb + (j & 1), SXQ, sXqB, ix(g) * 128 + j * 8 * 1152, sM1024, slot + j * 1024) for j in range(4)]
    def Pitem(u):
        slot = PB + (u % 3) * 32768
        kind, i = PITEMS[u]
        if kind == "B":
            o = []
            for tt in (2 * i, 2 * i + 1):
                if tt < 9: o += [dma(vWB, SWB, sWbB, (64 * tt + 4 * j) * 3456, sM1024, slot + (tt & 1) * 16384 + j * 1024) for j in range(4)]
            return o
        if kind == "K":
            return [dma(vXa + (j & 1), SXKV, sXkvB, i * 128 + j * 8 * 1024, sM2048, slot + j * 1024) for j in range(8)]
        return [dma(vW + (j & 1), SWQ, sWqB, (64 * i + 2 * j) * 8192, sM2048, slot + j * 1024) for j in range(8)]
    vmlog = []
    def issue(order):
        for kind, idx in order:
            for d in (Ritem(idx) if kind == "R" else Pitem(idx)):
                I(d); vmlog.append((kind, idx))
    if not os.environ.get("NOCPF"): vmlog += [("E", 0), ("E", 0)]
    issue([("R", 0), ("P", 0), ("R", 1)])
    I(f"v_lshlrev_b32 {v(vL16)}, 4, v0")
    for par in range(2): xoff(vXb + par, 1152, par)
    I(f"v_lshrrev_b32 {v(vT)}, 4, v0", f"v_lshlrev_b32 {v(vT2)}, 2, {v(vT)}", f"v_and_b32 {v(vWB)}, 15, v0", f"v_xor_b32 {v(vWB)}, {v(vWB)}, {v(vT2)}",
      f"v_lshlrev_b32 {v(vWB)}, 4, {v(vWB)}", f"v_mul_u32_u24 {v(vT)}, 3456, {v(vT)}", f"v_add_u32 {v(vWB)}, {v(vWB)}, {v(vT)}")
    k.srd(SXB, 60, 2048 * 1152); k.srd(SWB, 62, 576 * 3456); k.srd(SXQ, 48, 2048 * 1152); k.srd(SWQ, 52, 576 * 8192)
    k.srd(SWS, 66, LY.WS_END); k.srd(SWOA, 58, 4096 * 1152); k.srd(SWOB, 64, 576 * 1152)
    I(f"s_lshr_b32 {s(sWm)}, {s(sWave)}, 1", f"s_and_b32 {s(sWn)}, {s(sWave)}, 1")
    sMt, sN0 = sT2, sT3
    I(f"s_lshl_b32 {s(sT)}, {s(sNtK)}, 1", f"s_add_u32 {s(sT)}, {s(sT)}, {s(sWn)}", f"s_lshl_b32 {s(sT)}, {s(sT)}, 19", f"s_lshl_b32 {s(sF)}, {s(sMtK)}, 3", f"s_lshl_b32 {s(sMt)}, {s(sWm)}, 2", f"s_add_u32 {s(sF)}, {s(sF)}, {s(sMt)}",
      f"s_lshl_b32 {s(sF)}, {s(sF)}, 13", f"s_add_u32 {s(sT)}, {s(sT)}, {s(sF)}")
    I(f"s_cmp_eq_u32 {s(sIsV)}, 0", csel(sF, LY.WS_KA, LY.WS_VA), csel(sMt, 2048, 1024), csel(sN0, 1024, 4096), f"s_add_u32 {s(sT)}, {s(sT)}, {s(sF)}")
    for tn in range(4):
        I(f"s_mul_i32 {s(sF)}, {s(sMt)}, {tn}", f"s_add_u32 {s(sKVo+2*tn)}, {s(sT)}, {s(sF)}", f"s_add_u32 {s(sKVo+2*tn+1)}, {s(sKVo+2*tn)}, {s(sN0)}")
    I(f"s_and_b32 {s(sMt)}, {s(sJ)}, 7", f"s_lshl_b32 {s(sT)}, {s(sRh)}, 3", f"s_add_u32 {s(sMt)}, {s(sMt)}, {s(sT)}",
      f"s_lshr_b32 {s(sN0)}, {s(sJ)}, 3", f"s_lshl_b32 {s(sT)}, {s(sCq)}, 2", f"s_add_u32 {s(sN0)}, {s(sN0)}, {s(sT)}")
    I(f"s_lshl_b32 {s(sT)}, {s(sMt)}, 2", f"s_add_u32 {s(sT)}, {s(sT)}, {s(sWave)}", f"s_mul_i32 {s(sXqB)}, {s(sT)}, {32*1152}")
    I(f"s_lshl_b32 {s(sWqB)}, {s(sWave)}, 17", f"s_lshl_b32 {s(sT)}, {s(sN0)}, 9", f"s_add_u32 {s(sWqB)}, {s(sWqB)}, {s(sT)}")
    I(f"s_lshl_b32 {s(sT)}, {s(sN0)}, 1", f"s_add_u32 {s(sT)}, {s(sT)}, {s(sWm)}", f"s_lshl_b32 {s(sT)}, {s(sT)}, 19", f"s_lshl_b32 {s(sF)}, {s(sMt)}, 15", f"s_add_u32 {s(sT)}, {s(sT)}, {s(sF)}",
      f"s_lshl_b32 {s(sF)}, {s(sWn)}, 12", f"s_add_u32 {s(sT)}, {s(sT)}, {s(sF)}", f"s_add_u32 {s(sQout)}, {s(sT)}, {LY.WS_QA}")
    I(f"s_mov_b32 {s(sCA)}, 0x{f32bits(LY.CA):08x}")
    I(f"s_and_b32 {s(sMtB)}, {s(sJ)}, 7", f"s_lshl_b32 {s(sT)}, {s(sRh)}, 3", f"s_add_u32 {s(sMtB)}, {s(sMtB)}, {s(sT)}")
    I(f"s_lshl_b32 {s(sNtB)}, {s(sCq)}, 2", f"s_cmp_eq_u32 {s(sCq)}, 3", f"s_cselect_b32 {s(sT)}, 1, 0", f"s_sub_u32 {s(sNtB)}, {s(sNtB)}, {s(sT)}",
      f"s_lshr_b32 {s(sT)}, {s(sJ)}, 3", f"s_add_u32 {s(sNtB)}, {s(sNtB)}, {s(sT)}")
    I(f"s_cmp_ge_u32 {s(sNtB)}, 9", f"s_cselect_b32 {s(sBt)}, 1, 0", f"s_cmp_ge_u32 {s(sCq)}, 2", f"s_cselect_b32 {s(sF)}, 3, 99", f"s_cmp_eq_u32 {s(sT)}, {s(sF)}", f"s_cselect_b32 {s(sBt)}, 2, {s(sBt)}")
    I(f"s_lshl_b32 {s(sT)}, {s(sMtB)}, 2", f"s_add_u32 {s(sT)}, {s(sT)}, {s(sWave)}", f"s_mul_i32 {s(sXbB)}, {s(sT)}, {32*1152}")
    I(f"s_mul_i32 {s(sWbB)}, {s(sWave)}, {16*3456}", f"s_lshl_b32 {s(sT)}, {s(sNtB)}, 8", f"s_add_u32 {s(sWbB)}, {s(sWbB)}, {s(sT)}")
    issue([("P", 2), ("P", 1), ("R", 2), ("R", 3)])
    if "samesrc" in os.environ.get("EXP", ""):
        I(f"s_mul_i32 {s(sXqB)}, {s(sWave)}, {32*1152}", f"s_lshl_b32 {s(sWqB)}, {s(sWave)}, 17", f"s_mul_i32 {s(sXbB)}, {s(sWave)}, {32*1152}", f"s_mul_i32 {s(sWbB)}, {s(sWave)}, {16*3456}")
    if "samedst" in os.environ.get("EXP", ""):
        for i in range(8): I(f"s_mov_b32 {s(sKVo+i)}, {i*8192*4}")
        I(f"s_mov_b32 {s(sQout)}, 0")
    I(f"v_and_b32 {v(vT)}, 31, v0", f"v_lshlrev_b32 {v(TT)}, 7, {v(vT)}", f"v_lshrrev_b32 {v(TT+1)}, 5, v0", f"v_lshrrev_b32 {v(TT+2)}, 1, v0", f"v_and_b32 {v(TT+2)}, 7, {v(TT+2)}")
    for ks in range(4):
        I(f"v_add_u32 {v(vT)}, {2*ks}, {v(TT+1)}", f"v_xor_b32 {v(vT)}, {v(vT)}, {v(TT+2)}", f"v_lshl_add_u32 {v(aXR+ks)}, {v(vT)}, 4, {v(TT)}")
        I(f"s_lshl_b32 {s(sT)}, {s(sWm)}, 14", f"s_add_u32 {s(sT)}, {s(sT)}, {PB}", f"v_add_u32 {v(aXP+ks)}, {s(sT)}, {v(aXR+ks)}", f"v_add_u32 {v(aXP2+ks)}, 65536, {v(aXP+ks)}")
        I(f"s_lshl_b32 {s(sT)}, {s(sWm)}, 13", f"v_add_u32 {v(aXB+ks)}, {s(sT)}, {v(aXR+ks)}")
    I(f"v_lshrrev_b32 {v(TT)}, 5, v0", f"v_lshlrev_b32 {v(TT)}, 3, {v(TT)}", f"v_and_b32 {v(TT+1)}, 15, v0", f"v_lshrrev_b32 {v(TT+1)}, 2, {v(TT+1)}",
      f"v_add_u32 {v(TT)}, {v(TT)}, {v(TT+1)}", f"v_lshlrev_b32 {v(TT+1)}, 2, {v(TT+1)}",
      f"v_lshrrev_b32 {v(TT+2)}, 4, v0", f"v_and_b32 {v(TT+2)}, 1, {v(TT+2)}", f"v_lshlrev_b32 {v(TT+2)}, 1, {v(TT+2)}",
      f"v_and_b32 {v(TT+3)}, 3, v0", f"v_lshrrev_b32 {v(TT+3)}, 1, {v(TT+3)}", f"v_add_u32 {v(TT+2)}, {v(TT+2)}, {v(TT+3)}",
      f"v_and_b32 {v(TT+3)}, 1, v0", f"v_lshlrev_b32 {v(TT+3)}, 3, {v(TT+3)}")
    def waddr(dst, cb_s_mul, cb_reg, cb_const, rowshift, base):
        I(f"s_mul_i32 {s(sT)}, {s(cb_reg)}, {cb_s_mul}", f"s_add_u32 {s(sT)}, {s(sT)}, {cb_const}", f"v_xor_b32 {v(vT)}, {s(sT)}, {v(TT+1)}", f"v_add_u32 {v(vT)}, {v(vT)}, {v(TT+2)}",
          f"v_lshl_add_u32 {v(vT)}, {v(vT)}, 4, {v(TT+3)}", f"v_lshl_add_u32 {v(dst)}, {v(TT)}, {rowshift}, {v(vT)}")
        if base: I(f"v_add_u32 {v(dst)}, {base}, {v(dst)}")
    for tn in range(2):
        waddr(aWB + tn, 8, sWn, 4 * tn, 8, PB); I(f"v_add_u32 {v(aWB2+tn)}, 65536, {v(aWB+tn)}")
    for tn in range(4): waddr(aWR + tn, 16, sWn, 4 * tn, 9, RB)
    for tn in range(2):
        waddr(aWP + tn, 8, sWave, 4 * tn, 9, PB); I(f"v_add_u32 {v(aWP2+tn)}, 65536, {v(aWP+tn)}")
    for i in range(34): I(f"v_mov_b32 {v(BADR+i)}, 0x{OOB:08x}") if False else None
    addr_ops = {"QK": b_addr_ops("QK", locals()), "V": b_addr_ops("V", locals())}
    pf = []
    sA_, sB_ = 98, 99
    pf += [f"s_lshl_b32 {s(sA_)}, s2, 2", f"s_add_u32 {s(sA_)}, {s(sA_)}, {s(sWave)}"]
    for i, (srd, nlines) in enumerate(((SXB, 18432), (SWB, 15552), (SXQ, 18432), (SWQ, 36864), (SWOA, 36864), (SWOB, 5184))):
        c = -(-nlines // 1024)
        pf += [f"s_mul_i32 {s(sB_)}, {s(sA_)}, {c}", f"v_add_u32 {v(PFV+i)}, {s(sB_)}, v0", f"v_lshlrev_b32 {v(PFV+i)}, 7, {v(PFV+i)}", f"v_mov_b32 {v(PFV+7)}, 0x{OOB:08x}",
               (f"v_cmp_gt_u32 vcc, {c}, v0", "s_nop 1", f"v_cndmask_b32 {v(PFV+i)}, {v(PFV+7)}, {v(PFV+i)}, vcc"),
               f"buffer_load_dword {v(PFV+8)}, {v(PFV+i)}, {s(srd,4)}, 0 offen"]
    if os.environ.get("NOPF"): pf = []

    def xf(b, t): return v(XF[b] + 4 * t, 4)
    def wf(b, t): return v(WF[b] + 4 * t, 4)
    def wf2(b, t, rd): return v(WF[b] + 4 * t + 2 * rd, 2)
    def stage_p(g): return STAGE_P[g]
    def last_user(u): return LAST_USER[u]
    def nks(g): return 2 if ph(g) == "K" else 4
    def reads(g, ks, b):
        L = []
        sl = stage_p(g) % 3
        if ph(g) == "B":
            for tm in range(2): L.append(f"ds_read_b128 {xf(b,tm)}, {v(aXB+ks)} offset:{(g%4)*16384 + tm*4096}")
            for tn in range(2):
                base, off = (aWB, sl * 32768) if sl < 2 else (aWB2, 0)
                for rd in range(2): L.append(f"ds_read_b64_tr_b16 {wf2(b,tn,rd)}, {v(base+tn)} offset:{off + (ix(g) & 1) * 16384 + ks*4096 + rd*1024}")
        elif ph(g) == "K":
            kk = 2 * (ix(g) & 1) + ks
            for tm in range(4):
                base, off = (aXP, sl * 32768) if sl < 2 else (aXP2, 0)
                L.append(f"ds_read_b128 {xf(b,tm)}, {v(base+kk)} offset:{off + tm*4096}")
            for tn in range(4):
                for rd in range(2): L.append(f"ds_read_b64_tr_b16 {wf2(b,tn,rd)}, {v(aWR+tn)} offset:{(g%4)*16384 + ks*8192 + rd*2048}")
        else:
            for tm in range(4): L.append(f"ds_read_b128 {xf(b,tm)}, {v(aXR+ks)} offset:{(g%4)*16384 + tm*4096}")
            for tn in range(2):
                base, off = (aWP, sl * 32768) if sl < 2 else (aWP2, 0)
                for rd in range(2): L.append(f"ds_read_b64_tr_b16 {wf2(b,tn,rd)}, {v(base+tn)} offset:{off + ks*8192 + rd*2048}")
        return L
    def mfmas(g, ks, b, var):
        first = ix(g) == 0 and ks == 0
        L = []
        if ph(g) == "B":
            for tm in range(2):
                for tn in range(2):
                    ac = v(BA + (tm * 2 + tn) * 16, 16)
                    A, B = (wf(b, tn), xf(b, tm)) if var[1] == "QK" else (xf(b, tm), wf(b, tn))
                    L.append(f"v_mfma_f32_32x32x16_bf16 {ac}, {A}, {B}, {'0' if first else ac}")
        elif ph(g) == "K":
            for tm in range(4):
                for tn in range(4):
                    ac = a((tm * 4 + tn) * 16, 16)
                    A, B = (wf(b, tn), xf(b, tm)) if var[0] == "K" else (xf(b, tm), wf(b, tn))
                    L.append(f"v_mfma_f32_32x32x16_bf16 {ac}, {A}, {B}, {'0' if first else ac}")
        else:
            for tm in range(4):
                for tn in range(2):
                    ac = v(QA + (tm * 2 + tn) * 16, 16)
                    L.append(f"v_mfma_f32_32x32x16_bf16 {ac}, {wf(b,tn)}, {xf(b,tm)}, {'0' if first else ac}")
        return L
    def kv_epi():
        L = []
        for tm in range(4):
            for tn in range(4):
                base = (tm * 4 + tn) * 16
                for i in range(16): L.append(f"v_accvgpr_read_b32 {v(TT+i)}, {a(base+i)}")
                for i in range(8): L.append(f"v_cvt_pk_bf16_f32 {v(UU+i)}, {v(TT+2*i)}, {v(TT+2*i+1)}")
                for f in range(2):
                    L.append((f"s_add_u32 {s(sT2)}, {s(sKVo+2*tn+f)}, {tm*8192}", f"buffer_store_dwordx4 {v(UU+4*f,4)}, {v(vL16)}, {s(SWS,4)}, {s(sT2)} offen{STF}"))
        return L
    def q_epi():
        L = []
        for tm in range(4):
            for tn in range(2):
                base = QA + (tm * 2 + tn) * 16
                for i in range(16): L.append(f"v_mul_f32 {v(base+i)}, {s(sCA)}, {v(base+i)}")
                for i in range(8): L.append(f"v_cvt_pk_bf16_f32 {v(base+i)}, {v(base+2*i)}, {v(base+2*i+1)}")
                if tn == 0: L.append(f"s_add_u32 {s(sT2)}, {s(sQout)}, {tm*8192}")
                for f in range(2):
                    L.append(f"buffer_store_dwordx4 {v(base+4*f,4)}, {v(vL16)}, {s(SWS,4)}, {s(sT2)} offen offset:{(2*tn+f)*1024}{STQ}")
        return L
    def b_epi():
        L = []; n = 0
        for tm in range(2):
            for tn in range(2):
                base = BA + (tm * 2 + tn) * 16
                for p in range(8):
                    r = BTMP + (n % 8); n += 1
                    L += [f"v_mul_f32 {v(base+2*p)}, {s(sBsc)}, {v(base+2*p)}", f"v_mul_f32 {v(base+2*p+1)}, {s(sBsc)}, {v(base+2*p+1)}",
                          f"v_cvt_pk_bf16_f32 {v(r)}, {v(base+2*p)}, {v(base+2*p+1)}", f"buffer_store_dword {v(r)}, {v(BADR + (tm*2+tn)*8 + p)}, {s(SWS,4)}, 0 offen"]
        for st in range(4):
            for tn in range(2):
                L.append(f"buffer_store_dwordx4 {v(BONE+2,4)}, {v(BADR+32+tn)}, {s(SWS,4)}, {s(4+st)} offen")
        return L

    def run_segment(g0, g1, var, epi_ops, vml, carry, epi_lo=0, epi_lim=None, epi2=None, epi2_lo=0):
        lastg = GE - 1
        backbone = []; ctl = {}; rd_streams = []; bars = []
        for g in range(g0, g1):
            n = nks(g)
            for ks in range(n):
                m = mfmas(g, ks, ks & 1, var)
                start = len(backbone); backbone += m; L = len(m)
                if ks < n - 1: nxt = reads(g, ks + 1, (ks + 1) & 1)
                elif g + 1 <= lastg: nxt = reads(g + 1, 0, 0)
                else: nxt = []
                hi = start + L - (3 if L >= 8 else 2)
                if nxt: rd_streams.append([(r, start, hi) for r in nxt])
                if ks == n - 2: ctl[start + L - 1] = ("BAR", g); bars.append((start + L - 1, g))
                else: ctl[start + L - 1] = "W"
        n = len(backbone)
        dma_stream = []
        nextbar = lambda x: min([bg for bg, _ in bars if bg > x], default=n - 1)
        if carry: dma_stream += [((tag, d), 0, max(0, nextbar(-1) - 1)) for tag, d in carry]
        carry_out = []
        for bg, g in bars:
            items = []
            if g + 4 <= lastg: items += [(("R", g + 4), d) for d in Ritem(g + 4)]
            u = stage_p(g)
            if last_user(u) == g and u + 3 < UE: items += [(("P", u + 3), d) for d in Pitem(u + 3)]
            nb = [x for x, _ in bars if x > bg]
            if nb: dma_stream += [(it, bg + 1, nb[0] - 1) for it in items]
            else:
                room = (n - 1 - bg) // 2
                take = min(len(items), room) if g1 <= lastg else len(items)
                dma_stream += [(it, bg + 1, n - 1) for it in items[:take]]
                carry_out = items[take:]
        streams = [[(tuple(d), e, l) for (tag, d), e, l in dma_stream]] if dma_stream else [[]]
        streams += rd_streams
        if epi_ops: streams.append([(o, epi_lo, n - 1 if epi_lim is None else epi_lim) for o in epi_ops])
        if epi2: streams.append([(o, epi2_lo, n - 1) for o in epi2])
        base = [0] * n
        for gp, c in ctl.items(): base[gp] += 8 if c != "W" else 4
        asg, load = anneal(n, base, streams)
        slots = {gp: [] for gp in range(n)}
        for si in list(range(1, len(streams))) + [0]:
            for (op, e, l), gp, idx in zip(streams[si], asg[si], range(len(streams[si]))):
                slots[gp].append((op, dma_stream[idx][0][0] if si == 0 else None))
        out = []
        for gi in range(n):
            out.append(backbone[gi])
            for op, tag in slots[gi]:
                ls = list(op) if isinstance(op, tuple) else [op]
                out += ls
                if tag is not None: vml.append(tag)
                else:
                    for l in ls:
                        if l.startswith("buffer_"): vml.append(("E", 0))
            c = ctl.get(gi)
            if c == "W": out.append("s_waitcnt lgkmcnt(0)")
            elif c is not None:
                g = c[1]
                need = [("R", g + 1), ("P", stage_p(g + 1))] if g + 1 <= lastg else []
                if need:
                    assert all(x in vml for x in need), (g, need)
                    idx = max(i for i, tg in enumerate(vml) if tg in need)
                    out.append(f"s_waitcnt vmcnt({min(len(vml) - 1 - idx, 63)}) lgkmcnt(0)")
                else: out.append("s_waitcnt lgkmcnt(0)")
                out.append("s_barrier")
        ex = os.environ.get("EXP", "")
        def keep(l):
            if "nolds" in ex and l.startswith("ds_read"): return False
            if "nomfma" in ex and l.startswith("v_mfma"): return False
            if "nodma" in ex and l.startswith("buffer_load"): return False
            if "nost" in ex and l.startswith("buffer_store"): return False
            if "nobst" in ex and l.startswith("buffer_store_dword "): return False
            if "nokst" in ex and l.startswith("buffer_store_dwordx4") and "v[12" in l: return False
            return True
        if "novm" in ex: out = [("s_waitcnt lgkmcnt(0)" if l.startswith("s_waitcnt vmcnt") else l) for l in out]
        if ex: out = [l for l in out if keep(l)]
        if os.environ.get("VERB"): print(f"seg {g0}-{g1} {var}: loads", load[:96])
        return out, carry_out

    nafter = len(vmlog) - 1 - max(i for i, tg in enumerate(vmlog) if tg in (("R", 0), ("P", 0)))
    I(f"s_waitcnt vmcnt({nafter})", "s_barrier")
    vml = list(vmlog)
    k.stamp(1)
    I(reads(0, 0, 0), "s_waitcnt lgkmcnt(0)")
    gB = max(g for g in range(GQ) if ph(g) == "B") + 1
    I(f"s_lshl_b32 {s(sT)}, {s(sIsV)}, 1", f"s_min_u32 {s(sT2)}, {s(sBt)}, 1", f"s_add_u32 {s(sT)}, {s(sT)}, {s(sT2)}")
    I(f"s_cmp_eq_u32 {s(sT)}, 1", "s_cbranch_scc1 L_pj_c1", f"s_cmp_eq_u32 {s(sT)}, 2", "s_cbranch_scc1 L_pj_c2", f"s_cmp_eq_u32 {s(sT)}, 3", "s_cbranch_scc1 L_pj_c3")
    segs = {}
    for ci, var in enumerate((("K", "QK"), ("K", "V"), ("V", "QK"), ("V", "V"))):
        if ci: I(f"L_pj_c{ci}:")
        vm1 = list(vml)
        sg, c1 = run_segment(0, gB, var, pf, vm1, [], epi_lo=32, epi_lim=200, epi2=addr_ops[var[1]], epi2_lo=8)
        I(sg)
        I(f"s_branch L_pj_{var[0]}2")
        segs[var] = sg
    k2 = {}
    be = b_epi()
    for kv in ("K", "V"):
        I(f"L_pj_{kv}2:")
        if kv == "K": k.stamp(2)
        vm2 = list(vm1)
        sg, c2 = run_segment(gB, GQ, (kv, "V"), be, vm2, c1, epi_lo=2, epi_lim=185)
        I(sg)
        if kv == "K": I("s_branch L_pj_Q")
        k2[kv] = sg
    I("L_pj_Q:")
    k.stamp(3)
    segQ, _ = run_segment(GQ, GE, ("K", "V"), kv_epi(), vm2, c2, epi_lo=4)
    I(segQ)
    k.stamp(4)
    I("s_nop 7", "s_nop 7"); I(q_epi())
    k.stamp(5)
    I("L_pj_end:", "s_endpgm")
    flat = lambda L: [l for l in L if not l.endswith(":") and not l.startswith("s_cbranch")]
    pre = reads(0, 0, 0) + ["s_waitcnt lgkmcnt(0)"]
    check(pre + flat(segs[("K", "QK")]) + flat(k2["K"]) + flat(segQ) + ["s_nop 7", "s_nop 7"] + q_epi(), "proj_K_QK")
    check(pre + flat(segs[("V", "V")]) + flat(k2["V"]) + flat(segQ), "proj_V_V")
    return k

def b_addr_ops(var, L):
    sWm, sWn, sNtB, sMtB, sBt, sBsc = (L[x] for x in ("sWm", "sWn", "sNtB", "sMtB", "sBt", "sBsc"))
    TT, UU, BADR, BONE, BTMP = L["TT"], L["UU"], L["BADR"], L["BONE"], L["BTMP"]
    sa, sb, sc, sd, se, sf = 92, 93, 94, 95, 96, 97
    va, vb = TT + 14, TT + 15
    O = []
    O += [f"v_mov_b32 {v(BONE+2+i)}, 0x3f803f80" for i in range(4)]
    if var == "QK":
        O += [f"s_mov_b32 {s(4+st)}, 0" for st in range(4)]
        O += [f"v_mov_b32 {v(BADR+32)}, 0x{OOB:08x}", f"v_mov_b32 {v(BADR+33)}, 0x{OOB:08x}"]
        vTab, vMain, vLeft, vIdx = TT + 8, TT + 9, TT + 11, TT + 13
        sIsK, sC0 = se, sf
        O += [f"s_lshl_b32 {s(sC0)}, {s(sNtB)}, 7", f"s_lshl_b32 {s(sa)}, {s(sWn)}, 6", f"s_add_u32 {s(sC0)}, {s(sC0)}, {s(sa)}"]
        O += [tuple([f"s_cmp_ge_u32 {s(sC0)}, 576", f"s_cselect_b32 {s(sIsK)}, 1, 0"] + csel(sBsc, "0x3f800000", f"0x{f32bits(LY.CB):08x}") + [f"s_cselect_b32 {s(sa)}, 576, 0"]),
              f"s_sub_u32 {s(sC0)}, {s(sC0)}, {s(sa)}"]
        O += [f"v_and_b32 {v(va)}, 31, v0", f"v_lshlrev_b32 {v(vb)}, 1, {v(va)}", f"v_add_u32 {v(vb)}, {s(sC0)}, {v(vb)}",
              f"v_mul_u32_u24 {v(TT)}, 3641, {v(vb)}", f"v_lshrrev_b32 {v(TT)}, 16, {v(TT)}",
              f"v_mul_u32_u24 {v(TT+1)}, 18, {v(TT)}", f"v_sub_u32 {v(TT+1)}, {v(vb)}, {v(TT+1)}",
              f"v_lshrrev_b32 {v(TT+2)}, 2, {v(TT+1)}", f"v_and_b32 {v(TT+2)}, 1, {v(TT+2)}", f"v_lshlrev_b32 {v(TT+2)}, 9, {v(TT+2)}",
              f"v_and_b32 {v(TT+3)}, 3, {v(TT+1)}", f"v_lshrrev_b32 {v(TT+3)}, 1, {v(TT+3)}", f"v_lshrrev_b32 {v(TT+4)}, 3, {v(TT+1)}", f"v_lshl_add_u32 {v(TT+3)}, {v(TT+4)}, 1, {v(TT+3)}",
              f"v_lshl_add_u32 {v(TT+2)}, {v(TT+3)}, 2, {v(TT+2)}"]
        O += [tuple([f"s_cmp_eq_u32 {s(sIsK)}, 0"] + csel(sa, 65536, LY.HEADB) + csel(sb, 8192, LY.HEADB))]
        O += [f"v_mul_lo_u32 {v(TT+3)}, {v(TT)}, {s(sa)}", f"v_add_u32 {v(TT+2)}, {v(TT+2)}, {v(TT+3)}",
              f"v_mul_lo_u32 {v(TT+3)}, {v(TT)}, {s(sb)}", f"v_or_b32 {v(TT+3)}, 0x80000000, {v(TT+3)}",
              (f"v_cmp_eq_u32 vcc, 16, {v(TT+1)}", "s_nop 1", f"v_cndmask_b32 {v(vTab)}, {v(TT+2)}, {v(TT+3)}, vcc")]
        for tm in range(2):
            O += [f"s_lshl_b32 {s(sa)}, {s(sMtB)}, 2", f"s_lshl_b32 {s(sb)}, {s(sWm)}, 1", f"s_add_u32 {s(sa)}, {s(sa)}, {s(sb)}", f"s_add_u32 {s(sa)}, {s(sa)}, {tm}"]
            O += [f"s_lshr_b32 {s(sd)}, {s(sa)}, 3", f"s_mul_i32 {s(sd)}, {s(sd)}, {LY.CHB}", f"s_add_u32 {s(sd)}, {s(sd)}, {LY.WS_KVB}",
                  f"s_and_b32 {s(sb)}, {s(sa)}, 7", f"s_lshl_b32 {s(sb)}, {s(sb)}, 10", f"s_add_u32 {s(sb)}, {s(sb)}, {s(sd)}",
                  f"s_and_b32 {s(sc)}, {s(sa)}, 4", f"s_lshl_b32 {s(sc)}, {s(sc)}, 7", f"s_add_u32 {s(sd)}, {s(sd)}, {s(sc)}", f"s_add_u32 {s(sd)}, {s(sd)}, 8192",
                  f"s_and_b32 {s(sc)}, {s(sa)}, 3", f"s_lshl_b32 {s(sc)}, {s(sc)}, 2", f"s_add_u32 {s(sd)}, {s(sd)}, {s(sc)}",
                  f"s_lshl_b32 {s(sc)}, {s(sa)}, 10", f"s_add_u32 {s(sc)}, {s(sc)}, {LY.WS_QB0}",
                  f"s_lshl_b32 {s(sa)}, {s(sa)}, 7", f"s_add_u32 {s(sa)}, {s(sa)}, {LY.WS_QB1}",
                  (f"s_cmp_eq_u32 {s(sIsK)}, 0", f"s_cselect_b32 {s(sb)}, {s(sc)}, {s(sb)}", f"s_cselect_b32 {s(sd)}, {s(sa)}, {s(sd)}", f"s_cselect_b32 {s(sa)}, 2, 4"),
                  f"v_and_b32 {v(va)}, 31, v0", f"v_lshlrev_b32 {v(vMain+tm)}, 4, {v(va)}", f"v_add_u32 {v(vMain+tm)}, {s(sb)}, {v(vMain+tm)}",
                  f"v_lshlrev_b32 {v(vLeft+tm)}, {s(sa)}, {v(va)}", f"v_add_u32 {v(vLeft+tm)}, {s(sd)}, {v(vLeft+tm)}"]
        O += [f"v_lshrrev_b32 {v(vIdx)}, 5, v0", f"v_lshlrev_b32 {v(vIdx)}, 3, {v(vIdx)}"]
        G = [UU + i for i in range(8)] + [BTMP + i for i in range(8)]
        for tn in range(2):
            for p in range(8):
                i0 = 16 * tn + (p & 1) + 4 * (p >> 1)
                O += [f"v_add_u32 {v(va)}, {i0*4}, {v(vIdx)}", f"ds_bpermute_b32 {v(G[tn*8+p])}, {v(va)}, {v(vTab)}"]
        O += ["s_waitcnt lgkmcnt(0)"]
        for tn in range(2):
            for p in range(8):
                g = G[tn * 8 + p]
                d0, d1 = BADR + tn * 8 + p, BADR + (2 + tn) * 8 + p
                O += [(f"v_cmp_gt_i32 vcc, 0, {v(g)}", f"v_and_b32 {v(g)}, 0x7fffffff, {v(g)}", "s_nop 0",
                       f"v_cndmask_b32 {v(d0)}, {v(vMain)}, {v(vLeft)}, vcc", f"v_cndmask_b32 {v(d1)}, {v(vMain+1)}, {v(vLeft+1)}, vcc"),
                      f"v_add_u32 {v(d0)}, {v(d0)}, {v(g)}", f"v_add_u32 {v(d1)}, {v(d1)}, {v(g)}"]
    else:
        O += [f"s_mov_b32 {s(sBsc)}, 0x3f800000"]
        for tm in range(2):
            for f in range(2):
                O += [f"s_lshl_b32 {s(sa)}, {s(sMtB)}, 3", f"s_lshl_b32 {s(sb)}, {s(sWm)}, 2", f"s_add_u32 {s(sa)}, {s(sa)}, {s(sb)}", f"s_add_u32 {s(sa)}, {s(sa)}, {2*tm+f}",
                      f"s_lshr_b32 {s(sb)}, {s(sa)}, 4", f"s_mul_i32 {s(sb)}, {s(sb)}, {LY.CHB}", f"s_and_b32 {s(sa)}, {s(sa)}, 15", f"s_mul_i32 {s(sa)}, {s(sa)}, 608",
                      f"s_add_u32 {s(sa)}, {s(sa)}, {s(sb)}", f"s_add_u32 {s(4 + 2*tm + f)}, {s(sa)}, {LY.WS_KVB + 9216}"]
        for tn in range(2):
            O += [f"s_lshl_b32 {s(sa)}, {s(sNtB)}, 7", f"s_lshl_b32 {s(sb)}, {s(sWn)}, 6", f"s_add_u32 {s(sa)}, {s(sa)}, {s(sb)}", f"s_add_u32 {s(sa)}, {s(sa)}, {32*tn}", f"s_sub_u32 {s(sa)}, {s(sa)}, 1152",
                  (f"s_cmp_eq_u32 {s(sBt)}, 2", f"s_cselect_b32 {s(sa)}, 4096, {s(sa)}"),
                  f"v_and_b32 {v(va)}, 31, v0", f"v_add_u32 {v(va)}, {s(sa)}, {v(va)}",
                  f"v_mul_u32_u24 {v(vb)}, 3641, {v(va)}", f"v_lshrrev_b32 {v(vb)}, 16, {v(vb)}",
                  f"v_mul_u32_u24 {v(TT)}, 18, {v(vb)}", f"v_sub_u32 {v(TT)}, {v(va)}, {v(TT)}",
                  f"s_mov_b32 {s(sb)}, {LY.HEADB}", f"v_mul_lo_u32 {v(vb)}, {v(vb)}, {s(sb)}", f"v_lshl_add_u32 {v(vb)}, {v(TT)}, 4, {v(vb)}",
                  f"v_lshrrev_b32 {v(TT+1)}, 5, v0", f"v_mul_u32_u24 {v(TT+1)}, 304, {v(TT+1)}", f"v_add_u32 {v(vb)}, {v(vb)}, {v(TT+1)}",
                  f"v_mov_b32 {v(TT+2)}, 0x{OOB:08x}",
                  (f"v_cmp_gt_u32 vcc, 576, {v(va)}", "s_nop 1", f"v_cndmask_b32 {v(TT+3)}, {v(TT+2)}, {v(vb)}, vcc"),
                  f"v_add_u32 {v(vb)}, 16, {v(TT+3)}",
                  (f"v_cmp_eq_u32 vcc, 17, {v(TT)}", "s_nop 1", f"v_cndmask_b32 {v(BADR+32+tn)}, {v(TT+2)}, {v(vb)}, vcc")]
            for tm in range(2):
                for p in range(8):
                    d = BADR + (tm * 2 + tn) * 8 + p
                    O += [f"s_add_u32 {s(sa)}, {s(4 + 2*tm + (p >> 2))}, {(p & 3) * 4}", f"v_add_u32 {v(d)}, {s(sa)}, {v(TT+3)}"]
    return O
```

```python
from gen_common import *
SA, SB, SWS2 = 36, 40, 44
sFr, sKs, sNtr, sA, sA2, sDst, sT, sT2 = 48, 49, 50, 51, 52, 53, 54, 55

WO_LDS = 131072
def relayout_issue(k, sWave, vL16):
    I = k.I
    I(f"s_mul_i32 {s(sA)}, s2, 18432", f"s_lshl_b32 {s(sA2)}, {s(sWave)}, 10", f"s_add_u32 {s(sA)}, {s(sA)}, {s(sA2)}", f"s_add_u32 {s(sA2)}, {s(sA2)}, {WO_LDS}")
    k.srd(SA, 56, 4096 * 1152)
    for j in range(5):
        I(f"s_add_u32 m0, {s(sA2)}, {j*4096}", f"s_add_u32 {s(sT)}, {s(sA)}, {j*4096}", f"buffer_load_dwordx4 {v(vL16)}, {s(SA,4)}, {s(sT)} offen lds")

def relayout_finish(k, sWave, vL16, SW):
    I = k.I
    vB = 16
    I(f"v_lshrrev_b32 {v(vB)}, 5, v0", f"v_lshlrev_b32 {v(vB)}, 2, {v(vB)}", f"v_and_b32 {v(vB+1)}, 15, v0", f"v_lshrrev_b32 {v(vB+1)}, 2, {v(vB+1)}", f"v_add_u32 {v(vB)}, {v(vB)}, {v(vB+1)}",
      f"v_mul_u32_u24 {v(vB)}, 1152, {v(vB)}", f"v_lshrrev_b32 {v(vB+1)}, 4, v0", f"v_and_b32 {v(vB+1)}, 1, {v(vB+1)}", f"v_lshl_add_u32 {v(vB)}, {v(vB+1)}, 5, {v(vB)}",
      f"v_and_b32 {v(vB+1)}, 3, v0", f"v_lshl_add_u32 {v(vB)}, {v(vB+1)}, 3, {v(vB)}",
      f"s_lshl_b32 {s(sT)}, {s(sWave)}, 6", f"s_add_u32 {s(sT)}, {s(sT)}, {WO_LDS}", f"v_add_u32 {v(vB)}, {s(sT)}, {v(vB)}")
    I(f"s_mul_i32 {s(sDst)}, s2, 18432", f"s_lshl_b32 {s(sT)}, {s(sWave)}, 10", f"s_add_u32 {s(sDst)}, {s(sDst)}, {s(sT)}", f"s_add_u32 {s(sDst)}, {s(sDst)}, {LY.WS_WOA}")
    for e in range(5):
        for rd in range(2): I(f"ds_read_b64_tr_b16 {v(24 + e*4 + rd*2, 2)}, {v(vB)} offset:{8*rd*1152 + e*256}")
    I("s_waitcnt lgkmcnt(0)")
    for e in range(4):
        I(f"s_add_u32 {s(sT)}, {s(sDst)}, {e*4096}", f"buffer_store_dwordx4 {v(24 + e*4, 4)}, {v(vL16)}, {s(SW,4)}, {s(sT)} offen")
    I(f"s_cmp_ge_u32 {s(sWave)}, 2", "s_cbranch_scc1 L_rl_done")
    I(f"s_add_u32 {s(sT)}, {s(sDst)}, {4*4096}", f"buffer_store_dwordx4 {v(40, 4)}, {v(vL16)}, {s(SW,4)}, {s(sT)} offen")
    I("L_rl_done:")

def relayout_wob(k, sId, vL16, SW, nwaves, fl=""):
    I = k.I
    I("s_load_dwordx2 s[56:57], s[0:1], 64")
    vG = 16
    I(f"v_and_b32 {v(vG)}, 31, v0", f"v_lshlrev_b32 {v(vG)}, 1, {v(vG)}", f"v_lshrrev_b32 {v(vG+1)}, 5, v0",
      f"v_mul_u32_u24 {v(vG+2)}, {4*1152}, {v(vG+1)}", f"v_add_u32 {v(vG+2)}, {v(vG+2)}, {v(vG)}",
      f"v_mul_u32_u24 {v(vG+3)}, {72*1152}, {v(vG+1)}", f"v_add_u32 {v(vG+3)}, {v(vG+3)}, {v(vG)}")
    I("s_waitcnt lgkmcnt(0)")
    k.srd(SB, 56, 576 * 1152)
    rows_main = [0, 1, 2, 3, 8, 9, 10, 11]
    rows_left = [0, 1, 18, 19, 36, 37, 54, 55]
    def divmod18(src):
        return [f"s_mul_i32 {s(sKs)}, {s(src)}, 3641", f"s_lshr_b32 {s(sKs)}, {s(sKs)}, 16", f"s_mul_i32 {s(sNtr)}, {s(sKs)}, 18", f"s_sub_u32 {s(sNtr)}, {s(src)}, {s(sNtr)}"]
    def rl_loads(tt, vb, rows):
        o = []
        for e, r in enumerate(rows):
            off = r * 1152
            if off <= 4095: o.append(f"buffer_load_ushort {v(tt+e)}, {v(vb)}, {s(SB,4)}, {s(sA)} offen offset:{off}")
            else:
                o.append(f"s_add_u32 {s(sA2)}, {s(sA)}, {off}"); o.append(f"buffer_load_ushort {v(tt+e)}, {v(vb)}, {s(SB,4)}, {s(sA2)} offen")
        return o
    GT = 24
    n = -(-648 // nwaves)
    for i in range(n):
        tt = GT + i * 12
        I(f"s_add_u32 {s(sT2)}, {s(sId)}, {nwaves*i}", f"s_cmp_ge_u32 {s(sT2)}, 648", f"s_cbranch_scc1 L_rb_skip{i}")
        I(divmod18(sT2), f"s_lshl_b32 {s(sNtr)}, {s(sNtr)}, 6", f"s_cmp_ge_u32 {s(sKs)}, 32", f"s_cbranch_scc1 L_rb_left{i}")
        I(f"s_mul_i32 {s(sA)}, {s(sKs)}, {18*1152}", f"s_add_u32 {s(sA)}, {s(sA)}, {s(sNtr)}"); I(rl_loads(tt, vG + 2, rows_main)); I(f"s_branch L_rb_skip{i}")
        I(f"L_rb_left{i}:", f"s_sub_u32 {s(sKs)}, {s(sKs)}, 32", f"s_mul_i32 {s(sA)}, {s(sKs)}, {144*1152}", f"s_add_u32 {s(sA)}, {s(sA)}, {16*1152}", f"s_add_u32 {s(sA)}, {s(sA)}, {s(sNtr)}")
        I(rl_loads(tt, vG + 3, rows_left)); I(f"L_rb_skip{i}:")
    I("s_waitcnt vmcnt(0)")
    for i in range(n):
        tt = GT + i * 12
        I(f"s_add_u32 {s(sT2)}, {s(sId)}, {nwaves*i}", f"s_cmp_ge_u32 {s(sT2)}, 648", f"s_cbranch_scc1 L_rb_end")
        I(f"s_lshl_b32 {s(sDst)}, {s(sT2)}, 10", f"s_add_u32 {s(sDst)}, {s(sDst)}, {LY.WS_WOB}")
        I([f"v_lshl_or_b32 {v(tt+8+e)}, {v(tt+2*e+1)}, 16, {v(tt+2*e)}" for e in range(4)])
        I(f"buffer_store_dwordx4 {v(tt+8,4)}, {v(vL16)}, {s(SW,4)}, {s(sDst)} offen{fl}")
    I("L_rb_end:")
```

```python
from gen_common import *
from gen_relayout import relayout_issue, relayout_finish
import struct, os
from gen_qproj import qproj
QFUSE = not os.environ.get('NOQFUSE')
def f32bits(x): return struct.unpack("<I", struct.pack("<f", x))[0]
BIAS = 96
THR = 2.0 ** 64
KRING, VRING = 4, 4
VBASE = KRING * 16384
LDS_A = 131072 + 20480
BIG = 1.0e30
STF = ' ' + os.environ.get('STQ', 'sc1')
BUDGET = int(os.environ.get('BUDGET', 20))

def gen_atta(k, label="A"):
    I = k.I
    ex = os.environ.get("EXP", "")
    SW = 4
    (sHead, sPair, sWave, sT, sT2, sIt, sKsrc, sVsrc, sWK, sWV, sNT, sTile, sR, sX, sVcur, sThr, sQlo, sQhi, sEnd, sT3) = range(16, 36)
    vL16, vT, vT2, vT3, vT4, vKc, vKn, vVc, vD0, vD1, vU, vL16V = 1, 2, 3, 4, 5, 6, 7, 8, 9, 10, 11, 15
    LA, LB, LLOW = 12, 13, 14
    S = [16, 32]; NM = [48, 64]; CM = [80, 96]; P = [112, 120]; KF = 128; VF = 160; TMP = 192
    SEL, LS = 224, 228
    MSUM = bool(os.environ.get('MSUM'))
    OL, OH, QL, QH = 0, 64, 128, 160
    def kf(j): return v(KF + 4 * j, 4)
    def vf(j): return v(VF + 4 * j, 4)
    if os.environ.get("STAMPS"): I("s_mov_b32 s60, 0")
    I("s_load_dwordx2 s[12:13], s[0:1], 88", "s_load_dwordx2 s[56:57], s[0:1], 40")
    I(f"v_lshrrev_b32 {v(vT)}, 6, v0", "v_and_b32 v0, 63, v0", "s_nop 0", f"v_readfirstlane_b32 {s(sWave)}, {v(vT)}")
    I(f"s_and_b32 {s(sT)}, s2, 7", f"s_lshr_b32 {s(sT2)}, s2, 3", f"s_and_b32 {s(sPair)}, {s(sT2)}, 7", f"s_lshr_b32 {s(sT2)}, {s(sT2)}, 3",
      f"s_lshl_b32 {s(sHead)}, {s(sT)}, 2", f"s_add_u32 {s(sHead)}, {s(sHead)}, {s(sT2)}")
    I(f"s_lshr_b32 s3, s2, 3", "s_lshl_b32 s3, s3, 2", f"s_add_u32 s3, s3, {s(sWave)}")
    k.code_prefetch("aa", "atta_kernel", "L_end_atta_kernel", 7, 3, 8, 250, True)
    I("s_waitcnt lgkmcnt(0)")
    k.srd(SW, 12, LY.WS_END)
    I(f"v_lshlrev_b32 {v(vL16)}, 4, v0")
    I(f"s_lshl_b32 {s(sT)}, {s(sPair)}, 1", f"s_sub_u32 {s(sNT)}, 32, {s(sT)}")
    I(f"s_lshl_b32 {s(sT)}, {s(sHead)}, 19", f"s_lshl_b32 {s(sT2)}, {s(sWave)}, 12", f"s_add_u32 {s(sKsrc)}, {s(sT)}, {s(sT2)}",
      f"s_add_u32 {s(sVsrc)}, {s(sKsrc)}, {LY.WS_VA}")
    if LY.WS_KA: I(f"s_add_u32 {s(sKsrc)}, {s(sKsrc)}, {LY.WS_KA}")
    I(f"s_mov_b32 {s(sWK)}, {s(sT2)}", f"s_add_u32 {s(sWV)}, {s(sT2)}, {VBASE}")
    def ld(src, j): return f"buffer_load_dwordx4 {v(vL16)}, {s(SW,4)}, {s(src)} offen" + (f" offset:{j*1024}" if j else "") + " lds"
    def dma_static(isK, slot):
        src = sKsrc if isK else sVsrc
        return [f"s_add_u32 m0, {s(sWK if isK else sWV)}, {slot*16384}", "s_nop 0"] + [ld(src, j) for j in range(4)] + [f"s_add_u32 {s(src)}, {s(src)}, 16384"]
    def dmaK0(): return dma_static(True, 0)
    I(f"s_lshl_b32 {s(sQlo)}, {s(sPair)}, 2", f"s_add_u32 {s(sQlo)}, {s(sQlo)}, {s(sWave)}",
      f"s_lshl_b32 {s(sT)}, {s(sPair)}, 2", f"s_sub_u32 {s(sQhi)}, 60, {s(sT)}", f"s_add_u32 {s(sQhi)}, {s(sQhi)}, {s(sWave)}")
    def setup_consts():
        I(f"v_and_b32 {v(vT)}, 31, v0", f"v_lshrrev_b32 {v(vT2)}, 5, v0", f"v_lshlrev_b32 {v(vT2)}, 2, {v(vT2)}", f"v_sub_u32 {v(vT)}, {v(vT)}, {v(vT2)}")
        for (sq, vd) in ((sQlo, vD0), (sQhi, vD1)):
            I(f"s_lshl_b32 {s(sT)}, {s(sq)}, 5", f"v_add_u32 {v(vd)}, {s(sT)}, {v(vT)}", f"v_cvt_f32_i32 {v(vd)}, {v(vd)}")
        for i in range(128): I(f"v_accvgpr_write_b32 {a(i)}, 0")
        I(f"v_mov_b32 {v(LA)}, 0", f"v_mov_b32 {v(LB)}, 0", f"s_mov_b32 {s(sThr)}, {f32bits(THR)}")
        I(f"v_lshrrev_b32 {v(vT)}, 2, v0", f"v_lshrrev_b32 {v(vT2)}, 4, v0", f"v_xor_b32 {v(vT)}, {v(vT)}, {v(vT2)}", f"v_and_b32 {v(vT)}, 1, {v(vT)}",
          f"v_mov_b32 {v(vT2)}, 0x3f803f80", f"v_cmp_eq_u32 vcc, 0, {v(vT)}", "s_nop 1")
        for i in range(4): I(f"v_cndmask_b32 {v(SEL+i)}, 0, {v(vT2)}, vcc")
    if not QFUSE:
        I(dma_static(True, 0))
        for (sq, base) in ((sQlo, QL), (sQhi, QH)):
            I(f"s_lshl_b32 {s(sT)}, {s(sHead)}, 6", f"s_add_u32 {s(sT)}, {s(sT)}, {s(sq)}", f"s_lshl_b32 {s(sT)}, {s(sT)}, 13", f"s_add_u32 {s(sT)}, {s(sT)}, {LY.WS_QA}",
              f"s_add_u32 {s(sT2)}, {s(sT)}, 4096")
            for j in range(8):
                I(f"buffer_load_dwordx4 {a(base+4*j,4)}, {v(vL16)}, {s(SW,4)}, {s(sT if j < 4 else sT2)} offen offset:{(j%4)*1024}")
    else:
        def grp(isK, slot):
            d = dma_static(isK, slot)
            return [tuple(d[:3]), (d[3],), (d[4],), tuple(d[5:])]
        K0, K1, K2, K3 = (grp(True, i) for i in range(4))
        V0, V1 = grp(False, 0), grp(False, 1)
        setup_consts()
        qproj(k, sHead, sPair, sWave, QL, QH, {6: K0 + K1 + K2, 7: K3 + V0 + V1}, [])
        relayout_issue(k, sWave, vL16)
    if not QFUSE: setup_consts()
    I(f"s_mov_b32 {s(sR)}, 0", f"s_mov_b32 {s(sX)}, 0x8000", f"s_mov_b32 {s(sTile)}, 0")
    I(f"v_add_u32 {v(vKn)}, 16384, {v(vL16)}", f"v_add_u32 {v(vL16V)}, {VBASE}, {v(vL16)}", f"v_mov_b32 {v(vVc)}, {v(vL16V)}")

    if not QFUSE:
        I(dma_static(False, 0), dma_static(True, 1), dma_static(True, 2))
        relayout_issue(k, sWave, vL16)
        I(dma_static(False, 1), dma_static(True, 3))
    def rdK(j, base, step): return f"ds_read_b128 {kf(j)}, {v(base)} offset:{step*8192 + j*1024}"
    def rdV(j, step): return f"ds_read_b128 {vf(j)}, {v(vVc)} offset:{step*8192 + j*1024}"
    def QK(sb, Q, C):
        return [f"v_mfma_f32_32x32x16_bf16 {v(S[sb],16)}, {kf(j)}, {a(Q+4*j,4)}, {C if j == 0 else v(S[sb],16)}" for j in range(8)]
    def PV(pb, O):
        return [f"v_mfma_f32_32x32x16_bf16 {a(O+16*(j%4),16)}, {vf(j)}, {v(P[pb]+4*(j//4),4)}, {a(O+16*(j%4),16)}" for j in range(8)]
    def sm_ea(sb, l):
        L = []
        b = S[sb]
        for i in range(16):
            L.append(f"v_exp_f32 {v(b+i)}, {v(b+i)}")
            if i >= 2: L.append(f"v_add_f32 {v(l)}, {v(l)}, {v(b+i-2)}")
        L += [f"v_add_f32 {v(l)}, {v(l)}, {v(b+14)}", f"v_add_f32 {v(l)}, {v(l)}, {v(b+15)}"]
        return L
    def sm_cvt(sb, lo): return [f"v_cvt_pk_bf16_f32 {v(P[sb]+i)}, {v(S[sb]+2*i)}, {v(S[sb]+2*i+1)}" for i in range(lo, lo + 4)]
    def mask_ops(cb, nm, vd):
        L = [f"v_mul_f32 {v(vU)}, 0x{f32bits(BIG):08x}, {v(vd)}"]
        for r in range(16):
            c = (r & 3) + 8 * (r >> 2)
            L += [f"v_add_f32 {v(CM[cb]+r)}, 0x{f32bits(-(c - 0.5) * BIG):08x}, {v(vU)}"]
        for r in range(16):
            L += [f"v_min_f32 {v(CM[cb]+r)}, {v(nm)}, {v(CM[cb]+r)}"]
        L += [f"v_subrev_f32 {v(vd)}, 0x{f32bits(32.0):08x}, {v(vd)}" if False else f"v_add_f32 {v(vd)}, 0x{f32bits(-32.0):08x}, {v(vd)}"]
        return L

    EA1 = sm_ea(1, LB); CV1 = sm_cvt(1, 0) + sm_cvt(1, 4)
    NSPLIT = int(os.environ.get('NSPLIT', 14))
    A1 = EA1[:NSPLIT]; B1 = EA1[NSPLIT:] + CV1
    noadd = lambda L: [l for l in L if not l.startswith("v_add_f32")]
    NS2 = int(os.environ.get('NSPLIT2', 8))
    E1x = noadd(EA1); A1x = E1x[:NS2]; B1x = E1x[NS2:] + CV1
    def rowsum(pb, half): return f"v_mfma_f32_16x16x32_bf16 {v(LS,4)}, {v(SEL,4)}, {v(P[pb]+4*half,4)}, {v(LS,4)}"
    def build(mode, sit, masked=(False, False), prep=None, extra=None):
        if mode == "P1":   Qa, Qb, Oa, Ob, Na, Nb = QL, QH, OL, OH, NM[0], NM[1]
        elif mode == "HY": Qa, Qb, Oa, Ob, Na, Nb = QH, QH, OL, OH, NM[1], NM[1]
        else:              Qa, Qb, Oa, Ob, Na, Nb = QH, QH, OH, OH, NM[1], NM[1]
        Ca = v(CM[0], 16) if masked[0] else v(Na, 16)
        Cb = v(CM[1], 16) if masked[1] else v(Nb, 16)
        m = QK(0, Qa, Ca) + QK(1, Qb, Cb) + PV(0, Oa) + PV(1, Ob)
        fixed = {g: [] for g in range(32)}
        pre = {g: [] for g in range(32)}
        if extra:
            for g, ls in extra.items(): pre[g] += ls
        if mode == "P1":
            for j in range(8): fixed[8 + j].append(rdV(j, sit))
            for j in range(8): fixed[24 + j].append(rdK(j, vKc, sit))
            waits = {15: 4, 19: 0, 31: 4, 3: 0}
        elif mode == "HY":
            for j in range(8): fixed[j].append(rdK(j, vKc, 1))
            for j in range(8): fixed[8 + j].append(rdV(j, 1))
            for j in range(8): fixed[24 + j].append(rdK(j, vKn, 0))
            waits = {3: 4, 7: 4, 11: 4, 15: 4, 19: 0, 31: 4}
        elif mode == "P2":
            for j in range(8): fixed[j].append(rdK(j, vKc, 1))
            for j in range(8): fixed[8 + j].append(rdV(j, 0))
            for j in range(8): fixed[16 + j].append(rdV(j, 1))
            for j in range(8): fixed[24 + j].append(rdK(j, vKn, 0))
            waits = {3: 4, 7: 4, 11: 4, 15: 4, 19: 4, 23: 4, 27: 4, 31: 4}
        else:
            for j in range(8): fixed[8 + j].append(rdV(j, 0))
            for j in range(8): fixed[16 + j].append(rdV(j, 1))
            waits = {15: 4, 19: 4, 23: 4, 27: 0}
        allfixed = {g: pre[g] + fixed[g] + ([f"s_waitcnt lgkmcnt({waits[g]})"] if g in waits else []) for g in range(32)}
        p2 = MSUM and mode in ("P2", "DR")
        own2 = MSUM and mode in ("HY", "P2")
        if p2:
            for g, (pb, hf) in {17: (0, 0), 21: (0, 1), 25: (1, 0), 29: (1, 1)}.items(): pre[g] = [rowsum(pb, hf)] + pre[g]
            allfixed = {g: pre[g] + fixed[g] + ([f"s_waitcnt lgkmcnt({waits[g]})"] if g in waits else []) for g in range(32)}
        streams = [[(l, 0, 7) for l in (B1x if p2 else B1)]]
        if mode != "DR":
            ea0 = noadd(sm_ea(0, LA)) if own2 else sm_ea(0, LA)
            streams.append([(l, 9, 25) for l in ea0] + [(l, 19, 29) for l in sm_cvt(0, 0)] + [(l, 23, 30) for l in sm_cvt(0, 4)])
            streams.append([(l, 17, 31) for l in (A1x if own2 else A1)])
        if prep:
            for (cb, nm, vd) in prep:
                streams.append([(l, 10 if cb == 0 else 18, 31) for l in mask_ops(cb, nm, vd)])
        placed, load = schedule(32, allfixed, streams, budget=BUDGET if not prep else 32)
        out = []
        for g in range(32):
            if mode == "DR" and g < 16: pass
            else: out.append(m[g])
            body = pre[g] + fixed[g] + placed.get(g, [])
            if g in waits: body.append(f"s_waitcnt lgkmcnt({waits[g]})")
            out += body
        def keep(l):
            if "nolds" in ex and l.startswith("ds_read"): return False
            if "nomfma" in ex and l.startswith("v_mfma"): return False
            if "nocvt" in ex and l.startswith("v_cvt_pk"): return False
            if "noexp" in ex and l.startswith("v_exp"): return False
            if "noadd" in ex and l.startswith("v_add_f32"): return False
            if "nobar" in ex and l.startswith("s_barrier"): return False
            if "nodma" in ex and (l.startswith("buffer_load")): return False
            if "novm" in ex and l.startswith("s_waitcnt vmcnt"): return False
            if "nolg" in ex and l.startswith("s_waitcnt lgkm"): return False
            if "novalu" in ex and (l.startswith("v_exp") or l.startswith("v_add_f32") or l.startswith("v_cvt_pk")): return False
            return True
        return [l for l in out if keep(l)]

    def tile_ctl(tag, nvm=8, doK=True, doV=True):
        d = {}
        d[7] = [f"s_waitcnt vmcnt({nvm})", "s_barrier"]
        g = 8
        if doK:
            d.setdefault(8, []).append(f"s_or_b32 m0, {s(sR)}, {s(sWK)}")
            for j in range(4): d.setdefault(10 + 2 * j, []).append(ld(sKsrc, j))
            d.setdefault(17, []).append(f"s_add_u32 {s(sKsrc)}, {s(sKsrc)}, 16384")
        if doV:
            d.setdefault(17, []).append(f"s_add_u32 m0, {s(sX)}, {s(sWV)}")
            for j in range(4): d.setdefault(18 + 2 * j, []).append(ld(sVsrc, j))
            d.setdefault(25, []).append(f"s_add_u32 {s(sVsrc)}, {s(sVsrc)}, 16384")
        return d
    def check_ops(tag, two):
        if MSUM and not two: L = [f"v_cmp_lt_f32 vcc, {s(sThr)}, {v(LS)}"]
        else: L = [f"v_max_f32 {v(vT)}, {v(LA)}, {v(LB)}", f"v_cmp_lt_f32 vcc, {s(sThr)}, {v(vT)}"]
        L += [f"s_cbranch_vccnz L_{label}_rare_{tag}" if not ex else "s_nop 0", f"L_{label}_ret_{tag}:"]
        return L
    def adv_scalar():
        return {26: [f"s_add_u32 {s(sR)}, {s(sR)}, 16384", f"s_add_u32 {s(sTile)}, {s(sTile)}, 1"],
                27: [f"s_and_b32 {s(sR)}, {s(sR)}, 0xffff"],
                28: [f"s_xor_b32 {s(sX)}, {s(sR)}, 0x8000", f"v_add_u32 {v(vVc)}, {s(sR)}, {v(vL16V)}"]}
    def merge(*ds):
        o = {}
        for d in ds:
            for g, ls in d.items(): o.setdefault(g, []).extend(ls)
        return o
    P1HEAD = {1: [f"v_mov_b32 {v(vKc)}, {v(vKn)}", f"v_add_u32 {v(vKn)}, {s(sX)}, {v(vL16)}"]}
    P2HEAD = {1: [f"v_add_u32 {v(vKn)}, {s(sX)}, {v(vL16)}"], 12: [f"v_mov_b32 {v(vKc)}, {v(vKn)}"]}
    HYX = {12: [f"v_mov_b32 {v(vKc)}, {v(vKn)}"]}
    def advance(): return []
    def rare(tag, two):
        L = ["s_nop 7", "s_nop 7"]
        def scale_p(pb, al):
            o = []
            for i in range(8):
                o += [f"v_lshlrev_b32 {v(vT3)}, 16, {v(P[pb]+i)}", f"v_and_b32 {v(vT4)}, 0xffff0000, {v(P[pb]+i)}",
                      f"v_ldexp_f32 {v(vT3)}, {v(vT3)}, {v(al)}", f"v_ldexp_f32 {v(vT4)}, {v(vT4)}, {v(al)}", f"v_cvt_pk_bf16_f32 {v(P[pb]+i)}, {v(vT3)}, {v(vT4)}"]
            return o
        def kof(src_regs):
            o = [f"v_mov_b32 {v(vT)}, {v(src_regs[0])}"]
            for r in src_regs[1:]: o.append(f"v_add_f32 {v(vT)}, {v(vT)}, {v(r)}")
            o += [f"v_mov_b32 {v(vT2)}, {v(vT)}", "s_nop 1", f"v_permlane32_swap_b32 {v(vT)}, {v(vT2)}", "s_nop 1", f"v_add_f32 {v(vT)}, {v(vT)}, {v(vT2)}",
                  f"v_frexp_exp_i32_f32 {v(TMP)}, {v(vT)}", f"v_add_u32 {v(TMP)}, 0x{BIAS:x}, {v(TMP)}", f"v_max_i32 {v(TMP)}, 0, {v(TMP)}",
                  f"v_cvt_f32_i32 {v(TMP+2)}, {v(TMP)}", f"v_sub_u32 {v(TMP+1)}, 0, {v(TMP)}"]
            return o
        def scale_o(O):
            o = []
            for i in range(64):
                t = TMP + 4 + (i % 4)
                o += [f"v_accvgpr_read_b32 {v(t)}, {a(O+i)}", f"v_ldexp_f32 {v(t)}, {v(t)}, {v(TMP+1)}", f"v_accvgpr_write_b32 {a(O+i)}, {v(t)}"]
            return o
        def sub16(base): return [f"v_sub_f32 {v(base+i)}, {v(base+i)}, {v(TMP+2)}" for i in range(16)]
        if two:
            for q in range(2):
                L += kof([LA if q == 0 else LB])
                L += [f"v_ldexp_f32 {v(LA if q == 0 else LB)}, {v(LA if q == 0 else LB)}, {v(TMP+1)}"]
                L += scale_o(OL if q == 0 else OH) + scale_p(q, TMP + 1) + sub16(S[q]) + sub16(NM[q])
        else:
            if MSUM:
                L += [f"v_frexp_exp_i32_f32 {v(TMP)}, {v(LS)}", f"v_add_u32 {v(TMP)}, 0x{BIAS:x}, {v(TMP)}", f"v_max_i32 {v(TMP)}, 0, {v(TMP)}",
                      f"v_cvt_f32_i32 {v(TMP+2)}, {v(TMP)}", f"v_sub_u32 {v(TMP+1)}, 0, {v(TMP)}"]
                L += [f"v_ldexp_f32 {v(LS+i)}, {v(LS+i)}, {v(TMP+1)}" for i in range(4)]
            else:
                L += kof([LA, LB])
                L += [f"v_ldexp_f32 {v(LA)}, {v(LA)}, {v(TMP+1)}", f"v_ldexp_f32 {v(LB)}, {v(LB)}, {v(TMP+1)}"]
            L += scale_o(OH) + scale_p(0, TMP + 1) + scale_p(1, TMP + 1) + sub16(S[0]) + sub16(S[1]) + sub16(NM[1])
        L += ["s_nop 1", f"s_branch L_{label}_ret_{tag}"]
        return L
    rares = []

    if QFUSE: I("s_waitcnt vmcnt(25)", "s_barrier")
    else:
        I("s_waitcnt vmcnt(33)", "s_barrier")
        k.stamp(6)
    for j in range(8): I(rdK(j, vL16, 0))
    I(f"s_cmp_lg_u32 {s(sPair)}, 0", f"s_cbranch_scc1 L_{label}_nomask0")
    I(f"v_mov_b32 {v(TMP)}, 0")
    I(mask_ops(0, TMP, vD0))
    I("s_waitcnt lgkmcnt(0)")
    I(QK(0, QL, v(CM[0], 16)))
    I(f"s_branch L_{label}_m0done")
    I(f"L_{label}_nomask0:", f"v_add_f32 {v(vD0)}, 0x{f32bits(-32.0):08x}, {v(vD0)}", "s_waitcnt lgkmcnt(0)")
    I(QK(0, QL, "0"))
    I(f"L_{label}_m0done:", f"v_add_f32 {v(vD1)}, 0x{f32bits(-32.0):08x}, {v(vD1)}", "s_nop 0" if QFUSE else "s_waitcnt vmcnt(25)")
    I(QK(1, QH, "0"))
    for j in range(8): I(rdK(j, vL16, 1))
    I("s_nop 7", "s_nop 7")
    for q in range(2):
        b = S[q]
        I(f"v_max3_f32 {v(vT)}, {v(b)}, {v(b+1)}, {v(b+2)}")
        for i in range(3, 15, 2): I(f"v_max3_f32 {v(vT)}, {v(vT)}, {v(b+i)}, {v(b+i+1)}")
        I(f"v_max_f32 {v(vT)}, {v(vT)}, {v(b+15)}", f"v_mov_b32 {v(vT2)}, {v(vT)}", "s_nop 1",
          f"v_permlane32_swap_b32 {v(vT)}, {v(vT2)}", "s_nop 1", f"v_max_f32 {v(vT)}, {v(vT)}, {v(vT2)}",
          f"v_add_f32 {v(vT)}, 0x{f32bits(float(BIAS)):08x}, {v(vT)}")
        for i in range(16): I(f"v_sub_f32 {v(NM[q]+i)}, 0, {v(vT)}")
        for i in range(16): I(f"v_sub_f32 {v(b+i)}, {v(b+i)}, {v(vT)}")
    I(sm_ea(0, LA), "s_nop 0", sm_cvt(0, 0), sm_cvt(0, 4), A1)
    I("s_waitcnt lgkmcnt(0)")
    k.stamp(1)
    I(f"s_lshl_b32 {s(sEnd)}, {s(sPair)}, 1", f"s_sub_u32 {s(sEnd)}, {s(sEnd)}, 1")
    I(f"s_cmp_lt_i32 {s(sEnd)}, 1", f"s_cbranch_scc1 L_{label}_p1m_enter")
    I(f"L_{label}_p1:")
    e = tile_ctl("p1"); e[8] = e.get(8, []) + check_ops("p1", True)
    b1 = build("P1", 0, extra=merge(e, P1HEAD)); b2 = build("P1", 1, extra=adv_scalar())
    I(b1, b2, advance())
    I(f"s_cmp_lt_i32 {s(sTile)}, {s(sEnd)}", f"s_cbranch_scc1 L_{label}_p1")
    rares.append(("p1", True))
    flat = lambda L: [l for l in L if not l.endswith(":") and not l.startswith("s_cbranch")]
    pro = [rdK(j, vL16, 1) for j in range(8)] + A1 + ["s_waitcnt lgkmcnt(0)"]
    check(pro + flat(b1 + b2 + advance()) * 2, "atta_p1"); gap_report(flat(b1 + b2 + advance()), "atta_p1")
    I(f"L_{label}_p1m_enter:")
    I(f"s_lshl_b32 {s(sT)}, {s(sTile)}, 6", f"v_cvt_f32_u32 {v(vT)}, {s(sT)}", f"v_sub_f32 {v(vD0)}, {v(vD0)}, {v(vT)}")
    I(mask_ops(0, NM[0], vD0))
    I(f"s_lshl_b32 {s(sEnd)}, {s(sPair)}, 1", f"s_add_u32 {s(sEnd)}, {s(sEnd)}, 1")
    I(f"L_{label}_p1m:")
    e = tile_ctl("p1m"); e[8] = e.get(8, []) + check_ops("p1m", True)
    b1 = build("P1", 0, masked=(True, False), prep=[(0, NM[0], vD0)], extra=merge(e, P1HEAD))
    b2 = build("P1", 1, masked=(True, False), prep=[(0, NM[0], vD0)], extra=adv_scalar())
    I(b1, b2, advance())
    I(f"s_cmp_lt_u32 {s(sTile)}, {s(sEnd)}", f"s_cbranch_scc1 L_{label}_p1m")
    rares.append(("p1m", True))
    check(pro + flat(b1 + b2 + advance()) * 2, "atta_p1m"); gap_report(flat(b1 + b2 + advance()), "atta_p1m")
    e = tile_ctl("p1l"); e[8] = e.get(8, []) + check_ops("p1lm", True)
    I(f"s_lshl_b32 {s(sT)}, {s(sTile)}, 6", f"s_add_u32 {s(sT)}, {s(sT)}, 32", f"v_cvt_f32_u32 {v(vT)}, {s(sT)}", f"v_sub_f32 {v(vD1)}, {v(vD1)}, {v(vT)}")
    b1 = build("P1", 0, masked=(True, False), extra=merge(e, P1HEAD))
    I(b1)
    rares.append(("p1lm", True))
    I(mask_ops(0, NM[1], vD1), mask_ops(1, NM[1], vD1))
    I(f"v_mov_b32 {v(LLOW)}, {v(LA)}", f"v_mov_b32 {v(LA)}, 0")
    b2 = build("HY", 1, masked=(True, True), extra=merge(HYX, adv_scalar()))
    I(b2, advance())
    if MSUM:
        I(f"v_mov_b32 {v(vT)}, {v(LB)}", f"v_mov_b32 {v(vT2)}, {v(LB)}", "s_nop 1", f"v_permlane32_swap_b32 {v(vT)}, {v(vT2)}", "s_nop 1")
        for i in range(4): I(f"v_add_f32 {v(LS+i)}, {v(vT)}, {v(vT2)}")
    check(pro + flat(b1) + flat(b2), "atta_hy")
    I(f"s_sub_u32 {s(sEnd)}, {s(sNT)}, 3")
    I(f"s_cmp_ge_u32 {s(sTile)}, {s(sEnd)}", f"s_cbranch_scc1 L_{label}_p2m_enter")
    I(f"L_{label}_p2:")
    e = tile_ctl("p2"); e[8] = e.get(8, []) + check_ops("p2", False)
    b1 = build("P2", 0, extra=merge(e, P2HEAD, adv_scalar()))
    I(b1, advance())
    I(f"s_cmp_lt_u32 {s(sTile)}, {s(sEnd)}", f"s_cbranch_scc1 L_{label}_p2")
    rares.append(("p2", False))
    check(pro + flat(b1 + advance()) * 3, "atta_p2"); gap_report(flat(b1 + advance()), "atta_p2")
    I(f"L_{label}_p2m_enter:")
    I(f"v_and_b32 {v(vT)}, 31, v0", f"v_lshrrev_b32 {v(vT2)}, 5, v0", f"v_lshlrev_b32 {v(vT2)}, 2, {v(vT2)}", f"v_sub_u32 {v(vT)}, {v(vT)}, {v(vT2)}",
      f"s_lshl_b32 {s(sT)}, {s(sQhi)}, 5", f"s_lshl_b32 {s(sT2)}, {s(sTile)}, 6", f"s_add_u32 {s(sT2)}, {s(sT2)}, 64", f"s_sub_i32 {s(sT)}, {s(sT)}, {s(sT2)}",
      f"v_add_u32 {v(vD1)}, {s(sT)}, {v(vT)}", f"v_cvt_f32_i32 {v(vD1)}, {v(vD1)}")
    I(f"s_sub_u32 {s(sEnd)}, {s(sNT)}, 1")
    I(f"L_{label}_p2m:")
    I(mask_ops(0, NM[1], vD1), mask_ops(1, NM[1], vD1))
    e = tile_ctl("p2m", nvm=4, doK=False); e[8] = e.get(8, []) + check_ops("p2m", False)
    b1 = build("P2", 0, masked=(True, True), extra=merge(e, P2HEAD, adv_scalar()))
    I(b1, advance())
    I(f"s_cmp_lt_u32 {s(sTile)}, {s(sEnd)}", f"s_cbranch_scc1 L_{label}_p2m")
    rares.append(("p2m", False))
    e = {7: ["s_waitcnt vmcnt(4)", "s_barrier"]}
    b1 = build("DR", 0, extra=e)
    I(b1)
    check(pro + flat(build("P2", 0)) + flat(b1), "atta_dr")
    k.stamp(2)
    I("s_nop 7", "s_nop 7")
    if MSUM: I(f"v_mul_f32 {v(LA)}, 0.5, {v(LS)}")
    else: I(f"v_add_f32 {v(LA)}, {v(LA)}, {v(LB)}")
    ZR, CK = S[0], S[1]
    def epilogue(with_check):
        if with_check:
            for i in range(4): I(f"v_mov_b32 {v(ZR+i)}, 0")
        first = True
        for (O, lreg, sq) in ((OL, LLOW, sQlo), (OH, LA, sQhi)):
            I(f"v_mov_b32 {v(vT)}, {v(lreg)}", f"v_mov_b32 {v(vT2)}, {v(lreg)}", "s_nop 1", f"v_permlane32_swap_b32 {v(vT)}, {v(vT2)}", "s_nop 1",
              f"v_add_f32 {v(vT)}, {v(vT)}, {v(vT2)}")
            if with_check:
                I(f"v_mul_f32 {v(vU)}, 0, {v(vT)}" if O == OL else f"v_fma_f32 {v(vU)}, {v(vT)}, 0, {v(vU)}")
            I(f"v_rcp_f32 {v(vT)}, {v(vT)}")
            I(f"s_lshl_b32 {s(sT)}, {s(sq)}, 18", f"s_lshl_b32 {s(sT2)}, {s(sHead)}, 13", f"s_add_u32 {s(sT)}, {s(sT)}, {s(sT2)}", f"s_add_u32 {s(sT)}, {s(sT)}, {LY.WS_CTX}",
              f"s_add_u32 {s(sT2)}, {s(sT)}, 4096")
            for f in range(8):
                base = O + (f >> 1) * 16 + (f & 1) * 8
                tb = TMP + (f % 2) * 12 if False else (KF + (f % 4) * 12)
                for i in range(8): I(f"v_accvgpr_read_b32 {v(tb+i)}, {a(base+i)}")
                for i in range(8): I(f"v_mul_f32 {v(tb+i)}, {v(vT)}, {v(tb+i)}")
                for i in range(4): I(f"v_cvt_pk_bf16_f32 {v(tb+8+i)}, {v(tb+2*i)}, {v(tb+2*i+1)}")
                I(f"buffer_store_dwordx4 {v(tb+8,4)}, {v(vL16)}, {s(SW,4)}, {s(sT if f < 4 else sT2)} offen offset:{(f%4)*1024}{STF}")
                if with_check:
                    I("s_nop 0", f"v_mfma_f32_32x32x16_bf16 {v(CK,16)}, {v(ZR,4)}, {v(tb+8,4)}, {'0' if first else v(CK,16)}")
                    first = False
    epilogue(True)
    I("s_nop 7", "s_nop 7")
    I(f"v_add_f32 {v(vU)}, {v(vU)}, {v(CK)}", "s_nop 0", f"v_cmp_u_f32 vcc, {v(vU)}, {v(vU)}", f"s_cbranch_vccnz L_{label}_slow" if not ex else "s_nop 0")
    if os.environ.get("STAMPS"):
        I("v_mov_b32 v250, s60", "v_mov_b32 v252, 0", "s_lshl_b32 s96, s2, 6", "s_add_u32 s96, s96, 40", f"s_add_u32 s96, s96, {LY.WS_STAMP}",
          f"buffer_store_dword v250, v252, {s(SW,4)}, s96 offen") if False else None
    I(f"L_{label}_tail:")
    k.stamp(7)
    relayout_finish(k, sWave, vL16, SW)
    k.stamp(3)
    k.stampval(5, "s60")
    I("s_endpgm")
    for tag, two in rares:
        I(f"L_{label}_rare_{tag}:")
        if os.environ.get("STAMPS"): I(f"s_add_u32 s60, s60, 1")
        I(rare(tag, two))
    I(f"L_{label}_slow:")
    k.stamp(4)
    sN, sKa, sVa = sEnd, sKsrc, sVsrc
    vM, vA, vMx, vDs = TMP + 24, TMP + 25, TMP + 26, TMP + 27
    for (O, Q, lreg, sq) in ((OL, QL, LLOW, sQlo), (OH, QH, LA, sQhi)):
        tg = "lo" if O == OL else "hi"
        for i in range(64): I(f"v_accvgpr_write_b32 {a(O+i)}, 0")
        I(f"v_mov_b32 {v(lreg)}, 0", f"v_mov_b32 {v(vM)}, 0xff7fffff")
        I(f"v_and_b32 {v(vT)}, 31, v0", f"v_lshrrev_b32 {v(vT2)}, 5, v0", f"v_lshlrev_b32 {v(vT2)}, 2, {v(vT2)}", f"v_sub_u32 {v(vT)}, {v(vT)}, {v(vT2)}",
          f"s_lshl_b32 {s(sT)}, {s(sq)}, 5", f"v_add_u32 {v(vDs)}, {s(sT)}, {v(vT)}", f"v_cvt_f32_i32 {v(vDs)}, {v(vDs)}")
        I(f"s_add_u32 {s(sN)}, {s(sq)}, 1", f"s_mov_b32 {s(sIt)}, 0")
        I(f"s_lshl_b32 {s(sKa)}, {s(sHead)}, 19", f"s_add_u32 {s(sVa)}, {s(sKa)}, {LY.WS_VA}")
        if LY.WS_KA: I(f"s_add_u32 {s(sKa)}, {s(sKa)}, {LY.WS_KA}")
        I(f"L_{label}_slow_{tg}:")
        I(f"s_add_u32 {s(sT)}, {s(sKa)}, 4096", f"s_add_u32 {s(sT2)}, {s(sVa)}, 4096")
        for j in range(8): I(f"buffer_load_dwordx4 {kf(j)}, {v(vL16)}, {s(SW,4)}, {s(sKa if j < 4 else sT)} offen offset:{(j%4)*1024}")
        for j in range(8): I(f"buffer_load_dwordx4 {vf(j)}, {v(vL16)}, {s(SW,4)}, {s(sVa if j < 4 else sT2)} offen offset:{(j%4)*1024}")
        I(f"v_mov_b32 {v(vA)}, 0")
        I(mask_ops(0, vA, vDs))
        I("s_waitcnt vmcnt(0)")
        I(QK(0, Q, v(CM[0], 16)), "s_nop 7", "s_nop 7")
        b = S[0]
        I(f"v_max3_f32 {v(vMx)}, {v(b)}, {v(b+1)}, {v(b+2)}")
        for i in range(3, 15, 2): I(f"v_max3_f32 {v(vMx)}, {v(vMx)}, {v(b+i)}, {v(b+i+1)}")
        I(f"v_max3_f32 {v(vMx)}, {v(vMx)}, {v(b+15)}, {v(vM)}", f"v_mov_b32 {v(vT2)}, {v(vMx)}", "s_nop 1",
          f"v_permlane32_swap_b32 {v(vMx)}, {v(vT2)}", "s_nop 1", f"v_max_f32 {v(vMx)}, {v(vMx)}, {v(vT2)}",
          f"v_sub_f32 {v(vA)}, {v(vM)}, {v(vMx)}", f"v_exp_f32 {v(vA)}, {v(vA)}", f"v_mov_b32 {v(vM)}, {v(vMx)}")
        for i in range(16): I(f"v_sub_f32 {v(b+i)}, {v(b+i)}, {v(vMx)}")
        for i in range(16): I(f"v_exp_f32 {v(b+i)}, {v(b+i)}")
        I(f"v_mul_f32 {v(lreg)}, {v(vA)}, {v(lreg)}")
        for i in range(16): I(f"v_add_f32 {v(lreg)}, {v(lreg)}, {v(b+i)}")
        for i in range(64):
            t = TMP + (i % 4)
            I(f"v_accvgpr_read_b32 {v(t)}, {a(O+i)}", f"v_mul_f32 {v(t)}, {v(vA)}, {v(t)}", f"v_accvgpr_write_b32 {a(O+i)}, {v(t)}")
        I(sm_cvt(0, 0), sm_cvt(0, 4), "s_nop 1", PV(0, O), "s_nop 7", "s_nop 7")
        I(f"s_add_u32 {s(sKa)}, {s(sKa)}, 8192", f"s_add_u32 {s(sVa)}, {s(sVa)}, 8192", f"s_add_u32 {s(sIt)}, {s(sIt)}, 1", f"s_cmp_lt_u32 {s(sIt)}, {s(sN)}", f"s_cbranch_scc1 L_{label}_slow_{tg}")
    epilogue(False)
    I(f"s_branch L_{label}_tail")
```

```python
from gen_common import *
import math, struct, os
def f32bits(x): return struct.unpack("<I", struct.pack("<f", x))[0]
BIAS = 96
THR = 2.0 ** 64
CH = LY.CHB
SLOT = 19456
LDS_B = 3 * SLOT

def gen_attb(k, wgsub=0, label="B", prefetch=False, handoff=None):
    I = k.I
    ex = os.environ.get("EXP", "")
    SW = 4
    sHead, sChunk, sWave, sT, sT2, sIt, sDma, sM0, sSlotN = 16, 17, 18, 19, 20, 21, 22, 23, 24
    sLo = 28
    sThr = 30
    sQb = 31
    vL16, vK0, vK1, vV, vK0n, vK1n, vT, vT2, vT3, vT4 = 1, 2, 3, 4, 5, 6, 7, 8, 9, 10
    Q0, Q1a, Q1b = 12, 16, 18
    KF = [20, 24]
    KL = [28, 32]
    VF = [36, 44]
    P = [52, 60]
    S = [68, 84]
    NM = 100
    O = 116
    I(f"s_load_dwordx2 s[12:13], s[0:1], 88")
    I(f"v_lshrrev_b32 {v(vT)}, 6, v0", "v_and_b32 v0, 63, v0", "s_nop 0", f"v_readfirstlane_b32 {s(sWave)}, {v(vT)}")
    if wgsub: I(f"s_sub_u32 {s(sT2)}, s2, {wgsub}")
    else: I(f"s_mov_b32 {s(sT2)}, s2")
    I(f"s_and_b32 {s(sT)}, {s(sT2)}, 7", f"s_lshr_b32 {s(sT2)}, {s(sT2)}, 3",
      f"s_and_b32 {s(sChunk)}, {s(sT2)}, 7", f"s_lshr_b32 {s(sT2)}, {s(sT2)}, 3", f"s_lshl_b32 {s(sHead)}, {s(sT)}, 2", f"s_add_u32 {s(sHead)}, {s(sHead)}, {s(sT2)}")
    I("s_waitcnt lgkmcnt(0)")
    k.srd(SW, 12, LY.WS_END)
    I(f"v_lshlrev_b32 {v(vL16)}, 4, v0")
    I(f"s_mul_i32 {s(sDma)}, {s(sHead)}, {LY.HEADB}", f"s_add_u32 {s(sDma)}, {s(sDma)}, {LY.WS_KVB}", f"s_lshl_b32 {s(sT)}, {s(sWave)}, 11",
      f"s_add_u32 {s(sDma)}, {s(sDma)}, {s(sT)}")
    I(f"s_mov_b32 {s(sM0)}, {s(sT)}")
    sD3 = 25
    I(f"s_lshl_b32 {s(sT)}, {s(sWave)}, 10", f"s_sub_u32 {s(sD3)}, 16384, {s(sT)}")
    def dma_chunk(tag):
        L = [f"s_mov_b32 m0, {s(sM0)}", f"s_cmp_ge_u32 {s(sWave)}, 3",
             f"buffer_load_dwordx4 {v(vL16)}, {s(SW,4)}, {s(sDma)} offen lds",
             f"buffer_load_dwordx4 {v(vL16)}, {s(SW,4)}, {s(sDma)} offen offset:1024 lds",
             f"s_cbranch_scc1 L_{label}_dskip_{tag}",
             f"s_add_u32 m0, {s(sM0)}, {s(sD3)}", f"s_add_u32 {s(sT)}, {s(sDma)}, {s(sD3)}",
             f"buffer_load_dwordx4 {v(vL16)}, {s(SW,4)}, {s(sT)} offen lds", f"L_{label}_dskip_{tag}:"]
        L += [f"s_add_u32 {s(sDma)}, {s(sDma)}, {CH}", f"s_add_u32 {s(sM0)}, {s(sM0)}, {SLOT}",
              f"s_cmp_ge_u32 {s(sM0)}, {3*SLOT}", f"s_cselect_b32 {s(sT)}, {3*SLOT}, 0", f"s_sub_u32 {s(sM0)}, {s(sM0)}, {s(sT)}"]
        return L
    I(dma_chunk("p0"))
    I(f"s_lshl_b32 {s(sQb)}, {s(sChunk)}, 3", f"s_add_u32 {s(sQb)}, {s(sQb)}, {s(sWave)}")
    I(f"s_lshl_b32 {s(sT)}, {s(sHead)}, 6", f"s_add_u32 {s(sT)}, {s(sT)}, {s(sQb)}", f"s_lshl_b32 {s(sT2)}, {s(sT)}, 10", f"s_add_u32 {s(sT2)}, {s(sT2)}, {LY.WS_QB0}")
    I(f"buffer_load_dwordx4 {v(Q0,4)}, {v(vL16)}, {s(SW,4)}, {s(sT2)} offen")
    I(f"v_and_b32 {v(vT)}, 31, v0", f"v_lshlrev_b32 {v(vT2)}, 2, {v(vT)}", f"s_lshl_b32 {s(sT2)}, {s(sT)}, 7", f"s_add_u32 {s(sT2)}, {s(sT2)}, {LY.WS_QB1}")
    I(f"buffer_load_dword {v(Q1a)}, {v(vT2)}, {s(SW,4)}, {s(sT2)} offen")
    I(dma_chunk("p1"))
    vPF, vDum, sPF, sPS = 132, 133, 32, 33
    if prefetch:
        I(f"s_and_b32 {s(sT)}, s2, 7", f"s_lshr_b32 {s(sT2)}, s2, 3", f"s_and_b32 {s(34)}, {s(sT2)}, 3", f"s_lshr_b32 {s(35)}, {s(sT2)}, 2",
          f"s_lshl_b32 {s(sT)}, {s(sT)}, 2", f"s_add_u32 {s(36)}, {s(sT)}, {s(34)}")
        I(f"s_cmp_ge_u32 {s(sWave)}, 4", f"s_cbranch_scc1 L_{label}_pfc")
        I(f"s_lshl_b32 {s(sT)}, {s(sWave)}, 6", f"v_add_u32 {v(vPF)}, {s(sT)}, v0", f"v_mul_u32_u24 {v(vDum)}, 2731, {v(vPF)}", f"v_lshrrev_b32 {v(vDum)}, 16, {v(vDum)}",
          f"v_mul_u32_u24 {v(vT3)}, 24, {v(vDum)}", f"v_sub_u32 {v(vPF)}, {v(vPF)}, {v(vT3)}", f"v_lshlrev_b32 {v(vPF)}, 7, {v(vPF)}",
          f"v_mul_u32_u24 {v(vDum)}, 18432, {v(vDum)}", f"v_add_u32 {v(vPF)}, {v(vPF)}, {v(vDum)}")
        I(f"s_mul_i32 {s(sPF)}, {s(34)}, {64*18432}", f"s_mul_i32 {s(sT)}, {s(35)}, 3072", f"s_add_u32 {s(sPF)}, {s(sPF)}, {s(sT)}", f"s_add_u32 {s(sPF)}, {s(sPF)}, {LY.WS_WOA}",
          f"s_mov_b32 {s(sPS)}, {9*18432}", f"s_branch L_{label}_pfd")
        I(f"L_{label}_pfc:")
        I(f"s_lshr_b32 {s(sT)}, {s(sWave)}, 1", f"s_and_b32 {s(sT)}, {s(sT)}, 1", f"s_mul_i32 {s(sT)}, {s(sT)}, 6", f"s_add_u32 {s(sT)}, {s(sT)}, {s(35)}")
        I(f"s_and_b32 {s(sT2)}, {s(sWave)}, 1", f"s_lshl_b32 {s(sT2)}, {s(sT2)}, 13", f"v_lshlrev_b32 {v(vPF)}, 7, v0", f"v_add_u32 {v(vPF)}, {s(sT2)}, {v(vPF)}")
        I(f"s_lshr_b32 {s(sT2)}, {s(sT)}, 1", f"s_lshl_b32 {s(sPF)}, {s(sT2)}, 16", f"s_and_b32 {s(sT2)}, {s(sT)}, 1", f"s_lshl_b32 {s(37)}, {s(36)}, 1", f"s_add_u32 {s(sT2)}, {s(sT2)}, {s(37)}",
          f"s_lshl_b32 {s(sT2)}, {s(sT2)}, 18", f"s_add_u32 {s(sPF)}, {s(sPF)}, {s(sT2)}", f"s_add_u32 {s(sPF)}, {s(sPF)}, {LY.WS_CTX}", f"s_mov_b32 {s(sPS)}, {9*1024}")
        I(f"s_cmp_ge_u32 {s(sT)}, 8", f"s_cselect_b32 {s(sPF)}, 0x70000000, {s(sPF)}")
        I(f"L_{label}_pfd:")
        I(f"s_cmp_ge_u32 s2, 192", f"s_cselect_b32 {s(sPF)}, 0x70000000, {s(sPF)}", f"s_cselect_b32 {s(sPS)}, 0, {s(sPS)}")
        I(f"buffer_load_dword {v(vDum)}, {v(vPF)}, {s(SW,4)}, {s(sPF)} offen", f"s_add_u32 {s(sPF)}, {s(sPF)}, {s(sPS)}")
    I(f"v_cmp_gt_u32 {s(sLo,2)}, 32, v0")
    I(f"v_mov_b32 {v(vK0)}, {v(vL16)}", f"v_lshlrev_b32 {v(vK1)}, 4, {v(vT)}", f"v_add_u32 {v(vK1)}, 8192, {v(vK1)}")
    I(f"v_lshrrev_b32 {v(vT2)}, 5, v0", f"v_mul_u32_u24 {v(vT2)}, 304, {v(vT2)}", f"v_min_u32 {v(vT3)}, 18, {v(vT)}",
      f"v_lshl_add_u32 {v(vV)}, {v(vT3)}, 4, {v(vT2)}", f"v_add_u32 {v(vV)}, 9216, {v(vV)}")
    I(f"v_add_u32 {v(vK0n)}, {SLOT}, {v(vK0)}", f"v_add_u32 {v(vK1n)}, {SLOT}, {v(vK1)}", f"s_mov_b32 {s(sSlotN)}, {SLOT}")
    for i in range(8): I(f"v_mov_b32 {v(VF[1]+i)}, 0")
    for i in range(16): I(f"v_mov_b32 {v(O+i)}, 0")
    for i in range(8): I(f"v_mov_b32 {v(P[1]+i)}, 0")
    I(f"s_mov_b32 {s(sThr)}, {f32bits(THR)}")
    I(f"s_waitcnt vmcnt({3 if prefetch else 2})", "s_barrier")
    I(f"v_cndmask_b32 {v(Q1a)}, 0, {v(Q1a)}, {s(sLo,2)}", f"v_mov_b32 {v(Q1a+1)}, 0", f"v_mov_b32 {v(Q1b)}, 0", "s_nop 0", f"v_mov_b32 {v(Q1b+1)}, {v(Q1a)}")
    def rdK(st, nxt=False):
        a0, a1 = (vK0n, vK1n) if nxt else (vK0, vK1)
        L = [f"ds_read_b128 {v(KF[st&1],4)}, {v(a0)} offset:{st*1024}"]
        if st % 4 == 0: L.append(f"ds_read_b128 {v(KL[(st>>2)&1],4)}, {v(a1)} offset:{(st>>2)*512}")
        return L
    def rdV(st):
        return [f"ds_read_b128 {v(VF[st&1],4)}, {v(vV)} offset:{(2*st)*608}", f"ds_read_b128 {v(VF[st&1]+4,4)}, {v(vV)} offset:{(2*st+1)*608}"]
    def QK(st, c=None):
        cc = v(NM,16) if c is None else c
        kl = KL[(st >> 2) & 1] + (2 if (st & 2) else 0)
        q1 = Q1b if (st & 1) else Q1a
        return [f"v_mfma_f32_32x32x8bf16_1k {v(S[st&1],16)}, {v(kl,2)}, {v(q1,2)}, {cc}",
                f"v_mfma_f32_32x32x16_bf16 {v(S[st&1],16)}, {v(KF[st&1],4)}, {v(Q0,4)}, {v(S[st&1],16)}"]
    def PV(st):
        return [f"v_mfma_f32_32x32x16_bf16 {v(O,16)}, {v(VF[st&1],4)}, {v(P[st&1],4)}, {v(O,16)}",
                f"v_mfma_f32_32x32x16_bf16 {v(O,16)}, {v(VF[st&1]+4,4)}, {v(P[st&1]+4,4)}, {v(O,16)}"]
    def SM(st):
        b, p = S[st & 1], P[st & 1]
        L = []
        for i in range(0, 16, 2):
            L += [f"v_exp_f32 {v(b+i)}, {v(b+i)}", f"v_exp_f32 {v(b+i+1)}, {v(b+i+1)}"]
            if i >= 2: L.append(f"v_cvt_pk_bf16_f32 {v(p+i//2-1)}, {v(b+i-2)}, {v(b+i-1)}")
        L += [f"v_cvt_pk_bf16_f32 {v(p+7)}, {v(b+14)}, {v(b+15)}"]
        return L
    I(rdK(0), rdK(1), "s_waitcnt lgkmcnt(0)")
    I(QK(0, c="0"))
    I("s_nop 7", "s_nop 7")
    b = S[0]
    I(f"v_max3_f32 {v(vT)}, {v(b)}, {v(b+1)}, {v(b+2)}")
    for i in range(3, 15, 2): I(f"v_max3_f32 {v(vT)}, {v(vT)}, {v(b+i)}, {v(b+i+1)}")
    I(f"v_max_f32 {v(vT)}, {v(vT)}, {v(b+15)}", f"v_mov_b32 {v(vT2)}, {v(vT)}", "s_nop 1",
      f"v_permlane32_swap_b32 {v(vT)}, {v(vT2)}", "s_nop 1", f"v_max_f32 {v(vT)}, {v(vT)}, {v(vT2)}",
      f"v_add_f32 {v(vT)}, 0x{f32bits(float(BIAS)):08x}, {v(vT)}")
    for i in range(16): I(f"v_sub_f32 {v(NM+i)}, 0, {v(vT)}")
    for i in range(16): I(f"v_sub_f32 {v(b+i)}, {v(b+i)}, {v(vT)}")
    def rare():
        L = ["s_nop 7", "s_nop 7"]
        kx, al = vT, vT2
        L += [f"v_frexp_exp_i32_f32 {v(kx)}, {v(O+10)}", f"v_add_u32 {v(kx)}, 0x{BIAS:x}, {v(kx)}", f"v_max_i32 {v(kx)}, 0, {v(kx)}",
              f"v_mov_b32 {v(vT3)}, {v(kx)}", "s_nop 1", f"v_permlane32_swap_b32 {v(kx)}, {v(vT3)}", "s_nop 1",
              f"v_cvt_f32_i32 {v(vT3)}, {v(kx)}", f"v_sub_u32 {v(al)}, 0, {v(kx)}"]
        for i in range(16): L.append(f"v_ldexp_f32 {v(O+i)}, {v(O+i)}, {v(al)}")
        for i in range(16): L.append(f"v_sub_f32 {v(NM+i)}, {v(NM+i)}, {v(vT3)}")
        for i in range(16): L.append(f"v_sub_f32 {v(S[0]+i)}, {v(S[0]+i)}, {v(vT3)}")
        for i in range(8):
            L += [f"v_lshlrev_b32 {v(vT3)}, 16, {v(P[1]+i)}", f"v_and_b32 {v(vT4)}, 0xffff0000, {v(P[1]+i)}",
                  f"v_ldexp_f32 {v(vT3)}, {v(vT3)}, {v(al)}", f"v_ldexp_f32 {v(vT4)}, {v(vT4)}, {v(al)}",
                  f"v_cvt_pk_bf16_f32 {v(P[1]+i)}, {v(vT3)}, {v(vT4)}"]
        L += ["s_nop 1"]
        return L
    def stage(u):
        pre = []
        if u == 6:
            if os.environ.get("WAITSTAT"):
                pre += ["s_memtime s[40:41]", "s_waitcnt lgkmcnt(0)", "s_waitcnt vmcnt(0)", "s_memtime s[42:43]", "s_waitcnt lgkmcnt(0)", "s_barrier", "s_memtime s[44:45]", "s_waitcnt lgkmcnt(0)",
                        "s_sub_u32 s46, s42, s40", "s_add_u32 s48, s48, s46", "s_sub_u32 s46, s44, s42", "s_add_u32 s49, s49, s46"]
            else: pre += ["s_waitcnt vmcnt(0)", "s_barrier"]
        sm = SM(u)
        kload = rdK((u + 2) % 8, nxt=(u >= 6))
        loads = kload + rdV(u)
        m = QK((u + 1) % 8) + PV((u + 7) % 8)
        if os.environ.get("BPRIO"):
            m = [[f"s_setprio {os.environ['BPRIO']}", x, "s_setprio 0"] for x in m]
        else: m = [[x] for x in m]
        out = list(pre) + ["s_waitcnt lgkmcnt(0)"]
        ins = {0: m[0], 4: m[1], 7: loads[:2], 10: m[2], 13: loads[2:], 16: m[3]}
        if u == 6: ins[19] = ["@DMA"]
        if u == 0 and prefetch: ins[2] = [f"buffer_load_dword {v(vDum)}, {v(vPF)}, {s(SW,4)}, {s(sPF)} offen", f"s_add_u32 {s(sPF)}, {s(sPF)}, {s(sPS)}"]
        for i, l in enumerate(sm):
            if i == len(sm) - 1 and u != 7: pass
            out.append(l); out += ins.get(i, [])
        return out
    k.stamp(1)
    if os.environ.get("WAITSTAT"): I("s_mov_b32 s48, 0", "s_mov_b32 s49, 0")
    I(f"s_mov_b32 {s(sIt)}, 0")
    I(f"L_{label}_loop:")
    I(f"v_cmp_lt_f32 vcc, {s(sThr)}, {v(O+10)}", f"s_cbranch_vccnz L_{label}_rare" if not ex else "s_nop 0", f"L_{label}_rare_ret:")
    body = []
    for u in range(8): body += stage(u)
    full = []
    for l in body:
        if l == "@DMA":
            full += [f"s_cmp_ge_u32 {s(sIt)}, 6", f"s_cbranch_scc1 L_{label}_nodma"] + dma_chunk("lp") + [f"L_{label}_nodma:"]
        else: full.append(l)
    def keep(l):
        if "nolds" in ex and (l.startswith("ds_read")): return False
        if "nomfma" in ex and l.startswith("v_mfma"): return False
        if "nocvt" in ex and l.startswith("v_cvt_pk"): return False
        if "noexp" in ex and l.startswith("v_exp"): return False
        if "nobar" in ex and l.startswith("s_barrier"): return False
        return True
    I([l for l in full if keep(l)])
    I(f"s_add_u32 {s(sSlotN)}, {s(sSlotN)}, {SLOT}", f"s_cmp_ge_u32 {s(sSlotN)}, {3*SLOT}", f"s_cselect_b32 {s(sT)}, {3*SLOT}, 0", f"s_sub_u32 {s(sSlotN)}, {s(sSlotN)}, {s(sT)}",
      f"s_sub_u32 {s(sT)}, {SLOT}, {s(sT)}")
    I(f"v_sub_u32 {v(vT)}, {v(vK0n)}, {v(vK0)}", f"v_add_u32 {v(vV)}, {v(vV)}, {v(vT)}",
      f"v_mov_b32 {v(vK0)}, {v(vK0n)}", f"v_mov_b32 {v(vK1)}, {v(vK1n)}",
      f"v_add_u32 {v(vK0n)}, {s(sT)}, {v(vK0n)}", f"v_add_u32 {v(vK1n)}, {s(sT)}, {v(vK1n)}")
    I(f"s_add_u32 {s(sIt)}, {s(sIt)}, 1", f"s_cmp_lt_u32 {s(sIt)}, 8", f"s_cbranch_scc1 L_{label}_loop")
    nb = [l for l in body if l != "@DMA"]
    chk = [f"v_cmp_lt_f32 vcc, {s(sThr)}, {v(O+10)}"]
    if not os.environ.get("WAITSTAT"): check(rdK(0) + rdK(1) + ["s_waitcnt lgkmcnt(0)"] + QK(0) + ["s_nop 7", "s_nop 7"] + nb + ["s_nop 3"] * 3 + chk + nb, "attb_loop")
    gap_report(nb, "attb_loop")
    k.stamp(2)
    I(PV(7))
    I("s_nop 7", "s_nop 7")
    I(f"v_mov_b32 {v(vT)}, 0")
    for i in range(11): I(f"v_fma_f32 {v(vT)}, {v(O+i)}, 0, {v(vT)}")
    I(f"v_cmp_u_f32 vcc, {v(vT)}, {v(vT)}", f"s_cbranch_vccnz L_{label}_slow" if not ex else "s_nop 0", f"L_{label}_epi:")
    I(f"v_lshlrev_b32 {v(vT4)}, 4, v0", f"v_and_b32 {v(vT4)}, 0x1ff, {v(vT4)}")
    I(f"s_lshr_b32 {s(sT)}, {s(sHead)}, 3", f"s_add_u32 {s(sT)}, {s(sT)}, 32", f"s_lshl_b32 {s(sT)}, {s(sT)}, 10",
      f"s_lshr_b32 {s(sT2)}, {s(sHead)}, 2", f"s_and_b32 {s(sT2)}, {s(sT2)}, 1", f"s_lshl_b32 {s(sT2)}, {s(sT2)}, 9", f"s_add_u32 {s(sT)}, {s(sT)}, {s(sT2)}",
      f"s_and_b32 {s(sT2)}, {s(sHead)}, 3", f"s_lshl_b32 {s(sT2)}, {s(sT2)}, 2", f"s_add_u32 {s(sT)}, {s(sT)}, {s(sT2)}")
    I(f"s_mul_i32 {s(sT2)}, {s(sQb)}, 36864", f"s_add_u32 {s(sT2)}, {s(sT2)}, {LY.WS_OB}", f"s_add_u32 {s(sDma)}, {s(sT2)}, {s(sT)}",
      f"s_lshl_b32 {s(sT)}, {s(sHead)}, 10", f"s_add_u32 {s(sM0)}, {s(sT2)}, {s(sT)}")
    I(f"v_mov_b32 {v(vT)}, {v(O+10)}", f"v_mov_b32 {v(vT2)}, {v(O+10)}", "s_nop 1", f"v_permlane32_swap_b32 {v(vT)}, {v(vT2)}", "s_nop 1",
      f"v_rcp_f32 {v(vT)}, {v(vT)}", "s_nop 0")
    for i in range(10): I(f"v_mul_f32 {v(O+i)}, {v(vT)}, {v(O+i)}")
    for i in range(5): I(f"v_cvt_pk_bf16_f32 {v(P[0]+i)}, {v(O+2*i)}, {v(O+2*i+1)}")
    fl = " sc1" if handoff else ""
    I(f"buffer_store_dwordx4 {v(P[0],4)}, {v(vL16)}, {s(SW,4)}, {s(sM0)} offen{fl}")
    I(f"s_mov_b64 exec, {s(sLo,2)}", f"buffer_store_dword {v(P[0]+4)}, {v(vT4)}, {s(SW,4)}, {s(sDma)} offen{fl}", "s_mov_b64 exec, -1")
    k.stamp(3)
    if os.environ.get("WAITSTAT"): k.stampval(4, "s48"); k.stampval(5, "s49")
    if handoff: handoff(sWave, sChunk)
    else: I("s_endpgm")
    I(f"L_{label}_rare:"); I(rare()); I(f"s_branch L_{label}_rare_ret")
    I(f"L_{label}_slow:")
    vM, vA, vMx, vOffV, vOffK1 = NM, NM + 2, NM + 3, NM + 4, NM + 5
    I(f"v_and_b32 {v(vT)}, 31, v0", f"v_lshlrev_b32 {v(vOffK1)}, 4, {v(vT)}", f"v_add_u32 {v(vOffK1)}, 8192, {v(vOffK1)}",
      f"v_lshrrev_b32 {v(vT2)}, 5, v0", f"v_mul_u32_u24 {v(vT2)}, 304, {v(vT2)}", f"v_min_u32 {v(vT3)}, 18, {v(vT)}", f"v_lshl_add_u32 {v(vOffV)}, {v(vT3)}, 4, {v(vT2)}",
      f"v_add_u32 {v(vOffV)}, 9216, {v(vOffV)}")
    I(f"v_mov_b32 {v(vM)}, 0xff7fffff", f"v_mov_b32 {v(KL[0]+1)}, 0")
    for i in range(16): I(f"v_mov_b32 {v(O+i)}, 0")
    I(f"s_mov_b32 {s(sIt)}, 0")
    I(f"L_{label}_slow_loop:")
    sA, sB, sC = sDma, sM0, sSlotN
    I(f"s_mul_i32 {s(sA)}, {s(sHead)}, {LY.HEADB}", f"s_add_u32 {s(sA)}, {s(sA)}, {LY.WS_KVB}", f"s_lshr_b32 {s(sT)}, {s(sIt)}, 3", f"s_mul_i32 {s(sT)}, {s(sT)}, {CH}",
      f"s_add_u32 {s(sA)}, {s(sA)}, {s(sT)}", f"s_and_b32 {s(sT)}, {s(sIt)}, 7",
      f"s_lshr_b32 {s(sT2)}, {s(sT)}, 2", f"s_lshl_b32 {s(sT2)}, {s(sT2)}, 9", f"s_add_u32 {s(sB)}, {s(sA)}, {s(sT2)}", f"s_and_b32 {s(sT2)}, {s(sT)}, 3", f"s_lshl_b32 {s(sT2)}, {s(sT2)}, 2", f"s_add_u32 {s(sB)}, {s(sB)}, {s(sT2)}",
      f"s_mul_i32 {s(sT2)}, {s(sT)}, 1216", f"s_add_u32 {s(sC)}, {s(sA)}, {s(sT2)}",
      f"s_lshl_b32 {s(sT)}, {s(sT)}, 10", f"s_add_u32 {s(sA)}, {s(sA)}, {s(sT)}")
    I(f"buffer_load_dwordx4 {v(KF[0],4)}, {v(vL16)}, {s(SW,4)}, {s(sA)} offen", f"buffer_load_dword {v(KL[0])}, {v(vOffK1)}, {s(SW,4)}, {s(sB)} offen",
      f"buffer_load_dwordx4 {v(VF[0],4)}, {v(vOffV)}, {s(SW,4)}, {s(sC)} offen", f"buffer_load_dwordx4 {v(VF[0]+4,4)}, {v(vOffV)}, {s(SW,4)}, {s(sC)} offen offset:608",
      "s_waitcnt vmcnt(0)")
    b = S[0]
    I(QK(0, c="0"), "s_nop 7", "s_nop 7")
    I(f"v_max3_f32 {v(vMx)}, {v(b)}, {v(b+1)}, {v(b+2)}")
    for i in range(3, 15, 2): I(f"v_max3_f32 {v(vMx)}, {v(vMx)}, {v(b+i)}, {v(b+i+1)}")
    I(f"v_max3_f32 {v(vMx)}, {v(vMx)}, {v(b+15)}, {v(vM)}", f"v_mov_b32 {v(vT2)}, {v(vMx)}", "s_nop 1",
      f"v_permlane32_swap_b32 {v(vMx)}, {v(vT2)}", "s_nop 1", f"v_max_f32 {v(vMx)}, {v(vMx)}, {v(vT2)}",
      f"v_sub_f32 {v(vA)}, {v(vM)}, {v(vMx)}", f"v_exp_f32 {v(vA)}, {v(vA)}", f"v_mov_b32 {v(vM)}, {v(vMx)}")
    for i in range(16): I(f"v_sub_f32 {v(b+i)}, {v(b+i)}, {v(vMx)}")
    for i in range(16): I(f"v_exp_f32 {v(b+i)}, {v(b+i)}")
    for i in range(16): I(f"v_mul_f32 {v(O+i)}, {v(vA)}, {v(O+i)}")
    for i in range(8): I(f"v_cvt_pk_bf16_f32 {v(P[0]+i)}, {v(b+2*i)}, {v(b+2*i+1)}")
    I("s_nop 1", PV(0), "s_nop 7", "s_nop 7")
    I(f"s_add_u32 {s(sIt)}, {s(sIt)}, 1", f"s_cmp_lt_u32 {s(sIt)}, 64", f"s_cbranch_scc1 L_{label}_slow_loop", f"s_branch L_{label}_epi")
```

```python
from gen_common import *
from gen_attb import gen_attb, LDS_B
from gen_oproj import oproj_tile
from gen_relayout import relayout_wob
import os
LDS_M = LDS_B + 98304
FUSE_OB = not os.environ.get("NOFUSE")

def opb_job(k):
    I = k.I
    SW, SO = 4, 8
    sC, sW, sT, sT2, sQb, sNt, sKh, sP = 16, 17, 18, 19, 20, 22, 23, 24
    vL16, vRow, vT, vA = 1, 2, 3, 4
    ACC, BUF, D, NK = 8, 56, 6, 18
    I("s_load_dwordx2 s[12:13], s[0:1], 88", "s_load_dwordx2 s[14:15], s[0:1], 72")
    I(f"v_lshlrev_b32 {v(vL16)}, 4, v0", f"v_and_b32 {v(vT)}, 31, v0", f"v_mul_u32_u24 {v(vRow)}, 2304, {v(vT)}", f"v_lshrrev_b32 {v(vT)}, 5, v0", f"v_lshl_add_u32 {v(vRow)}, {v(vT)}, 3, {v(vRow)}")
    I(f"s_sub_u32 {s(sT)}, s2, 192", f"s_lshr_b32 {s(sQb)}, {s(sT)}, 3", f"s_lshl_b32 {s(sQb)}, {s(sQb)}, 3", f"s_and_b32 {s(sT)}, {s(sT)}, 7", f"s_mul_i32 {s(sT)}, {s(sT)}, 6",
      f"s_lshr_b32 {s(sP)}, s21, 1", f"s_and_b32 {s(sKh)}, s21, 1", f"s_add_u32 {s(sT)}, {s(sT)}, {s(sP)}",
      f"s_and_b32 {s(sT2)}, {s(sT)}, 1", f"s_add_u32 {s(sQb)}, {s(sQb)}, {s(sT2)}", f"s_lshr_b32 {s(sT)}, {s(sT)}, 1",
      f"s_mul_i32 {s(sT2)}, {s(sT)}, 43", f"s_lshr_b32 {s(sT2)}, {s(sT2)}, 8",
      f"s_mul_i32 {s(sNt)}, {s(sT2)}, 6", f"s_sub_u32 {s(sNt)}, {s(sT)}, {s(sNt)}", f"s_lshl_b32 {s(sT2)}, {s(sT2)}, 1", f"s_add_u32 {s(sQb)}, {s(sQb)}, {s(sT2)}")
    I("s_waitcnt lgkmcnt(0)")
    k.srd(SW, 12, LY.WS_END); k.srd(SO, 14, 2048 * 2304)
    I(f"s_mul_i32 {s(sC)}, {s(sQb)}, 36864", f"s_mul_i32 {s(sT)}, {s(sKh)}, {18*1024}", f"s_add_u32 {s(sC)}, {s(sC)}, {s(sT)}", f"s_add_u32 {s(sC)}, {s(sC)}, {LY.WS_OB}")
    I(f"s_mul_i32 {s(sW)}, {s(sKh)}, {18*18432}", f"s_mul_i32 {s(sT)}, {s(sNt)}, 3072", f"s_add_u32 {s(sW)}, {s(sW)}, {s(sT)}", f"s_add_u32 {s(sW)}, {s(sW)}, {LY.WS_WOB}")
    def buf(j, f): return v(BUF + (j * 4 + f) * 4, 4)
    def loads(j):
        L = [f"buffer_load_dwordx4 {buf(j,0)}, {v(vL16)}, {s(SW,4)}, {s(sC)} offen sc1"]
        for t in range(3): L.append(f"buffer_load_dwordx4 {buf(j,1+t)}, {v(vL16)}, {s(SW,4)}, {s(sW)} offen" + (f" offset:{t*1024}" if t else "") + " sc1")
        return L + [f"s_add_u32 {s(sC)}, {s(sC)}, 1024", f"s_add_u32 {s(sW)}, {s(sW)}, 18432"]
    seq = []
    for j in range(D): seq += loads(j)
    for ks in range(NK):
        j = ks % D
        seq.append(f"s_waitcnt vmcnt({4*min(D-1, NK-1-ks)})")
        for tn in range(3):
            ac = v(ACC + tn * 16, 16)
            seq.append(f"v_mfma_f32_32x32x16_bf16 {ac}, {buf(j,1+tn)}, {buf(j,0)}, {'0' if ks == 0 else ac}")
        if ks + D < NK: seq += loads(j)
    I(seq); check(seq, "opb_job")
    I("s_nop 7", "s_nop 7")
    I(f"s_mul_i32 {s(sT)}, {s(sP)}, 12288", f"s_add_u32 {s(sT)}, {s(sT)}, {LDS_B}", f"v_add_u32 {v(vA)}, {s(sT)}, {v(vL16)}")
    I(f"s_cmp_eq_u32 {s(sKh)}, 0", "s_cbranch_scc1 L_ob_w0")
    for u in range(12): I(f"ds_write_b128 {v(vA)}, {v(ACC + u*4, 4)} offset:{u*1024}")
    I("s_waitcnt lgkmcnt(0)", "s_barrier", "s_endpgm")
    I("L_ob_w0:", "s_barrier")
    for u in range(12): I(f"ds_read_b128 {v(BUF + u*4, 4)}, {v(vA)} offset:{u*1024}")
    I(f"s_mul_i32 {s(sT)}, {s(sQb)}, {32*2304}", f"s_mul_i32 {s(sT2)}, {s(sNt)}, 192", f"s_add_u32 {s(sT)}, {s(sT)}, {s(sT2)}", f"s_add_u32 {s(sT)}, {s(sT)}, 1152")
    I("s_waitcnt lgkmcnt(0)")
    for u in range(12):
        b = ACC + u * 4
        for e in range(4): I(f"v_add_f32 {v(b+e)}, {v(b+e)}, {v(BUF + u*4 + e)}")
        I(f"v_cvt_pk_bf16_f32 {v(b)}, {v(b)}, {v(b+1)}", f"v_cvt_pk_bf16_f32 {v(b+1)}, {v(b+2)}, {v(b+3)}")
        I(f"buffer_store_dwordx2 {v(b,2)}, {v(vRow)}, {s(SO,4)}, {s(sT)} offen offset:{(u >> 2)*64 + (u & 3)*16}")
    I("s_endpgm")

def gen_mix():
    k = Kern("mix_kernel", nvgpr=168, accum=168); k.stamp_base = 131072
    I = k.I
    k.sv = (164, 166)
    I("s_cmp_ge_u32 s2, 256", "s_cbranch_scc1 L_mix_end")
    I("v_lshrrev_b32 v3, 6, v0", "s_nop 0", "v_readfirstlane_b32 s21, v3", "s_cmp_ge_u32 s21, 8", "s_cbranch_scc1 L_mix_O")
    k.stamp(0)
    I("s_lshr_b32 s3, s2, 3", "s_lshl_b32 s3, s3, 3", "s_add_u32 s3, s3, s21", "v_and_b32 v162, 63, v0", "v_mov_b32 v163, v0", "v_mov_b32 v0, v162")
    k.code_prefetch("mx", "mix_kernel", "L_end_mix_kernel", 8, 3, 8, 160, True)
    I("v_mov_b32 v0, v163")
    SD = 40
    def signal(sWave, sChunk, consumer):
        I(f"s_cmp_lg_u32 {s(sWave)}, 0", f"s_cbranch_scc1 L_mix_nosig{consumer}")
        I("s_load_dwordx2 s[44:45], s[0:1], 80", "s_waitcnt lgkmcnt(0)")
        k.srd(SD, 44, 256)
        I(f"s_lshl_b32 s46, {s(sChunk)}, 2", "v_mov_b32 v2, 1", "v_mov_b32 v3, 0", "s_mov_b64 exec, 1")
        I(f"buffer_atomic_add v2, v3, {s(SD,4)}, s46 offen sc1")
        if consumer:
            I(f"buffer_atomic_add v2, v3, {s(SD,4)}, 0 offen offset:32 sc1")
        I("s_mov_b64 exec, -1")
        if consumer:
            I("s_sub_u32 s46, s2, 192", "s_lshr_b32 s46, s46, 3", "s_lshl_b32 s46, s46, 2", "s_mov_b32 s47, 0x400000")
            I("L_mix_poll:")
            I(f"buffer_load_dword v4, v3, {s(SD,4)}, s46 offen sc1", f"buffer_load_dword v5, v3, {s(SD,4)}, 0 offen offset:32 sc1", "s_waitcnt vmcnt(0)",
              "v_readfirstlane_b32 s48, v4", "v_readfirstlane_b32 s49, v5", "s_sub_u32 s47, s47, 1", "s_cmp_eq_u32 s47, 0", "s_cbranch_scc1 L_mix_polled",
              "s_cmp_lt_u32 s48, 32", "s_cselect_b32 s50, 1, 0", "s_cmp_lt_u32 s49, 64", "s_cselect_b32 s51, 1, 0", "s_or_b32 s50, s50, s51", "s_cbranch_scc0 L_mix_polled",
              "s_sleep 2", "s_branch L_mix_poll")
            I("L_mix_polled:")
        I(f"L_mix_nosig{consumer}:")
    def handoff(sWave, sChunk):
        I("s_waitcnt vmcnt(0)", "s_barrier")
        I("s_cmp_ge_u32 s2, 192", "s_cbranch_scc1 L_mix_cons")
        signal(sWave, sChunk, 0)
        I("s_endpgm")
        I("L_mix_cons:")
        signal(sWave, sChunk, 1)
        I(f"s_mov_b32 s21, {s(sWave)}", "s_branch L_mix_job")
    gen_attb(k, prefetch=bool(os.environ.get('MIXPF')), handoff=handoff if FUSE_OB else None)
    I("L_mix_O:", "s_cmp_ge_u32 s2, 192", "s_cbranch_scc1 L_mix_W")
    I("s_sub_u32 s21, s21, 8", "v_and_b32 v0, 63, v0")
    oproj_tile(k, "M", True, 3, barriers=[int(x) for x in os.environ.get('OBAR', '4,12,19,27,34,42,49,57,64').split(',')], wave_reg=21, lds_base=LDS_B, ACC=10, BUF=106, prio=int(os.environ.get("OPRIO", 0)))
    I("s_endpgm")
    I("L_mix_W:", "v_and_b32 v0, 63, v0", "s_sub_u32 s20, s2, 192", "s_lshl_b32 s20, s20, 2", "s_add_u32 s20, s20, s21", "s_sub_u32 s20, s20, 8")
    I("s_load_dwordx2 s[12:13], s[0:1], 88", "v_lshlrev_b32 v1, 4, v0", "s_waitcnt lgkmcnt(0)")
    k.srd(4, 12, LY.WS_END)
    relayout_wob(k, 20, 1, 4, 256, fl=" sc1" if FUSE_OB else "")
    if FUSE_OB:
        I("s_waitcnt vmcnt(0)")
        for i in range(10): I("s_barrier")
        I("L_mix_job:", "s_barrier")
        opb_job(k)
    I("L_mix_end:", "s_endpgm")
    return k
```

```python
from gen_common import *
import struct, os
def f32bits(x): return struct.unpack("<I", struct.pack("<f", x))[0]
RB, PB = 0, 65536
LDS_P = 163840
OOB = 0xF0000000
STF = ' ' + os.environ.get('STF', 'sc1')
STQ = ' ' + os.environ.get('STQ', 'sc1')
STAGES = []
kk = 0
for grp in range(4):
    STAGES += [("K", kk), ("K", kk + 1), ("B", 2 * grp), ("B", 2 * grp + 1)]; kk += 2
STAGES += [("K", 8), ("K", 9), ("B", 8)] + [("K", i) for i in range(10, 16)]
GQ = len(STAGES)
QFUSE = not os.environ.get("NOQFUSE")
if not QFUSE: STAGES += [("Q", i) for i in range(9)]
GE = len(STAGES)
PITEMS = []
STAGE_P = []
for g_, (ph_, i_) in enumerate(STAGES):
    it = ("K", i_ >> 1) if ph_ == "K" else (("B", i_ >> 1) if ph_ == "B" else ("Q", i_))
    if it not in PITEMS: PITEMS.append(it)
    STAGE_P.append(PITEMS.index(it))
UE = len(PITEMS)
LAST_USER = [max(g_ for g_, u_ in enumerate(STAGE_P) if u_ == u) for u in range(UE)]
def ph(g): return STAGES[g][0]
def ix(g): return STAGES[g][1]

def csel(dst, x, y):
    return [f"s_mov_b32 {s(dst)}, {y}", f"s_cselect_b32 {s(dst)}, {x}, {s(dst)}"]

def gen_proj():
    k = Kern("proj_kernel", nvgpr=512, accum=256); k.sv = (38, 1)
    I = k.I
    SXKV, SWKV, SXQ, SWQ, SXB, SWB, SWS, SWOA, SWOB = 8, 12, 16, 20, 24, 28, 32, 36, 40
    (sWave, sT, sT2, sT3, sXcd, sJ, sIsV, sBt, sWm, sWn, sXkvB, sWkvB, sXqB, sWqB, sXbB, sWbB, sM1024, sM2048) = range(68, 86)
    sBsc = 57
    sQout, sCA, sNtB, sMtB, sF = 52, 53, 54, 55, 56
    sKVo = 44
    vXa, vXb, vW, vWB = 2, 4, 6, 8
    aXP, aXP2, aWR, aXR, aWP, aWP2, aXB, aWB, aWB2, vL16 = 9, 13, 17, 21, 25, 27, 29, 33, 35, 37
    vT, vT2 = 38, 39
    XF = [40, 56]; WF = [72, 88]; TT = 104; UU = 120
    BA = 128; BADR = 192; BONE = 224; BTMP = 232; PFV = 244; QA = 128
    I("s_cmp_ge_u32 s2, 256", "s_cbranch_scc1 L_pj_end")
    k.stamp(0)
    I("s_load_dwordx16 s[48:63], s[0:1], 0", "s_load_dwordx2 s[64:65], s[0:1], 64", "s_load_dwordx2 s[66:67], s[0:1], 88")
    I(f"v_lshrrev_b32 {v(vT)}, 6, v0", "v_and_b32 v0, 63, v0", "s_nop 0", f"v_readfirstlane_b32 {s(sWave)}, {v(vT)}")
    I(f"s_and_b32 {s(sXcd)}, s2, 7", f"s_lshr_b32 {s(sJ)}, s2, 3")
    I(f"s_lshl_b32 s3, {s(sJ)}, 2", f"s_add_u32 s3, s3, {s(sWave)}")
    k.code_prefetch("pj", "proj_kernel", "L_end_proj_kernel", 7, 3, 4, 250, True)
    I(f"s_lshl_b32 s3, s2, 2", f"s_add_u32 s3, s3, {s(sWave)}")
    k.code_prefetch("pj2", "atta_kernel", "L_end_mix_kernel" if os.environ.get("FUSE") else "L_end_oprojb_kernel", 10, 3, 4, 252, False)
    def xoff(dst, stride, par):
        I(f"v_lshrrev_b32 {v(vT)}, 4, v0", f"v_add_u32 {v(vT)}, {4*par}, {v(vT)}", f"v_and_b32 {v(vT2)}, 7, v0", f"v_xor_b32 {v(vT)}, {v(vT)}, {v(vT2)}",
          f"v_lshlrev_b32 {v(vT)}, 4, {v(vT)}", f"v_lshrrev_b32 {v(vT2)}, 3, v0", f"v_mul_u32_u24 {v(vT2)}, {stride}, {v(vT2)}", f"v_add_u32 {v(dst)}, {v(vT)}, {v(vT2)}")
    for par in range(2):
        xoff(vXa + par, 1024, par)
        I(f"v_lshrrev_b32 {v(vT)}, 5, v0", f"v_add_u32 {v(vT2)}, {2*par}, {v(vT)}", f"v_lshlrev_b32 {v(vT2)}, 2, {v(vT2)}", f"v_and_b32 {v(vW+par)}, 31, v0",
          f"v_xor_b32 {v(vW+par)}, {v(vW+par)}, {v(vT2)}", f"v_lshlrev_b32 {v(vW+par)}, 4, {v(vW+par)}", f"v_lshlrev_b32 {v(vT)}, 13, {v(vT)}", f"v_add_u32 {v(vW+par)}, {v(vW+par)}, {v(vT)}")
    I(f"s_lshl_b32 {s(sM1024)}, {s(sWave)}, 12", f"s_lshl_b32 {s(sM2048)}, {s(sWave)}, 13")
    sRh, sCq, sMtK, sNtK = 86, 87, 92, 93
    I(f"s_and_b32 {s(sRh)}, {s(sXcd)}, 1", f"s_lshr_b32 {s(sCq)}, {s(sXcd)}, 1")
    I(f"s_and_b32 {s(sMtK)}, {s(sJ)}, 3", f"s_lshl_b32 {s(sT)}, {s(sRh)}, 2", f"s_add_u32 {s(sMtK)}, {s(sMtK)}, {s(sT)}",
      f"s_lshr_b32 {s(sNtK)}, {s(sJ)}, 2", f"s_lshl_b32 {s(sT)}, {s(sCq)}, 3", f"s_add_u32 {s(sNtK)}, {s(sNtK)}, {s(sT)}",
      f"s_lshr_b32 {s(sIsV)}, {s(sNtK)}, 4", f"s_and_b32 {s(sNtK)}, {s(sNtK)}, 15")
    I(f"s_lshl_b32 {s(sXkvB)}, {s(sMtK)}, 18", f"s_lshl_b32 {s(sT)}, {s(sWave)}, 16", f"s_add_u32 {s(sXkvB)}, {s(sXkvB)}, {s(sT)}")
    I(f"s_lshl_b32 {s(sWkvB)}, {s(sWave)}, 16", f"s_lshl_b32 {s(sT)}, {s(sNtK)}, 9", f"s_add_u32 {s(sWkvB)}, {s(sWkvB)}, {s(sT)}")
    I("s_waitcnt lgkmcnt(0)")
    I(f"s_cmp_eq_u32 {s(sIsV)}, 0", f"s_cselect_b32 {s(SWKV)}, s54, s56", f"s_cselect_b32 {s(SWKV+1)}, s55, s57",
      f"s_mov_b32 {s(SWKV+2)}, {512*8192}", f"s_mov_b32 {s(SWKV+3)}, 0x00020000")
    k.srd(SXKV, 50, 2048 * 1024)
    def dma(vreg, srd, sbase, soff, ldsreg, ldsoff):
        return [f"s_add_u32 m0, {s(ldsreg)}, {ldsoff}", f"s_add_u32 {s(sT)}, {s(sbase)}, {soff}", f"buffer_load_dwordx4 {v(vreg)}, {s(srd,4)}, {s(sT)} offen lds"]
    def Ritem(g):
        slot = RB + (g % 4) * 16384
        if ph(g) == "B":
            return [dma(vXb + (j & 1), SXB, sXbB, ix(g) * 128 + j * 8 * 1152, sM1024, slot + j * 1024) for j in range(4)]
        if ph(g) == "K":
            return [dma(vW + (j & 1), SWKV, sWkvB, (32 * ix(g) + 2 * j) * 8192, sM1024, slot + j * 1024) for j in range(4)]
        return [dma(vXb + (j & 1), SXQ, sXqB, ix(g) * 128 + j * 8 * 1152, sM1024, slot + j * 1024) for j in range(4)]
    def Pitem(u):
        slot = PB + (u % 3) * 32768
        kind, i = PITEMS[u]
        if kind == "B":
            o = []
            for tt in (2 * i, 2 * i + 1):
                if tt < 9: o += [dma(vWB, SWB, sWbB, (64 * tt + 4 * j) * 3456, sM1024, slot + (tt & 1) * 16384 + j * 1024) for j in range(4)]
            return o
        if kind == "K":
            return [dma(vXa + (j & 1), SXKV, sXkvB, i * 128 + j * 8 * 1024, sM2048, slot + j * 1024) for j in range(8)]
        return [dma(vW + (j & 1), SWQ, sWqB, (64 * i + 2 * j) * 8192, sM2048, slot + j * 1024) for j in range(8)]
    vmlog = []
    def issue(order):
        for kind, idx in order:
            for d in (Ritem(idx) if kind == "R" else Pitem(idx)):
                I(d); vmlog.append((kind, idx))
    if not os.environ.get("NOCPF"): vmlog += [("E", 0), ("E", 0)]
    issue([("R", 0), ("P", 0), ("R", 1)])
    I(f"v_lshlrev_b32 {v(vL16)}, 4, v0")
    for par in range(2): xoff(vXb + par, 1152, par)
    I(f"v_lshrrev_b32 {v(vT)}, 4, v0", f"v_lshlrev_b32 {v(vT2)}, 2, {v(vT)}", f"v_and_b32 {v(vWB)}, 15, v0", f"v_xor_b32 {v(vWB)}, {v(vWB)}, {v(vT2)}",
      f"v_lshlrev_b32 {v(vWB)}, 4, {v(vWB)}", f"v_mul_u32_u24 {v(vT)}, 3456, {v(vT)}", f"v_add_u32 {v(vWB)}, {v(vWB)}, {v(vT)}")
    k.srd(SXB, 60, 2048 * 1152); k.srd(SWB, 62, 576 * 3456); k.srd(SXQ, 48, 2048 * 1152); k.srd(SWQ, 52, 576 * 8192)
    k.srd(SWS, 66, LY.WS_END); k.srd(SWOA, 58, 4096 * 1152); k.srd(SWOB, 64, 576 * 1152)
    I(f"s_lshr_b32 {s(sWm)}, {s(sWave)}, 1", f"s_and_b32 {s(sWn)}, {s(sWave)}, 1")
    sMt, sN0 = sT2, sT3
    I(f"s_lshl_b32 {s(sT)}, {s(sNtK)}, 1", f"s_add_u32 {s(sT)}, {s(sT)}, {s(sWn)}", f"s_lshl_b32 {s(sT)}, {s(sT)}, 19", f"s_lshl_b32 {s(sF)}, {s(sMtK)}, 3", f"s_lshl_b32 {s(sMt)}, {s(sWm)}, 2", f"s_add_u32 {s(sF)}, {s(sF)}, {s(sMt)}",
      f"s_lshl_b32 {s(sF)}, {s(sF)}, 13", f"s_add_u32 {s(sT)}, {s(sT)}, {s(sF)}")
    I(f"s_cmp_eq_u32 {s(sIsV)}, 0", csel(sF, LY.WS_KA, LY.WS_VA), csel(sMt, 2048, 1024), csel(sN0, 1024, 4096), f"s_add_u32 {s(sT)}, {s(sT)}, {s(sF)}")
    for tn in range(4):
        I(f"s_mul_i32 {s(sF)}, {s(sMt)}, {tn}", f"s_add_u32 {s(sKVo+2*tn)}, {s(sT)}, {s(sF)}", f"s_add_u32 {s(sKVo+2*tn+1)}, {s(sKVo+2*tn)}, {s(sN0)}")
    I(f"s_and_b32 {s(sMt)}, {s(sJ)}, 7", f"s_lshl_b32 {s(sT)}, {s(sRh)}, 3", f"s_add_u32 {s(sMt)}, {s(sMt)}, {s(sT)}",
      f"s_lshr_b32 {s(sN0)}, {s(sJ)}, 3", f"s_lshl_b32 {s(sT)}, {s(sCq)}, 2", f"s_add_u32 {s(sN0)}, {s(sN0)}, {s(sT)}")
    I(f"s_lshl_b32 {s(sT)}, {s(sMt)}, 2", f"s_add_u32 {s(sT)}, {s(sT)}, {s(sWave)}", f"s_mul_i32 {s(sXqB)}, {s(sT)}, {32*1152}")
    I(f"s_lshl_b32 {s(sWqB)}, {s(sWave)}, 17", f"s_lshl_b32 {s(sT)}, {s(sN0)}, 9", f"s_add_u32 {s(sWqB)}, {s(sWqB)}, {s(sT)}")
    I(f"s_lshl_b32 {s(sT)}, {s(sN0)}, 1", f"s_add_u32 {s(sT)}, {s(sT)}, {s(sWm)}", f"s_lshl_b32 {s(sT)}, {s(sT)}, 19", f"s_lshl_b32 {s(sF)}, {s(sMt)}, 15", f"s_add_u32 {s(sT)}, {s(sT)}, {s(sF)}",
      f"s_lshl_b32 {s(sF)}, {s(sWn)}, 12", f"s_add_u32 {s(sT)}, {s(sT)}, {s(sF)}", f"s_add_u32 {s(sQout)}, {s(sT)}, {LY.WS_QA}")
    I(f"s_mov_b32 {s(sCA)}, 0x{f32bits(LY.CA):08x}")
    I(f"s_and_b32 {s(sMtB)}, {s(sJ)}, 7", f"s_lshl_b32 {s(sT)}, {s(sRh)}, 3", f"s_add_u32 {s(sMtB)}, {s(sMtB)}, {s(sT)}")
    I(f"s_lshl_b32 {s(sNtB)}, {s(sCq)}, 2", f"s_cmp_eq_u32 {s(sCq)}, 3", f"s_cselect_b32 {s(sT)}, 1, 0", f"s_sub_u32 {s(sNtB)}, {s(sNtB)}, {s(sT)}",
      f"s_lshr_b32 {s(sT)}, {s(sJ)}, 3", f"s_add_u32 {s(sNtB)}, {s(sNtB)}, {s(sT)}")
    I(f"s_cmp_ge_u32 {s(sNtB)}, 9", f"s_cselect_b32 {s(sBt)}, 1, 0", f"s_cmp_ge_u32 {s(sCq)}, 2", f"s_cselect_b32 {s(sF)}, 3, 99", f"s_cmp_eq_u32 {s(sT)}, {s(sF)}", f"s_cselect_b32 {s(sBt)}, 2, {s(sBt)}")
    I(f"s_lshl_b32 {s(sT)}, {s(sMtB)}, 2", f"s_add_u32 {s(sT)}, {s(sT)}, {s(sWave)}", f"s_mul_i32 {s(sXbB)}, {s(sT)}, {32*1152}")
    I(f"s_mul_i32 {s(sWbB)}, {s(sWave)}, {16*3456}", f"s_lshl_b32 {s(sT)}, {s(sNtB)}, 8", f"s_add_u32 {s(sWbB)}, {s(sWbB)}, {s(sT)}")
    issue([("P", 2), ("P", 1), ("R", 2), ("R", 3)])
    if "samesrc" in os.environ.get("EXP", ""):
        I(f"s_mul_i32 {s(sXqB)}, {s(sWave)}, {32*1152}", f"s_lshl_b32 {s(sWqB)}, {s(sWave)}, 17", f"s_mul_i32 {s(sXbB)}, {s(sWave)}, {32*1152}", f"s_mul_i32 {s(sWbB)}, {s(sWave)}, {16*3456}")
    if "samedst" in os.environ.get("EXP", ""):
        for i in range(8): I(f"s_mov_b32 {s(sKVo+i)}, {i*8192*4}")
        I(f"s_mov_b32 {s(sQout)}, 0")
    I(f"v_and_b32 {v(vT)}, 31, v0", f"v_lshlrev_b32 {v(TT)}, 7, {v(vT)}", f"v_lshrrev_b32 {v(TT+1)}, 5, v0", f"v_lshrrev_b32 {v(TT+2)}, 1, v0", f"v_and_b32 {v(TT+2)}, 7, {v(TT+2)}")
    for ks in range(4):
        I(f"v_add_u32 {v(vT)}, {2*ks}, {v(TT+1)}", f"v_xor_b32 {v(vT)}, {v(vT)}, {v(TT+2)}", f"v_lshl_add_u32 {v(aXR+ks)}, {v(vT)}, 4, {v(TT)}")
        I(f"s_lshl_b32 {s(sT)}, {s(sWm)}, 14", f"s_add_u32 {s(sT)}, {s(sT)}, {PB}", f"v_add_u32 {v(aXP+ks)}, {s(sT)}, {v(aXR+ks)}", f"v_add_u32 {v(aXP2+ks)}, 65536, {v(aXP+ks)}")
        I(f"s_lshl_b32 {s(sT)}, {s(sWm)}, 13", f"v_add_u32 {v(aXB+ks)}, {s(sT)}, {v(aXR+ks)}")
    I(f"v_lshrrev_b32 {v(TT)}, 5, v0", f"v_lshlrev_b32 {v(TT)}, 3, {v(TT)}", f"v_and_b32 {v(TT+1)}, 15, v0", f"v_lshrrev_b32 {v(TT+1)}, 2, {v(TT+1)}",
      f"v_add_u32 {v(TT)}, {v(TT)}, {v(TT+1)}", f"v_lshlrev_b32 {v(TT+1)}, 2, {v(TT+1)}",
      f"v_lshrrev_b32 {v(TT+2)}, 4, v0", f"v_and_b32 {v(TT+2)}, 1, {v(TT+2)}", f"v_lshlrev_b32 {v(TT+2)}, 1, {v(TT+2)}",
      f"v_and_b32 {v(TT+3)}, 3, v0", f"v_lshrrev_b32 {v(TT+3)}, 1, {v(TT+3)}", f"v_add_u32 {v(TT+2)}, {v(TT+2)}, {v(TT+3)}",
      f"v_and_b32 {v(TT+3)}, 1, v0", f"v_lshlrev_b32 {v(TT+3)}, 3, {v(TT+3)}")
    def waddr(dst, cb_s_mul, cb_reg, cb_const, rowshift, base):
        I(f"s_mul_i32 {s(sT)}, {s(cb_reg)}, {cb_s_mul}", f"s_add_u32 {s(sT)}, {s(sT)}, {cb_const}", f"v_xor_b32 {v(vT)}, {s(sT)}, {v(TT+1)}", f"v_add_u32 {v(vT)}, {v(vT)}, {v(TT+2)}",
          f"v_lshl_add_u32 {v(vT)}, {v(vT)}, 4, {v(TT+3)}", f"v_lshl_add_u32 {v(dst)}, {v(TT)}, {rowshift}, {v(vT)}")
        if base: I(f"v_add_u32 {v(dst)}, {base}, {v(dst)}")
    for tn in range(2):
        waddr(aWB + tn, 8, sWn, 4 * tn, 8, PB); I(f"v_add_u32 {v(aWB2+tn)}, 65536, {v(aWB+tn)}")
    for tn in range(4): waddr(aWR + tn, 16, sWn, 4 * tn, 9, RB)
    for tn in range(2):
        waddr(aWP + tn, 8, sWave, 4 * tn, 9, PB); I(f"v_add_u32 {v(aWP2+tn)}, 65536, {v(aWP+tn)}")
    for i in range(34): I(f"v_mov_b32 {v(BADR+i)}, 0x{OOB:08x}") if False else None
    addr_ops = {"QK": b_addr_ops("QK", locals()), "V": b_addr_ops("V", locals())}
    pf = []
    sA_, sB_ = 98, 99
    if os.environ.get("PFKV"):
        pf += [f"s_lshr_b32 {s(sA_)}, s2, 3", f"s_lshl_b32 {s(sA_)}, {s(sA_)}, 2", f"s_and_b32 {s(sB_)}, s2, 3", f"s_add_u32 {s(sA_)}, {s(sA_)}, {s(sB_)}",
               f"s_lshl_b32 {s(sA_)}, {s(sA_)}, 2", f"s_add_u32 {s(sA_)}, {s(sA_)}, {s(sWave)}", f"s_lshl_b32 {s(sA_)}, {s(sA_)}, 6",
               f"v_add_u32 {v(PFV+6)}, {s(sA_)}, v0", f"v_lshlrev_b32 {v(PFV+6)}, 7, {v(PFV+6)}", f"buffer_load_dword {v(PFV+8)}, {v(PFV+6)}, {s(SWKV,4)}, 0 offen"]
    pf += [f"s_lshl_b32 {s(sA_)}, s2, 2", f"s_add_u32 {s(sA_)}, {s(sA_)}, {s(sWave)}"]
    for i, (srd, nlines) in enumerate((((SXKV, 16384),) if os.environ.get('PFKV') else ()) + ((SXB, 18432), (SWB, 15552), (SXQ, 18432), (SWQ, 36864), (SWOA, 36864)) + (() if os.environ.get('PFKV') else ((SWOB, 5184),))):
        c = -(-nlines // 1024)
        pf += [f"s_mul_i32 {s(sB_)}, {s(sA_)}, {c}", f"v_add_u32 {v(PFV+i)}, {s(sB_)}, v0", f"v_lshlrev_b32 {v(PFV+i)}, 7, {v(PFV+i)}", f"v_mov_b32 {v(PFV+7)}, 0x{OOB:08x}",
               (f"v_cmp_gt_u32 vcc, {c}, v0", "s_nop 1", f"v_cndmask_b32 {v(PFV+i)}, {v(PFV+7)}, {v(PFV+i)}, vcc"),
               f"buffer_load_dword {v(PFV+8)}, {v(PFV+i)}, {s(srd,4)}, 0 offen"]
    if os.environ.get("NOPF"): pf = []

    def xf(b, t): return v(XF[b] + 4 * t, 4)
    def wf(b, t): return v(WF[b] + 4 * t, 4)
    def wf2(b, t, rd): return v(WF[b] + 4 * t + 2 * rd, 2)
    def stage_p(g): return STAGE_P[g]
    def last_user(u): return LAST_USER[u]
    def nks(g): return 2 if ph(g) == "K" else 4
    def reads(g, ks, b):
        L = []
        sl = stage_p(g) % 3
        if ph(g) == "B":
            for tm in range(2): L.append(f"ds_read_b128 {xf(b,tm)}, {v(aXB+ks)} offset:{(g%4)*16384 + tm*4096}")
            for tn in range(2):
                base, off = (aWB, sl * 32768) if sl < 2 else (aWB2, 0)
                for rd in range(2): L.append(f"ds_read_b64_tr_b16 {wf2(b,tn,rd)}, {v(base+tn)} offset:{off + (ix(g) & 1) * 16384 + ks*4096 + rd*1024}")
        elif ph(g) == "K":
            kk = 2 * (ix(g) & 1) + ks
            for tm in range(4):
                base, off = (aXP, sl * 32768) if sl < 2 else (aXP2, 0)
                L.append(f"ds_read_b128 {xf(b,tm)}, {v(base+kk)} offset:{off + tm*4096}")
            for tn in range(4):
                for rd in range(2): L.append(f"ds_read_b64_tr_b16 {wf2(b,tn,rd)}, {v(aWR+tn)} offset:{(g%4)*16384 + ks*8192 + rd*2048}")
        else:
            for tm in range(4): L.append(f"ds_read_b128 {xf(b,tm)}, {v(aXR+ks)} offset:{(g%4)*16384 + tm*4096}")
            for tn in range(2):
                base, off = (aWP, sl * 32768) if sl < 2 else (aWP2, 0)
                for rd in range(2): L.append(f"ds_read_b64_tr_b16 {wf2(b,tn,rd)}, {v(base+tn)} offset:{off + ks*8192 + rd*2048}")
        return L
    def mfmas(g, ks, b, var):
        first = ix(g) == 0 and ks == 0
        L = []
        if ph(g) == "B":
            for tm in range(2):
                for tn in range(2):
                    ac = v(BA + (tm * 2 + tn) * 16, 16)
                    A, B = (wf(b, tn), xf(b, tm)) if var[1] == "QK" else (xf(b, tm), wf(b, tn))
                    L.append(f"v_mfma_f32_32x32x16_bf16 {ac}, {A}, {B}, {'0' if first else ac}")
        elif ph(g) == "K":
            for tm in range(4):
                for tn in range(4):
                    ac = a((tm * 4 + tn) * 16, 16)
                    A, B = (wf(b, tn), xf(b, tm)) if var[0] == "K" else (xf(b, tm), wf(b, tn))
                    L.append(f"v_mfma_f32_32x32x16_bf16 {ac}, {A}, {B}, {'0' if first else ac}")
        else:
            for tm in range(4):
                for tn in range(2):
                    ac = v(QA + (tm * 2 + tn) * 16, 16)
                    L.append(f"v_mfma_f32_32x32x16_bf16 {ac}, {wf(b,tn)}, {xf(b,tm)}, {'0' if first else ac}")
        return L
    def kv_epi(final=False):
        L = []
        n = 0
        for tm in range(4):
            for tn in range(4):
                base = (tm * 4 + tn) * 16
                tt, uu = (TT, UU) if not final else (128 + (n % 4) * 24, 128 + (n % 4) * 24 + 16)
                n += 1
                for i in range(16): L.append(f"v_accvgpr_read_b32 {v(tt+i)}, {a(base+i)}")
                for i in range(8): L.append(f"v_cvt_pk_bf16_f32 {v(uu+i)}, {v(tt+2*i)}, {v(tt+2*i+1)}")
                for f in range(2):
                    L.append((f"s_add_u32 {s(sT2)}, {s(sKVo+2*tn+f)}, {tm*8192}", f"buffer_store_dwordx4 {v(uu+4*f,4)}, {v(vL16)}, {s(SWS,4)}, {s(sT2)} offen{STF}"))
        return L
    def q_epi():
        L = []
        for tm in range(4):
            for tn in range(2):
                base = QA + (tm * 2 + tn) * 16
                for i in range(16): L.append(f"v_mul_f32 {v(base+i)}, {s(sCA)}, {v(base+i)}")
                for i in range(8): L.append(f"v_cvt_pk_bf16_f32 {v(base+i)}, {v(base+2*i)}, {v(base+2*i+1)}")
                if tn == 0: L.append(f"s_add_u32 {s(sT2)}, {s(sQout)}, {tm*8192}")
                for f in range(2):
                    L.append(f"buffer_store_dwordx4 {v(base+4*f,4)}, {v(vL16)}, {s(SWS,4)}, {s(sT2)} offen offset:{(2*tn+f)*1024}{STQ}")
        return L
    def b_epi():
        L = []; n = 0
        for tm in range(2):
            for tn in range(2):
                base = BA + (tm * 2 + tn) * 16
                for p in range(8):
                    r = BTMP + (n % 8); n += 1
                    L += [f"v_mul_f32 {v(base+2*p)}, {s(sBsc)}, {v(base+2*p)}", f"v_mul_f32 {v(base+2*p+1)}, {s(sBsc)}, {v(base+2*p+1)}",
                          f"v_cvt_pk_bf16_f32 {v(r)}, {v(base+2*p)}, {v(base+2*p+1)}", f"buffer_store_dword {v(r)}, {v(BADR + (tm*2+tn)*8 + p)}, {s(SWS,4)}, 0 offen"]
        for st in range(4):
            for tn in range(2):
                L.append(f"buffer_store_dwordx4 {v(BONE+2,4)}, {v(BADR+32+tn)}, {s(SWS,4)}, {s(4+st)} offen")
        return L

    def run_segment(g0, g1, var, epi_ops, vml, carry, epi_lo=0, epi_lim=None, epi2=None, epi2_lo=0):
        lastg = GE - 1
        backbone = []; ctl = {}; rd_streams = []; bars = []
        for g in range(g0, g1):
            n = nks(g)
            for ks in range(n):
                m = mfmas(g, ks, ks & 1, var)
                start = len(backbone); backbone += m; L = len(m)
                if ks < n - 1: nxt = reads(g, ks + 1, (ks + 1) & 1)
                elif g + 1 <= lastg: nxt = reads(g + 1, 0, 0)
                else: nxt = []
                hi = start + L - (3 if L >= 8 else 2)
                if nxt: rd_streams.append([(r, start, hi) for r in nxt])
                if ks == n - 2: ctl[start + L - 1] = ("BAR", g); bars.append((start + L - 1, g))
                else: ctl[start + L - 1] = "W"
        n = len(backbone)
        dma_stream = []
        nextbar = lambda x: min([bg for bg, _ in bars if bg > x], default=n - 1)
        if carry: dma_stream += [((tag, d), 0, max(0, nextbar(-1) - 1)) for tag, d in carry]
        carry_out = []
        for bg, g in bars:
            items = []
            if g + 4 <= lastg: items += [(("R", g + 4), d) for d in Ritem(g + 4)]
            u = stage_p(g)
            if last_user(u) == g and u + 3 < UE: items += [(("P", u + 3), d) for d in Pitem(u + 3)]
            nb = [x for x, _ in bars if x > bg]
            if nb: dma_stream += [(it, bg + 1, nb[0] - 1) for it in items]
            else:
                room = (n - 1 - bg) // 2
                take = min(len(items), room) if g1 <= lastg else len(items)
                dma_stream += [(it, bg + 1, n - 1) for it in items[:take]]
                carry_out = items[take:]
        streams = [[(tuple(d), e, l) for (tag, d), e, l in dma_stream]] if dma_stream else [[]]
        streams += rd_streams
        if epi_ops: streams.append([(o, epi_lo, n - 1 if epi_lim is None else epi_lim) for o in epi_ops])
        if epi2: streams.append([(o, epi2_lo, n - 1) for o in epi2])
        base = [0] * n
        for gp, c in ctl.items(): base[gp] += 8 if c != "W" else 4
        asg, load = anneal(n, base, streams)
        slots = {gp: [] for gp in range(n)}
        for si in list(range(1, len(streams))) + [0]:
            for (op, e, l), gp, idx in zip(streams[si], asg[si], range(len(streams[si]))):
                slots[gp].append((op, dma_stream[idx][0][0] if si == 0 else None))
        out = []
        for gi in range(n):
            out.append(backbone[gi])
            for op, tag in slots[gi]:
                ls = list(op) if isinstance(op, tuple) else [op]
                out += ls
                if tag is not None: vml.append(tag)
                else:
                    for l in ls:
                        if l.startswith("buffer_"): vml.append(("E", 0))
            c = ctl.get(gi)
            if c == "W": out.append("s_waitcnt lgkmcnt(0)")
            elif c is not None:
                g = c[1]
                need = [("R", g + 1), ("P", stage_p(g + 1))] if g + 1 <= lastg else []
                if need:
                    assert all(x in vml for x in need), (g, need)
                    idx = max(i for i, tg in enumerate(vml) if tg in need)
                    out.append(f"s_waitcnt vmcnt({min(len(vml) - 1 - idx, 63)}) lgkmcnt(0)")
                else: out.append("s_waitcnt lgkmcnt(0)")
                out.append("s_barrier")
        ex = os.environ.get("EXP", "")
        def keep(l):
            if "nolds" in ex and l.startswith("ds_read"): return False
            if "nomfma" in ex and l.startswith("v_mfma"): return False
            if "nodma" in ex and l.startswith("buffer_load"): return False
            if "nost" in ex and l.startswith("buffer_store"): return False
            if "nobst" in ex and l.startswith("buffer_store_dword "): return False
            if "nokst" in ex and l.startswith("buffer_store_dwordx4") and "v[12" in l: return False
            return True
        if "novm" in ex: out = [("s_waitcnt lgkmcnt(0)" if l.startswith("s_waitcnt vmcnt") else l) for l in out]
        if ex: out = [l for l in out if keep(l)]
        if os.environ.get("VERB"): print(f"seg {g0}-{g1} {var}: loads", load[:96])
        return out, carry_out

    nafter = len(vmlog) - 1 - max(i for i, tg in enumerate(vmlog) if tg in (("R", 0), ("P", 0)))
    I(f"s_waitcnt vmcnt({nafter})", "s_barrier")
    vml = list(vmlog)
    k.stamp(1)
    I(reads(0, 0, 0), "s_waitcnt lgkmcnt(0)")
    gB = max(g for g in range(GQ) if ph(g) == "B") + 1
    I(f"s_lshl_b32 {s(sT)}, {s(sIsV)}, 1", f"s_min_u32 {s(sT2)}, {s(sBt)}, 1", f"s_add_u32 {s(sT)}, {s(sT)}, {s(sT2)}")
    I(f"s_cmp_eq_u32 {s(sT)}, 1", "s_cbranch_scc1 L_pj_c1", f"s_cmp_eq_u32 {s(sT)}, 2", "s_cbranch_scc1 L_pj_c2", f"s_cmp_eq_u32 {s(sT)}, 3", "s_cbranch_scc1 L_pj_c3")
    segs = {}
    for ci, var in enumerate((("K", "QK"), ("K", "V"), ("V", "QK"), ("V", "V"))):
        if ci: I(f"L_pj_c{ci}:")
        vm1 = list(vml)
        sg, c1 = run_segment(0, gB, var, pf, vm1, [], epi_lo=int(os.environ.get('PFLO', 32)), epi_lim=int(os.environ.get('PFHI', 200)), epi2=addr_ops[var[1]], epi2_lo=8)
        I(sg)
        I(f"s_branch L_pj_{var[0]}2")
        segs[var] = sg
    k2 = {}
    be = b_epi()
    for kv in ("K", "V"):
        I(f"L_pj_{kv}2:")
        if kv == "K": k.stamp(2)
        vm2 = list(vm1)
        sg, c2 = run_segment(gB, GQ, (kv, "V"), be, vm2, c1, epi_lo=2, epi_lim=185)
        I(sg)
        if kv == "K": I("s_branch L_pj_Q")
        k2[kv] = sg
    I("L_pj_Q:")
    k.stamp(3)
    if QFUSE:
        segQ = []
        k.stamp(4)
        I("s_nop 7", "s_nop 7")
        ke = kv_epi(final=True)
        for o in ke: I(list(o) if isinstance(o, tuple) else o)
    else:
        segQ, _ = run_segment(GQ, GE, ("K", "V"), kv_epi(), vm2, c2, epi_lo=4)
        I(segQ)
        k.stamp(4)
        I("s_nop 7", "s_nop 7"); I(q_epi())
    k.stamp(5)
    I("L_pj_end:", "s_endpgm")
    flat = lambda L: [l for l in L if not l.endswith(":") and not l.startswith("s_cbranch")]
    pre = reads(0, 0, 0) + ["s_waitcnt lgkmcnt(0)"]
    check(pre + flat(segs[("K", "QK")]) + flat(k2["K"]) + flat(segQ) + ["s_nop 7", "s_nop 7"] + ([] if QFUSE else q_epi()), "proj_K_QK")
    check(pre + flat(segs[("V", "V")]) + flat(k2["V"]) + flat(segQ), "proj_V_V")
    return k

def b_addr_ops(var, L):
    sWm, sWn, sNtB, sMtB, sBt, sBsc = (L[x] for x in ("sWm", "sWn", "sNtB", "sMtB", "sBt", "sBsc"))
    TT, UU, BADR, BONE, BTMP = L["TT"], L["UU"], L["BADR"], L["BONE"], L["BTMP"]
    sa, sb, sc, sd, se, sf = 92, 93, 94, 95, 96, 97
    va, vb = TT + 14, TT + 15
    O = []
    O += [f"v_mov_b32 {v(BONE+2+i)}, 0x3f803f80" for i in range(4)]
    if var == "QK":
        O += [f"s_mov_b32 {s(4+st)}, 0" for st in range(4)]
        O += [f"v_mov_b32 {v(BADR+32)}, 0x{OOB:08x}", f"v_mov_b32 {v(BADR+33)}, 0x{OOB:08x}"]
        vTab, vMain, vLeft, vIdx = TT + 8, TT + 9, TT + 11, TT + 13
        sIsK, sC0 = se, sf
        O += [f"s_lshl_b32 {s(sC0)}, {s(sNtB)}, 7", f"s_lshl_b32 {s(sa)}, {s(sWn)}, 6", f"s_add_u32 {s(sC0)}, {s(sC0)}, {s(sa)}"]
        O += [tuple([f"s_cmp_ge_u32 {s(sC0)}, 576", f"s_cselect_b32 {s(sIsK)}, 1, 0"] + csel(sBsc, "0x3f800000", f"0x{f32bits(LY.CB):08x}") + [f"s_cselect_b32 {s(sa)}, 576, 0"]),
              f"s_sub_u32 {s(sC0)}, {s(sC0)}, {s(sa)}"]
        O += [f"v_and_b32 {v(va)}, 31, v0", f"v_lshlrev_b32 {v(vb)}, 1, {v(va)}", f"v_add_u32 {v(vb)}, {s(sC0)}, {v(vb)}",
              f"v_mul_u32_u24 {v(TT)}, 3641, {v(vb)}", f"v_lshrrev_b32 {v(TT)}, 16, {v(TT)}",
              f"v_mul_u32_u24 {v(TT+1)}, 18, {v(TT)}", f"v_sub_u32 {v(TT+1)}, {v(vb)}, {v(TT+1)}",
              f"v_lshrrev_b32 {v(TT+2)}, 2, {v(TT+1)}", f"v_and_b32 {v(TT+2)}, 1, {v(TT+2)}", f"v_lshlrev_b32 {v(TT+2)}, 9, {v(TT+2)}",
              f"v_and_b32 {v(TT+3)}, 3, {v(TT+1)}", f"v_lshrrev_b32 {v(TT+3)}, 1, {v(TT+3)}", f"v_lshrrev_b32 {v(TT+4)}, 3, {v(TT+1)}", f"v_lshl_add_u32 {v(TT+3)}, {v(TT+4)}, 1, {v(TT+3)}",
              f"v_lshl_add_u32 {v(TT+2)}, {v(TT+3)}, 2, {v(TT+2)}"]
        O += [tuple([f"s_cmp_eq_u32 {s(sIsK)}, 0"] + csel(sa, 65536, LY.HEADB) + csel(sb, 8192, LY.HEADB))]
        O += [f"v_mul_lo_u32 {v(TT+3)}, {v(TT)}, {s(sa)}", f"v_add_u32 {v(TT+2)}, {v(TT+2)}, {v(TT+3)}",
              f"v_mul_lo_u32 {v(TT+3)}, {v(TT)}, {s(sb)}", f"v_or_b32 {v(TT+3)}, 0x80000000, {v(TT+3)}",
              (f"v_cmp_eq_u32 vcc, 16, {v(TT+1)}", "s_nop 1", f"v_cndmask_b32 {v(vTab)}, {v(TT+2)}, {v(TT+3)}, vcc")]
        for tm in range(2):
            O += [f"s_lshl_b32 {s(sa)}, {s(sMtB)}, 2", f"s_lshl_b32 {s(sb)}, {s(sWm)}, 1", f"s_add_u32 {s(sa)}, {s(sa)}, {s(sb)}", f"s_add_u32 {s(sa)}, {s(sa)}, {tm}"]
            O += [f"s_lshr_b32 {s(sd)}, {s(sa)}, 3", f"s_mul_i32 {s(sd)}, {s(sd)}, {LY.CHB}", f"s_add_u32 {s(sd)}, {s(sd)}, {LY.WS_KVB}",
                  f"s_and_b32 {s(sb)}, {s(sa)}, 7", f"s_lshl_b32 {s(sb)}, {s(sb)}, 10", f"s_add_u32 {s(sb)}, {s(sb)}, {s(sd)}",
                  f"s_and_b32 {s(sc)}, {s(sa)}, 4", f"s_lshl_b32 {s(sc)}, {s(sc)}, 7", f"s_add_u32 {s(sd)}, {s(sd)}, {s(sc)}", f"s_add_u32 {s(sd)}, {s(sd)}, 8192",
                  f"s_and_b32 {s(sc)}, {s(sa)}, 3", f"s_lshl_b32 {s(sc)}, {s(sc)}, 2", f"s_add_u32 {s(sd)}, {s(sd)}, {s(sc)}",
                  f"s_lshl_b32 {s(sc)}, {s(sa)}, 10", f"s_add_u32 {s(sc)}, {s(sc)}, {LY.WS_QB0}",
                  f"s_lshl_b32 {s(sa)}, {s(sa)}, 7", f"s_add_u32 {s(sa)}, {s(sa)}, {LY.WS_QB1}",
                  (f"s_cmp_eq_u32 {s(sIsK)}, 0", f"s_cselect_b32 {s(sb)}, {s(sc)}, {s(sb)}", f"s_cselect_b32 {s(sd)}, {s(sa)}, {s(sd)}", f"s_cselect_b32 {s(sa)}, 2, 4"),
                  f"v_and_b32 {v(va)}, 31, v0", f"v_lshlrev_b32 {v(vMain+tm)}, 4, {v(va)}", f"v_add_u32 {v(vMain+tm)}, {s(sb)}, {v(vMain+tm)}",
                  f"v_lshlrev_b32 {v(vLeft+tm)}, {s(sa)}, {v(va)}", f"v_add_u32 {v(vLeft+tm)}, {s(sd)}, {v(vLeft+tm)}"]
        O += [f"v_lshrrev_b32 {v(vIdx)}, 5, v0", f"v_lshlrev_b32 {v(vIdx)}, 3, {v(vIdx)}"]
        G = [UU + i for i in range(8)] + [BTMP + i for i in range(8)]
        for tn in range(2):
            for p in range(8):
                i0 = 16 * tn + (p & 1) + 4 * (p >> 1)
                O += [f"v_add_u32 {v(va)}, {i0*4}, {v(vIdx)}", f"ds_bpermute_b32 {v(G[tn*8+p])}, {v(va)}, {v(vTab)}"]
        O += ["s_waitcnt lgkmcnt(0)"]
        for tn in range(2):
            for p in range(8):
                g = G[tn * 8 + p]
                d0, d1 = BADR + tn * 8 + p, BADR + (2 + tn) * 8 + p
                O += [(f"v_cmp_gt_i32 vcc, 0, {v(g)}", f"v_and_b32 {v(g)}, 0x7fffffff, {v(g)}", "s_nop 0",
                       f"v_cndmask_b32 {v(d0)}, {v(vMain)}, {v(vLeft)}, vcc", f"v_cndmask_b32 {v(d1)}, {v(vMain+1)}, {v(vLeft+1)}, vcc"),
                      f"v_add_u32 {v(d0)}, {v(d0)}, {v(g)}", f"v_add_u32 {v(d1)}, {v(d1)}, {v(g)}"]
    else:
        O += [f"s_mov_b32 {s(sBsc)}, 0x3f800000"]
        for tm in range(2):
            for f in range(2):
                O += [f"s_lshl_b32 {s(sa)}, {s(sMtB)}, 3", f"s_lshl_b32 {s(sb)}, {s(sWm)}, 2", f"s_add_u32 {s(sa)}, {s(sa)}, {s(sb)}", f"s_add_u32 {s(sa)}, {s(sa)}, {2*tm+f}",
                      f"s_lshr_b32 {s(sb)}, {s(sa)}, 4", f"s_mul_i32 {s(sb)}, {s(sb)}, {LY.CHB}", f"s_and_b32 {s(sa)}, {s(sa)}, 15", f"s_mul_i32 {s(sa)}, {s(sa)}, 608",
                      f"s_add_u32 {s(sa)}, {s(sa)}, {s(sb)}", f"s_add_u32 {s(4 + 2*tm + f)}, {s(sa)}, {LY.WS_KVB + 9216}"]
        for tn in range(2):
            O += [f"s_lshl_b32 {s(sa)}, {s(sNtB)}, 7", f"s_lshl_b32 {s(sb)}, {s(sWn)}, 6", f"s_add_u32 {s(sa)}, {s(sa)}, {s(sb)}", f"s_add_u32 {s(sa)}, {s(sa)}, {32*tn}", f"s_sub_u32 {s(sa)}, {s(sa)}, 1152",
                  (f"s_cmp_eq_u32 {s(sBt)}, 2", f"s_cselect_b32 {s(sa)}, 4096, {s(sa)}"),
                  f"v_and_b32 {v(va)}, 31, v0", f"v_add_u32 {v(va)}, {s(sa)}, {v(va)}",
                  f"v_mul_u32_u24 {v(vb)}, 3641, {v(va)}", f"v_lshrrev_b32 {v(vb)}, 16, {v(vb)}",
                  f"v_mul_u32_u24 {v(TT)}, 18, {v(vb)}", f"v_sub_u32 {v(TT)}, {v(va)}, {v(TT)}",
                  f"s_mov_b32 {s(sb)}, {LY.HEADB}", f"v_mul_lo_u32 {v(vb)}, {v(vb)}, {s(sb)}", f"v_lshl_add_u32 {v(vb)}, {v(TT)}, 4, {v(vb)}",
                  f"v_lshrrev_b32 {v(TT+1)}, 5, v0", f"v_mul_u32_u24 {v(TT+1)}, 304, {v(TT+1)}", f"v_add_u32 {v(vb)}, {v(vb)}, {v(TT+1)}",
                  f"v_mov_b32 {v(TT+2)}, 0x{OOB:08x}",
                  (f"v_cmp_gt_u32 vcc, 576, {v(va)}", "s_nop 1", f"v_cndmask_b32 {v(TT+3)}, {v(TT+2)}, {v(vb)}, vcc"),
                  f"v_add_u32 {v(vb)}, 16, {v(TT+3)}",
                  (f"v_cmp_eq_u32 vcc, 17, {v(TT)}", "s_nop 1", f"v_cndmask_b32 {v(BADR+32+tn)}, {v(TT+2)}, {v(vb)}, vcc")]
            for tm in range(2):
                for p in range(8):
                    d = BADR + (tm * 2 + tn) * 8 + p
                    O += [f"s_add_u32 {s(sa)}, {s(4 + 2*tm + (p >> 2))}, {(p & 3) * 4}", f"v_add_u32 {v(d)}, {s(sa)}, {v(TT+3)}"]
    return O
```

```python
from gen_common import *
import struct, os
def f32bits(x): return struct.unpack("<I", struct.pack("<f", x))[0]

def qproj(k, sHead, sPair, sWave, QL, QH, kv_items, tail_items):
    I = k.I
    SX, SWq = 62, 66
    SX, SWq = 64, 68
    sXb, sWb, sMX, sMW, sT, sT2 = 72, 73, 74, 75, 76, 77
    vX, vW = 16, 18
    aX = [20, 24, 28]; aW = [32, 36, 40]
    XF = [44, 52]; WF = [60, 76]
    vT, vT2, T0 = 92, 93, 96
    ACC = 128
    SLOT = 49152
    I("s_load_dwordx2 s[78:79], s[0:1], 0", "s_load_dwordx2 s[80:81], s[0:1], 16")
    for par in range(2):
        I(f"v_lshrrev_b32 {v(vT)}, 4, v0", f"v_add_u32 {v(vT)}, {4*par}, {v(vT)}", f"v_and_b32 {v(vT2)}, 7, v0", f"v_xor_b32 {v(vT)}, {v(vT)}, {v(vT2)}",
          f"v_lshlrev_b32 {v(vT)}, 4, {v(vT)}", f"v_lshrrev_b32 {v(vT2)}, 3, v0", f"v_mul_u32_u24 {v(vT2)}, 1152, {v(vT2)}", f"v_add_u32 {v(vX+par)}, {v(vT)}, {v(vT2)}")
    I(f"v_lshrrev_b32 {v(vT)}, 4, v0", f"v_lshlrev_b32 {v(vT2)}, 2, {v(vT)}", f"v_and_b32 {v(vW)}, 15, v0", f"v_xor_b32 {v(vW)}, {v(vW)}, {v(vT2)}",
      f"v_lshlrev_b32 {v(vW)}, 4, {v(vW)}", f"v_lshlrev_b32 {v(vT)}, 13, {v(vT)}", f"v_add_u32 {v(vW)}, {v(vW)}, {v(vT)}")
    I(f"s_lshl_b32 {s(sT)}, {s(sPair)}, 7", f"s_sub_u32 {s(sT2)}, {128*15 - 128}, {s(sT)}", f"s_cmp_ge_u32 {s(sWave)}, 2", f"s_cselect_b32 {s(sT)}, {s(sT2)}, {s(sT)}",
      f"s_lshl_b32 {s(sT2)}, {s(sWave)}, 6", f"s_add_u32 {s(sT)}, {s(sT)}, {s(sT2)}", f"s_mul_i32 {s(sXb)}, {s(sT)}, 1152")
    I(f"s_lshl_b32 {s(sWb)}, {s(sWave)}, 17", f"s_lshl_b32 {s(sT)}, {s(sHead)}, 8", f"s_add_u32 {s(sWb)}, {s(sWb)}, {s(sT)}")
    I(f"s_lshl_b32 {s(sMX)}, {s(sWave)}, 13", f"s_add_u32 {s(sMX)}, {s(sMX)}, 16384", f"s_lshl_b32 {s(sMW)}, {s(sWave)}, 12")
    I("s_waitcnt lgkmcnt(0)")
    k.srd(SX, 78, 2048 * 1152); k.srd(SWq, 80, 576 * 8192)
    def item(t):
        sl = (t % 3) * SLOT
        o = [(f"s_add_u32 m0, {s(sMW)}, {sl + j*1024}", f"s_add_u32 {s(sT)}, {s(sWb)}, {(64*t + 4*j)*8192}", f"buffer_load_dwordx4 {v(vW)}, {s(SWq,4)}, {s(sT)} offen lds") for j in range(4)]
        o += [(f"s_add_u32 m0, {s(sMX)}, {sl + j*1024}", f"s_add_u32 {s(sT)}, {s(sXb)}, {t*128 + j*8*1152}", f"buffer_load_dwordx4 {v(vX+(j&1))}, {s(SX,4)}, {s(sT)} offen lds") for j in range(8)]
        return o
    vml = []
    for t in range(3):
        for d in item(t): I(list(d)); vml.append(("Q", t))
    I(f"v_and_b32 {v(vT)}, 31, v0", f"s_lshl_b32 {s(sT)}, {s(sWave)}, 5", f"v_add_u32 {v(vT)}, {s(sT)}, {v(vT)}", f"v_lshlrev_b32 {v(T0)}, 7, {v(vT)}",
      f"v_lshrrev_b32 {v(T0+1)}, 5, v0", f"v_lshrrev_b32 {v(T0+2)}, 1, v0", f"v_and_b32 {v(T0+2)}, 7, {v(T0+2)}")
    for ks in range(4):
        I(f"v_add_u32 {v(vT)}, {2*ks}, {v(T0+1)}", f"v_xor_b32 {v(vT)}, {v(vT)}, {v(T0+2)}", f"v_lshl_add_u32 {v(vT)}, {v(vT)}, 4, {v(T0)}")
        for sl in range(3): I(f"v_add_u32 {v(aX[sl]+ks)}, {sl*SLOT + 16384}, {v(vT)}")
    I(f"v_lshrrev_b32 {v(T0)}, 5, v0", f"v_lshlrev_b32 {v(T0)}, 3, {v(T0)}", f"v_and_b32 {v(T0+1)}, 15, v0", f"v_lshrrev_b32 {v(T0+1)}, 2, {v(T0+1)}",
      f"v_add_u32 {v(T0)}, {v(T0)}, {v(T0+1)}", f"v_lshlrev_b32 {v(T0+1)}, 2, {v(T0+1)}",
      f"v_lshrrev_b32 {v(T0+2)}, 4, v0", f"v_and_b32 {v(T0+2)}, 1, {v(T0+2)}", f"v_lshlrev_b32 {v(T0+2)}, 1, {v(T0+2)}",
      f"v_and_b32 {v(T0+3)}, 3, v0", f"v_lshrrev_b32 {v(T0+3)}, 1, {v(T0+3)}", f"v_add_u32 {v(T0+2)}, {v(T0+2)}, {v(T0+3)}",
      f"v_and_b32 {v(T0+3)}, 1, v0", f"v_lshlrev_b32 {v(T0+3)}, 3, {v(T0+3)}")
    for dt in range(4):
        I(f"v_xor_b32 {v(vT)}, {4*dt}, {v(T0+1)}", f"v_add_u32 {v(vT)}, {v(vT)}, {v(T0+2)}", f"v_lshl_add_u32 {v(vT)}, {v(vT)}, 4, {v(T0+3)}", f"v_lshl_add_u32 {v(vT)}, {v(T0)}, 8, {v(vT)}")
        for sl in range(3): I(f"v_add_u32 {v(aW[sl]+dt)}, {sl*SLOT}, {v(vT)}" if sl else f"v_mov_b32 {v(aW[sl]+dt)}, {v(vT)}")
    def reads(t, ks, b):
        sl = t % 3
        L = [f"ds_read_b128 {v(XF[b]+4*tq,4)}, {v(aX[sl]+ks)}" + (f" offset:{tq*16384}" if tq else "") for tq in range(2)]
        for dt in range(4):
            for rd in range(2): L.append(f"ds_read_b64_tr_b16 {v(WF[b]+4*dt+2*rd,2)}, {v(aW[sl]+dt)} offset:{ks*4096 + rd*1024}")
        return L
    def mfmas(t, ks, b):
        L = []
        for tq in range(2):
            for dt in range(4):
                ac = v(ACC + (tq*4+dt)*16, 16)
                L.append(f"v_mfma_f32_32x32x16_bf16 {ac}, {v(WF[b]+4*dt,4)}, {v(XF[b]+4*tq,4)}, {'0' if t == 0 and ks == 0 else ac}")
        return L
    n0 = len(vml) - 1 - max(i for i, x in enumerate(vml) if x == ("Q", 0))
    I(f"s_waitcnt vmcnt({n0})", "s_barrier")
    k.stamp(6)
    I(reads(0, 0, 0), "s_waitcnt lgkmcnt(0)")
    backbone = []; ctl = {}; rd_streams = []; bars = []
    for t in range(9):
        for ks in range(4):
            m = mfmas(t, ks, ks & 1); start = len(backbone); backbone += m
            if ks < 3: nxt = reads(t, ks + 1, (ks + 1) & 1)
            elif t < 8: nxt = reads(t + 1, 0, 0)
            else: nxt = []
            if nxt: rd_streams.append([(r, start, start + 5) for r in nxt])
            if ks == 2: ctl[start + 7] = ("BAR", t); bars.append((start + 7, t))
            else: ctl[start + 7] = "W"
    n = len(backbone)
    dma = []
    for bg, t in bars:
        its = [(("Q", t + 3), d) for d in item(t + 3)] if t + 3 < 9 else []
        its += [(("KV", t), tuple(d)) for d in kv_items.get(t, [])]
        nb = [x for x, _ in bars if x > bg]
        dma += [(it, bg + 1, (nb[0] - 1) if nb else n - 1) for it in its]
    streams = [[(d, e, l) for (tag, d), e, l in dma]] + rd_streams
    base = [0] * n
    for gp, c in ctl.items(): base[gp] += 8 if c != "W" else 4
    asg, load = anneal(n, base, streams)
    slots = {gp: [] for gp in range(n)}
    for si in list(range(1, len(streams))) + [0]:
        for idx, ((op, e, l), gp) in enumerate(zip(streams[si], asg[si])):
            slots[gp].append((op, dma[idx][0][0] if si == 0 else None))
    out = []
    for gi in range(n):
        out.append(backbone[gi])
        for op, tag in slots[gi]:
            ls = list(op) if isinstance(op, tuple) else [op]
            out += ls
            if tag is not None:
                for l_ in ls:
                    if l_.startswith("buffer_"): vml.append(tag)
        c = ctl.get(gi)
        if c == "W": out.append("s_waitcnt lgkmcnt(0)")
        elif c is not None:
            t = c[1]
            if t + 1 < 9:
                idx = max(i for i, x in enumerate(vml) if x == ("Q", t + 1))
                out.append(f"s_waitcnt vmcnt({min(63, len(vml) - 1 - idx)}) lgkmcnt(0)")
            else: out.append("s_waitcnt lgkmcnt(0)")
            out.append("s_barrier")
    I(out)
    check(reads(0, 0, 0) + ["s_waitcnt lgkmcnt(0)"] + out, "qproj")
    for grp in tail_items: I(list(grp))
    I("s_nop 7", "s_nop 7")
    I(f"s_mov_b32 {s(sT)}, 0x{f32bits(LY.CA):08x}", f"s_mov_b32 {s(sT+1)}, 0x{f32bits(LY.CA):08x}")
    for tq in range(2):
        for dt in range(4):
            b = ACC + (tq*4+dt)*16
            for i in range(16): I(f"v_mul_f32 {v(b+i)}, {s(sT)}, {v(b+i)}")
            for i in range(8): I(f"v_cvt_pk_bf16_f32 {v(b+i)}, {v(b+2*i)}, {v(b+2*i+1)}")
            for i in range(8): I(f"v_accvgpr_write_b32 {a((QL if tq == 0 else QH) + dt*8 + i)}, {v(b+i)}")
    return vml
```

```python
import re

def v(n, c=1):  return f"v{n}" if c == 1 else f"v[{n}:{n+c-1}]"
def a(n, c=1):  return f"a{n}" if c == 1 else f"a[{n}:{n+c-1}]"
def s(n, c=1):  return f"s{n}" if c == 1 else f"s[{n}:{n+c-1}]"

TRANS = ("v_exp_f32", "v_log_f32", "v_rcp_f32", "v_rsq_f32", "v_sqrt_f32", "v_sin_f32", "v_cos_f32", "v_rcp_iflag_f32")
COST4 = 4

def mfma_passes(op):
    if "32x32x16" in op or "32x32x8" in op: return 8
    if "16x16x32" in op or "16x16x16" in op: return 4
    raise ValueError(op)

_reg_re = re.compile(r"^(-|abs\()?([vas])(\d+)\)?$")
_rng_re = re.compile(r"^(-)?([vas])\[(\d+):(\d+)\]$")

def regs_of(tok):
    tok = tok.strip()
    m = _reg_re.match(tok)
    if m: return [(m.group(2), int(m.group(3)))]
    m = _rng_re.match(tok)
    if m: return [(m.group(2), i) for i in range(int(m.group(3)), int(m.group(4)) + 1)]
    if tok == "vcc": return [("s", 106), ("s", 107)]
    if tok == "exec": return [("s", 126), ("s", 127)]
    if tok == "m0": return [("s", 124)]
    if tok == "vcc_lo": return [("s", 106)]
    if tok == "vcc_hi": return [("s", 107)]
    if tok == "exec_lo": return [("s", 126)]
    if tok == "exec_hi": return [("s", 127)]
    return []

class Ins:
    __slots__ = ("text", "op", "ops", "mods", "kind", "wr", "rd", "lds", "nstates", "cost")
    def __init__(self, text):
        self.text = text
        t = text.split(";")[0].strip()
        self.lds = False
        parts = t.split(None, 1)
        self.op = parts[0]
        rest = parts[1] if len(parts) > 1 else ""
        ops = [x.strip() for x in re.split(r",(?![^\[]*\])", rest)] if rest else []
        mods = []
        if ops:
            last = ops[-1].split()
            if len(last) > 1:
                ops[-1] = last[0]; mods = last[1:]
        self.ops = ops; self.mods = mods
        op = self.op
        for suf in ("_e32", "_e64", "_sdwa", "_dpp"):
            if op.endswith(suf): op = op[:-len(suf)]
        self.op = op
        R = lambda i: regs_of(ops[i]) if i < len(ops) else []
        wr, rd = [], []
        self.nstates = 1
        self.cost = 4
        if op.startswith("v_mfma"):
            self.kind = "mfma"; wr = R(0); rd = R(1) + R(2) + R(3); self.cost = 8
        elif op.startswith("v_"):
            self.kind = "valu"
            if op in TRANS: self.kind = "trans"; self.cost = 8
            if op.startswith("v_cmpx"):
                wr = R(0) + regs_of("exec"); rd = sum((R(i) for i in range(1, len(ops))), [])
            elif op.startswith("v_cmp"):
                wr = R(0); rd = sum((R(i) for i in range(1, len(ops))), [])
            elif op.startswith("v_permlane") and "swap" in op:
                wr = R(0) + R(1); rd = R(0) + R(1)
            elif op in ("v_add_co_u32", "v_sub_co_u32", "v_subrev_co_u32"):
                wr = R(0) + R(1); rd = R(2) + R(3)
            elif op in ("v_addc_co_u32", "v_subb_co_u32"):
                wr = R(0) + R(1); rd = R(2) + R(3) + R(4)
            elif op in ("v_fmac_f32", "v_mac_f32", "v_dot2c_f32_bf16"):
                wr = R(0); rd = R(0) + R(1) + R(2)
            elif op == "v_writelane_b32":
                wr = R(0); rd = R(0) + R(1) + R(2)
            elif op == "v_nop":
                pass
            else:
                wr = R(0); rd = sum((R(i) for i in range(1, len(ops))), [])
            rd += regs_of("exec") if False else []
        elif op.startswith("ds_"):
            self.kind = "ds"
            if op.startswith("ds_read") or op.startswith("ds_bpermute") or op.startswith("ds_permute") or op.startswith("ds_swizzle"):
                wr = R(0); rd = sum((R(i) for i in range(1, len(ops))), [])
            else:
                rd = sum((R(i) for i in range(len(ops))), [])
        elif op == "buffer_inv":
            self.kind = "vmem"
        elif op.startswith("buffer_") or op.startswith("global_"):
            self.kind = "vmem"
            self.lds = "lds" in mods or "_lds_" in op
            allr = [R(i) for i in range(len(ops))]
            if op.startswith("buffer_load") and not self.lds:
                wr = allr[0]; rd = sum(allr[1:], [])
            elif op.startswith("global_load") and not self.lds:
                wr = allr[0]; rd = sum(allr[1:], [])
            else:
                rd = sum(allr, [])
                if self.lds: rd += regs_of("m0")
                if "atomic" in op and "sc0" in mods: wr = allr[0]
        elif op.startswith("s_"):
            self.kind = "salu"
            if op == "s_nop":
                self.nstates = int(ops[0], 0) + 1; self.cost = 4 * self.nstates; self.kind = "nop"
            elif op == "s_getpc_b64":
                wr = R(0)
            elif op in ("s_waitcnt", "s_barrier", "s_endpgm", "s_branch", "s_setprio", "s_sleep") or op.startswith("s_cbranch"):
                self.kind = "ctl"
                if op == "s_waitcnt": self.mods = t.split(None, 1)[1].replace(",", " ").split()
            elif op.startswith("s_cmp") or op.startswith("s_bitcmp"):
                rd = sum((R(i) for i in range(len(ops))), [])
            elif op.startswith("s_load") or op.startswith("s_buffer_load") or op in ("s_memtime", "s_memrealtime"):
                self.kind = "smem"; wr = R(0); rd = sum((R(i) for i in range(1, len(ops))), [])
            elif op.endswith("saveexec_b64"):
                wr = R(0) + regs_of("exec"); rd = R(1) + regs_of("exec")
            else:
                wr = R(0); rd = sum((R(i) for i in range(1, len(ops))), [])
                if op in ("s_addk_i32", "s_mulk_i32"): rd += R(0)
        else:
            raise ValueError("unknown instruction: " + text)
        self.wr, self.rd = wr, rd

def is_instr(line):
    t = line.split(";")[0].strip()
    return bool(t) and not t.endswith(":") and not t.startswith(".")

def check(lines, name="", verbose=True, init_vm=0):
    ins = [Ins(l) for l in lines if is_instr(l)]
    errs = []
    pos = 0
    last_valu_w = {}
    last_trans_w = {}
    last_mfma_w = {}
    last_mfma_c = {}
    last_salu_w = {}
    last_store_data = {}
    valu_sgpr_w = {}
    lgkm = []
    vm = [(set(), "init")] * init_vm
    pend = {}
    def dist(p): return pos - p - 1
    last_mfma_issue = None
    for k, I in enumerate(ins):
        if I.kind == "mfma":
            if last_mfma_issue is not None: pos = max(pos, last_mfma_issue[0] + last_mfma_issue[1])
            last_mfma_issue = (pos, mfma_passes(I.op))
        def err(msg): errs.append(f"[{name}] #{k} {I.text.strip()}  :: {msg}")
        for r in I.rd + I.wr:
            if r in pend and not (I.kind in ("ds", "vmem") and r in I.wr and r not in I.rd and pend[r] == ("ds" if I.kind == "ds" else "vm")):
                err(f"register {r} has a pending {pend[r]} load")
        if I.kind == "mfma":
            P = mfma_passes(I.op)
            D = I.wr; C = regs_of(I.ops[3]); AB = regs_of(I.ops[1]) + regs_of(I.ops[2])
            for r in I.rd:
                if r in last_valu_w and dist(last_valu_w[r]) < 2: err(f"VALU write {r} -> MFMA read needs 2 (has {dist(last_valu_w[r])})")
            for r in AB:
                if r in last_mfma_w:
                    p, pp, _ = last_mfma_w[r]
                    need = {2:5, 4:8, 8:12, 16:20}[pp]
                    if dist(p) < need: err(f"MFMA D {r} -> MFMA A/B needs {need} (has {dist(p)})")
            for r in C:
                if r in last_mfma_w:
                    p, pp, regs = last_mfma_w[r]
                    if tuple(regs) == tuple(C) and pp == P: continue
                    need = {2:4, 4:6, 8:10, 16:18}[pp]
                    if dist(p) < need: err(f"MFMA D {r} -> MFMA C overlap needs {need} (has {dist(p)})")
            for r in D:
                if r in last_mfma_w and r not in C:
                    p, pp, regs = last_mfma_w[r]
                    need = {2:4, 4:6, 8:10, 16:18}[pp]
                    if dist(p) < need: err(f"MFMA D {r} -> MFMA D WAW (has {dist(p)})")
        elif I.kind in ("valu", "trans"):
            for r in I.rd + I.wr:
                if r in last_mfma_w:
                    p, pp, _ = last_mfma_w[r]
                    need = {2:5, 4:8, 8:12, 16:20}[pp]
                    if dist(p) < need: err(f"MFMA D {r} -> VALU needs {need} (has {dist(p)})")
            for r in I.wr:
                if r in last_mfma_c:
                    p, pp = last_mfma_c[r]
                    need = {2:1, 4:3, 8:7, 16:15}[pp]
                    if dist(p) < need: err(f"MFMA SrcC {r} -> VALU write WAR needs {need} (has {dist(p)})")
                if r in last_store_data and dist(last_store_data[r]) < 2: err(f"wide store data {r} overwritten too early")
            if I.kind == "valu":
                for r in I.rd:
                    if r in last_trans_w and dist(last_trans_w[r]) < 1: err(f"trans write {r} -> VALU read needs 1")
            if I.op.startswith("v_permlane"):
                for r in I.rd:
                    if r in last_valu_w and dist(last_valu_w[r]) < 2: err(f"VALU write {r} -> permlane needs 2")
            if I.op in ("v_readfirstlane_b32", "v_readlane_b32"):
                for r in I.rd:
                    if r[0] == "v" and r in last_valu_w and dist(last_valu_w[r]) < 1: err(f"VALU write {r} -> readlane needs 1")
                    if r[0] == "s" and r in valu_sgpr_w and dist(valu_sgpr_w[r]) < 4: err(f"VALU sgpr write {r} -> lane select needs 4")
            if "dpp" in I.text or "row_" in I.text:
                for r in I.rd:
                    if r in last_valu_w and dist(last_valu_w[r]) < 2: err(f"VALU write {r} -> DPP needs 2")
            for r in I.rd:
                if r[0] == "s" and r in valu_sgpr_w and dist(valu_sgpr_w[r]) < 2: err(f"VALU sgpr write {r} -> VALU read needs 2")
        elif I.kind in ("ds", "vmem"):
            for r in I.rd + I.wr:
                if r in last_mfma_w:
                    p, pp, _ = last_mfma_w[r]
                    need = {2:5, 4:8, 8:12, 16:20}[pp]
                    if dist(p) < need: err(f"MFMA D {r} -> mem op needs {need} (has {dist(p)})")
            for r in I.wr:
                if r in last_mfma_c:
                    p, pp = last_mfma_c[r]
                    need = {2:1, 4:3, 8:7, 16:15}[pp]
                    if dist(p) < need: err(f"MFMA SrcC {r} -> load write WAR needs {need} (has {dist(p)})")
            if I.kind == "vmem":
                for r in I.rd:
                    if r[0] == "s" and r in valu_sgpr_w and dist(valu_sgpr_w[r]) < 5: err(f"VALU sgpr write {r} -> VMEM read needs 5")
                if I.lds and ("s", 124) in last_salu_w and dist(last_salu_w[("s", 124)]) < 1: err("m0 write -> LDS DMA needs 1")
        elif I.kind == "salu":
            for r in I.rd:
                if r in valu_sgpr_w and dist(valu_sgpr_w[r]) < 1: err(f"VALU sgpr write {r} -> SALU read (pad 1+)")
        if I.op == "s_waitcnt":
            for m in I.mods:
                mm = re.match(r"(vmcnt|lgkmcnt|expcnt)\((\d+)\)", m)
                if not mm: continue
                n = int(mm.group(2))
                q = vm if mm.group(1) == "vmcnt" else lgkm if mm.group(1) == "lgkmcnt" else None
                if q is None: continue
                while len(q) > n:
                    regs, _ = q.pop(0)
                    for r in regs:
                        if not any(r in x[0] for x in q): pend.pop(r, None)
        if I.kind == "ds":
            lgkm.append((set(I.wr), I.text))
            for r in I.wr: pend[r] = "ds"
            if len(lgkm) > 15 and False: err("lgkmcnt overflow >15")
        elif I.kind == "smem":
            lgkm.append((set(I.wr), I.text)); lgkm.append((set(I.wr), I.text))
            for r in I.wr: pend[r] = "smem"
        elif I.kind == "vmem":
            vm.append((set(I.wr), I.text))
            for r in I.wr: pend[r] = "vm"
            if len(vm) > 63: err(f"vmcnt overflow ({len(vm)})")
        if I.kind == "mfma":
            P = mfma_passes(I.op)
            for r in I.wr:
                last_mfma_w[r] = (pos, P, I.wr); last_valu_w.pop(r, None)
            for r in regs_of(I.ops[3]): last_mfma_c[r] = (pos, P)
        elif I.kind in ("valu", "trans"):
            for r in I.wr:
                if r[0] == "s": valu_sgpr_w[r] = pos
                else:
                    last_valu_w[r] = pos; last_mfma_w.pop(r, None)
                    if I.kind == "trans": last_trans_w[r] = pos
                    else: last_trans_w.pop(r, None)
        elif I.kind == "salu":
            for r in I.wr:
                last_salu_w[r] = pos; valu_sgpr_w.pop(r, None)
        elif I.kind in ("ds", "vmem"):
            for r in I.wr:
                last_mfma_w.pop(r, None); last_valu_w.pop(r, None)
            if I.kind == "vmem" and ("store" in I.op) and ("x4" in I.op or "x3" in I.op):
                for r in regs_of(I.ops[0]): last_store_data[r] = pos
        pos += I.nstates
    if verbose:
        for e in errs[:60]: print(e)
        if len(errs) > 60: print(f"... {len(errs)-60} more")
    return errs

def gap_report(lines, name=""):
    ins = [Ins(l) for l in lines if is_instr(l)]
    gaps = []; cur = 0; n = 0
    for I in ins:
        if I.kind == "mfma":
            gaps.append(cur); cur = 0; n += 1
        else:
            cur += I.cost
    gaps.append(cur)
    tot = sum(max(32, g + 8) for g in gaps[1:]) + gaps[0]
    print(f"[{name}] mfma={n} fillers_cost={sum(gaps)} gaps={gaps} est_cycles={tot}")
    return gaps

def weave(backbone, streams):
    n = len(backbone)
    slots = {g: [] for g in range(-1, n)}
    for lines, g0, g1 in streams:
        m = len(lines); span = g1 - g0
        for i, l in enumerate(lines):
            g = g0 + (i * span) // m
            slots[g].append(l)
    out = list(slots[-1])
    for g in range(n):
        out.append(backbone[g]); out.extend(slots[g])
    return out

def cost_of(line):
    if not is_instr(line): return 0
    I = Ins(line)
    if I.kind == "ds": return 8
    if I.kind == "vmem": return 8
    return I.cost

def _schedule(ngaps, fixed, streams, L):
    load = {g: sum(cost_of(l) for l in fixed.get(g, [])) for g in range(ngaps)}
    placed = {}
    ptr = [0] * len(streams)
    G = max(op[2] for s_ in streams for op in s_) + 1
    g0 = min(op[1] for s_ in streams for op in s_)
    forced = 0
    for g in range(g0, G):
        while True:
            cand = []
            for si, st in enumerate(streams):
                if ptr[si] < len(st):
                    l, e, d = st[ptr[si]]
                    if e <= g:
                        cand.append((d, si))
            if not cand: break
            cand.sort()
            done = False
            for d, si in cand:
                l = streams[si][ptr[si]][0]
                c = cost_of(l)
                gm = g % ngaps
                if load[gm] + c <= L or d <= g:
                    if load[gm] + c > L: forced += load[gm] + c - L
                    placed.setdefault(g, []).append(l); load[gm] += c; ptr[si] += 1
                    done = True
                    break
            if not done: break
    for si, st in enumerate(streams):
        assert ptr[si] == len(st), f"stream {si} not fully placed {ptr[si]}/{len(st)}"
    return placed, load, forced

def schedule(ngaps, fixed, streams, budget=None, cyclic=True):
    best = None
    for L in range(8, 64, 2):
        placed, load, forced = _schedule(ngaps, fixed, streams, L)
        if forced == 0:
            best = (placed, load, forced); break
        if best is None or forced < best[2]: best = (placed, load, forced)
    placed = best[0]
    asg = []
    for st in streams:
        lst = []
        used = {}
        for (l, e, d) in st:
            for g in sorted(placed):
                cnt = placed[g].count(l)
                if cnt - used.get((g, l), 0) > 0 and g >= (lst[-1] if lst else -10**9) and e <= g <= d:
                    used[(g, l)] = used.get((g, l), 0) + 1
                    lst.append(g); break
            else:
                raise RuntimeError("lost op " + l)
        asg.append(lst)
    load = {g: sum(cost_of(l) for l in fixed.get(g, [])) for g in range(ngaps)}
    for st, lst in zip(streams, asg):
        for (l, e, d), g in zip(st, lst): load[g % ngaps] += cost_of(l)
    import random, math
    rnd = random.Random(1234)
    def pen(x): return x * x + (40 * (x - 22) ** 2 if x > 22 else 0)
    flat_ops = [(si, i) for si, st in enumerate(streams) for i in range(len(st))]
    costs = [[cost_of(l) for (l, e, d) in st] for st in streams]
    T = 200.0
    bestE = sum(pen(x) for x in load.values()); cur = bestE
    best_asg = [list(x) for x in asg];
    N = 60000
    for it in range(N):
        T = 200.0 * (1 - it / N) + 0.01
        si, i = flat_ops[rnd.randrange(len(flat_ops))]
        st, lst = streams[si], asg[si]
        l, e, d = st[i]; c = costs[si][i]; g = lst[i]
        ng = g + (1 if rnd.random() < 0.5 else -1)
        if ng < e or ng > d: continue
        if i + 1 < len(lst) and ng > lst[i + 1]: continue
        if i > 0 and ng < lst[i - 1]: continue
        a_, b_ = load[g % ngaps], load[ng % ngaps]
        dE = pen(a_ - c) + pen(b_ + c) - pen(a_) - pen(b_)
        if dE <= 0 or rnd.random() < math.exp(-dE / T):
            load[g % ngaps] -= c; load[ng % ngaps] += c; lst[i] = ng; cur += dE
            if cur < bestE: bestE = cur; best_asg = [list(x) for x in asg]
    asg = best_asg
    load = {g: sum(cost_of(l) for l in fixed.get(g, [])) for g in range(ngaps)}
    for st, lst in zip(streams, asg):
        for (l, e, d), g in zip(st, lst): load[g % ngaps] += cost_of(l)
    out = {}
    for st, lst in zip(streams, asg):
        for (l, e, d), g in zip(st, lst): out.setdefault(g, []).append(l)
    return out, load


def op_cost(op, dma_cost=12, ds_cost=6, st_cost=16):
    if isinstance(op, (tuple, list)): return sum(op_cost(x, dma_cost, ds_cost, st_cost) for x in op)
    if not is_instr(op): return 0
    I = Ins(op)
    if I.kind == "ds": return ds_cost
    if I.kind == "vmem": return st_cost if "store" in I.op else dma_cost
    return I.cost

def anneal(ngaps, base_load, streams, cap=22, iters_per_op=250, seed=7):
    import random, math
    rnd = random.Random(seed)
    load = list(base_load)
    costs = [[op_cost(o) for (o, e, d) in st] for st in streams]
    asg = []
    for st, cs in zip(streams, costs):
        lst = []
        n = len(st)
        i = 0
        while i < n:
            j = i
            while j < n and st[j][1:] == st[i][1:]: j += 1
            e, d = st[i][1], st[i][2]
            for t in range(i, j):
                g = e + ((t - i) * (d - e + 1)) // (j - i)
                if lst and g < lst[-1]: g = lst[-1]
                g = min(max(g, e), d)
                if lst and g < lst[-1]: g = lst[-1]
                lst.append(g)
            i = j
        for t in range(n):
            assert st[t][1] <= lst[t] <= st[t][2], (st[t], lst[t])
            load[lst[t]] += cs[t]
        asg.append(lst)
    def pen(x): return x * x + (30 * (x - cap) ** 2 if x > cap else 0)
    flat = [(si, i) for si, st in enumerate(streams) for i in range(len(st))]
    if not flat: return asg, load
    N = iters_per_op * len(flat)
    cur = 0.0; best = 0.0; best_asg = [list(x) for x in asg]
    for it in range(N):
        T = 150.0 * (1 - it / N) + 0.01
        si, i = flat[rnd.randrange(len(flat))]
        st, lst = streams[si], asg[si]
        e, d = st[i][1], st[i][2]; c = costs[si][i]; g = lst[i]
        ng = g + (1 if rnd.random() < 0.5 else -1)
        if ng < e or ng > d: continue
        if i + 1 < len(lst) and ng > lst[i + 1]: continue
        if i > 0 and ng < lst[i - 1]: continue
        a_, b_ = load[g], load[ng]
        dE = pen(a_ - c) + pen(b_ + c) - pen(a_) - pen(b_)
        if dE <= 0 or rnd.random() < math.exp(-dE / T):
            load[g] -= c; load[ng] += c; lst[i] = ng; cur += dE
            if cur < best - 1e-9: best = cur; best_asg = [list(x) for x in asg]
    load = list(base_load)
    for lst, cs in zip(best_asg, costs):
        for g, c in zip(lst, cs): load[g] += c
    return best_asg, load
```

```python
from gen_common import *
from gen_relayout import relayout_issue, relayout_finish
import struct, os
from gen_qproj import qproj
QFUSE = not os.environ.get('NOQFUSE')
def f32bits(x): return struct.unpack("<I", struct.pack("<f", x))[0]
BIAS = 96
THR = 2.0 ** 64
KRING, VRING = 4, 4
VBASE = KRING * 16384
LDS_A = 131072 + 20480
BIG = 1.0e30
STF = ' ' + os.environ.get('STQ', 'sc1')
BUDGET = int(os.environ.get('BUDGET', 20))

def gen_atta(k, label="A", merged=None):
    I = k.I
    ex = os.environ.get("EXP", "")
    SW = 4
    (sHead, sPair, sWave, sT, sT2, sIt, sKsrc, sVsrc, sWK, sWV, sNT, sTile, sR, sX, sVcur, sThr, sQlo, sQhi, sEnd, sT3) = range(16, 36)
    vL16, vT, vT2, vT3, vT4, vKc, vKn, vVc, vD0, vD1, vU, vL16V = 1, 2, 3, 4, 5, 6, 7, 8, 9, 10, 11, 15
    LA, LB, LLOW = 12, 13, 14
    S = [16, 32]; NM = [48, 64]; CM = [80, 96]; P = [112, 120]; KF = 128; VF = 160; TMP = 192
    SEL, LS = 224, 228
    MSUM = bool(os.environ.get('MSUM'))
    OL, OH, QL, QH = 0, 64, 128, 160
    def kf(j): return v(KF + 4 * j, 4)
    def vf(j): return v(VF + 4 * j, 4)
    if merged:
        k.sv = (250, 252); k.stamp_base = 65536
        I(f"s_mov_b32 {s(sWave)}, {s(merged['sWave'])}", f"s_mov_b32 {s(sHead)}, {s(merged['sHead'])}", f"s_mov_b32 {s(sPair)}, {s(merged['sPair'])}")
        I(f"s_mov_b32 s76, {s(merged['sCA'])}", f"s_mov_b32 s77, {s(merged['sCA'])}")
        for i in range(4): I(f"s_mov_b32 {s(SW+i)}, {s(merged['SWS']+i)}")
        I("s_load_dwordx2 s[56:57], s[0:1], 40")
    else:
        if os.environ.get("STAMPS"): I("s_mov_b32 s60, 0")
        I("s_load_dwordx2 s[12:13], s[0:1], 88", "s_load_dwordx2 s[56:57], s[0:1], 40")
        I(f"v_lshrrev_b32 {v(vT)}, 6, v0", "v_and_b32 v0, 63, v0", "s_nop 0", f"v_readfirstlane_b32 {s(sWave)}, {v(vT)}")
        I(f"s_and_b32 {s(sT)}, s2, 7", f"s_lshr_b32 {s(sT2)}, s2, 3", f"s_and_b32 {s(sPair)}, {s(sT2)}, 7", f"s_lshr_b32 {s(sT2)}, {s(sT2)}, 3",
          f"s_lshl_b32 {s(sHead)}, {s(sT)}, 2", f"s_add_u32 {s(sHead)}, {s(sHead)}, {s(sT2)}")
        I(f"s_lshr_b32 s3, s2, 3", "s_lshl_b32 s3, s3, 2", f"s_add_u32 s3, s3, {s(sWave)}")
        k.code_prefetch("aa", "atta_kernel", "L_end_atta_kernel", 7, 3, 8, 250, True)
        I("s_waitcnt lgkmcnt(0)")
        k.srd(SW, 12, LY.WS_END)
    I(f"v_lshlrev_b32 {v(vL16)}, 4, v0")
    I(f"s_lshl_b32 {s(sT)}, {s(sPair)}, 1", f"s_sub_u32 {s(sNT)}, 32, {s(sT)}")
    I(f"s_lshl_b32 {s(sT)}, {s(sHead)}, 19", f"s_lshl_b32 {s(sT2)}, {s(sWave)}, 12", f"s_add_u32 {s(sKsrc)}, {s(sT)}, {s(sT2)}",
      f"s_add_u32 {s(sVsrc)}, {s(sKsrc)}, {LY.WS_VA}")
    if LY.WS_KA: I(f"s_add_u32 {s(sKsrc)}, {s(sKsrc)}, {LY.WS_KA}")
    I(f"s_mov_b32 {s(sWK)}, {s(sT2)}", f"s_add_u32 {s(sWV)}, {s(sT2)}, {VBASE}")
    def ld(src, j): return f"buffer_load_dwordx4 {v(vL16)}, {s(SW,4)}, {s(src)} offen" + (f" offset:{j*1024}" if j else "") + " lds"
    def dma_static(isK, slot):
        src = sKsrc if isK else sVsrc
        return [f"s_add_u32 m0, {s(sWK if isK else sWV)}, {slot*16384}", "s_nop 0"] + [ld(src, j) for j in range(4)] + [f"s_add_u32 {s(src)}, {s(src)}, 16384"]
    def dmaK0(): return dma_static(True, 0)
    I(f"s_lshl_b32 {s(sQlo)}, {s(sPair)}, 2", f"s_add_u32 {s(sQlo)}, {s(sQlo)}, {s(sWave)}",
      f"s_lshl_b32 {s(sT)}, {s(sPair)}, 2", f"s_sub_u32 {s(sQhi)}, 60, {s(sT)}", f"s_add_u32 {s(sQhi)}, {s(sQhi)}, {s(sWave)}")
    def setup_consts(zero=True):
        I(f"v_and_b32 {v(vT)}, 31, v0", f"v_lshrrev_b32 {v(vT2)}, 5, v0", f"v_lshlrev_b32 {v(vT2)}, 2, {v(vT2)}", f"v_sub_u32 {v(vT)}, {v(vT)}, {v(vT2)}")
        for (sq, vd) in ((sQlo, vD0), (sQhi, vD1)):
            I(f"s_lshl_b32 {s(sT)}, {s(sq)}, 5", f"v_add_u32 {v(vd)}, {s(sT)}, {v(vT)}", f"v_cvt_f32_i32 {v(vd)}, {v(vd)}")
        if zero:
            for i in range(128): I(f"v_accvgpr_write_b32 {a(i)}, 0")
        I(f"v_mov_b32 {v(LA)}, 0", f"v_mov_b32 {v(LB)}, 0", f"s_mov_b32 {s(sThr)}, {f32bits(THR)}")
        if MSUM:
            I(f"v_lshrrev_b32 {v(vT)}, 2, v0", f"v_lshrrev_b32 {v(vT2)}, 4, v0", f"v_xor_b32 {v(vT)}, {v(vT)}, {v(vT2)}", f"v_and_b32 {v(vT)}, 1, {v(vT)}",
              f"v_mov_b32 {v(vT2)}, 0x3f803f80", f"v_cmp_eq_u32 vcc, 0, {v(vT)}", "s_nop 1")
            for i in range(4): I(f"v_cndmask_b32 {v(SEL+i)}, 0, {v(vT2)}, vcc")
    if not QFUSE:
        I(dma_static(True, 0))
        for (sq, base) in ((sQlo, QL), (sQhi, QH)):
            I(f"s_lshl_b32 {s(sT)}, {s(sHead)}, 6", f"s_add_u32 {s(sT)}, {s(sT)}, {s(sq)}", f"s_lshl_b32 {s(sT)}, {s(sT)}, 13", f"s_add_u32 {s(sT)}, {s(sT)}, {LY.WS_QA}",
              f"s_add_u32 {s(sT2)}, {s(sT)}, 4096")
            for j in range(8):
                I(f"buffer_load_dwordx4 {a(base+4*j,4)}, {v(vL16)}, {s(SW,4)}, {s(sT if j < 4 else sT2)} offen offset:{(j%4)*1024}")
    elif merged:
        def conv(tq):
            L = []
            for dt in range(4):
                b = merged["QA"] + (tq*4+dt)*16
                for i in range(0, 16, 2): L.append(f"v_pk_mul_f32 {v(b+i,2)}, {v(b+i,2)}, s[76:77]")
                for i in range(8): L.append(f"v_cvt_pk_bf16_f32 {v(b+i)}, {v(b+2*i)}, {v(b+2*i+1)}")
                for i in range(8): L.append(f"v_accvgpr_write_b32 {a((QL if tq == 0 else QH) + dt*8 + i)}, {v(b+i)}")
            return L
        I("s_waitcnt lgkmcnt(0)")
        sv, sb = k.sv, k.stamp_base
        k.sv, k.stamp_base = (38, 126), 0
        merged["handoff"]()
        k.sv, k.stamp_base = sv, sb
        if os.environ.get("STAMPS"): I("s_mov_b32 s60, 0")
        I(dma_static(True, 0), dma_static(True, 1), dma_static(True, 2), dma_static(True, 3), dma_static(False, 0), dma_static(False, 1))
        relayout_issue(k, sWave, vL16)
        I("s_nop 7")
        I(conv(0))
        conv_high = conv(1)
        setup_consts(zero=False)
    else:
        def grp(isK, slot):
            d = dma_static(isK, slot)
            return [tuple(d[:3]), (d[3],), (d[4],), tuple(d[5:])]
        K0, K1, K2, K3 = (grp(True, i) for i in range(4))
        V0, V1 = grp(False, 0), grp(False, 1)
        setup_consts()
        conv_high = qproj(k, sHead, sPair, sWave, QL, QH, {6: K0 + K1 + K2, 7: K3 + V0 + V1}, [])
        relayout_issue(k, sWave, vL16)
    if not QFUSE: setup_consts()
    I(f"s_mov_b32 {s(sR)}, 0", f"s_mov_b32 {s(sX)}, 0x8000", f"s_mov_b32 {s(sTile)}, 0")
    I(f"v_add_u32 {v(vKn)}, 16384, {v(vL16)}", f"v_add_u32 {v(vL16V)}, {VBASE}, {v(vL16)}", f"v_mov_b32 {v(vVc)}, {v(vL16V)}")

    if not QFUSE:
        I(dma_static(False, 0), dma_static(True, 1), dma_static(True, 2))
        relayout_issue(k, sWave, vL16)
        I(dma_static(False, 1), dma_static(True, 3))
    def rdK(j, base, step): return f"ds_read_b128 {kf(j)}, {v(base)} offset:{step*8192 + j*1024}"
    def rdV(j, step): return f"ds_read_b128 {vf(j)}, {v(vVc)} offset:{step*8192 + j*1024}"
    def QK(sb, Q, C):
        return [f"v_mfma_f32_32x32x16_bf16 {v(S[sb],16)}, {kf(j)}, {a(Q+4*j,4)}, {C if j == 0 else v(S[sb],16)}" for j in range(8)]
    def PV(pb, O):
        return [f"v_mfma_f32_32x32x16_bf16 {a(O+16*(j%4),16)}, {vf(j)}, {v(P[pb]+4*(j//4),4)}, {a(O+16*(j%4),16)}" for j in range(8)]
    def sm_ea(sb, l):
        L = []
        b = S[sb]
        for i in range(16):
            L.append(f"v_exp_f32 {v(b+i)}, {v(b+i)}")
            if i >= 2: L.append(f"v_add_f32 {v(l)}, {v(l)}, {v(b+i-2)}")
        L += [f"v_add_f32 {v(l)}, {v(l)}, {v(b+14)}", f"v_add_f32 {v(l)}, {v(l)}, {v(b+15)}"]
        return L
    def sm_cvt(sb, lo): return [f"v_cvt_pk_bf16_f32 {v(P[sb]+i)}, {v(S[sb]+2*i)}, {v(S[sb]+2*i+1)}" for i in range(lo, lo + 4)]
    def mask_ops(cb, nm, vd):
        L = [f"v_mul_f32 {v(vU)}, 0x{f32bits(BIG):08x}, {v(vd)}"]
        for r in range(16):
            c = (r & 3) + 8 * (r >> 2)
            L += [f"v_add_f32 {v(CM[cb]+r)}, 0x{f32bits(-(c - 0.5) * BIG):08x}, {v(vU)}"]
        for r in range(16):
            L += [f"v_min_f32 {v(CM[cb]+r)}, {v(nm)}, {v(CM[cb]+r)}"]
        L += [f"v_subrev_f32 {v(vd)}, 0x{f32bits(32.0):08x}, {v(vd)}" if False else f"v_add_f32 {v(vd)}, 0x{f32bits(-32.0):08x}, {v(vd)}"]
        return L

    EA1 = sm_ea(1, LB); CV1 = sm_cvt(1, 0) + sm_cvt(1, 4)
    NSPLIT = int(os.environ.get('NSPLIT', 14))
    A1 = EA1[:NSPLIT]; B1 = EA1[NSPLIT:] + CV1
    noadd = lambda L: [l for l in L if not l.startswith("v_add_f32")]
    NS2 = int(os.environ.get('NSPLIT2', 8))
    E1x = noadd(EA1); A1x = E1x[:NS2]; B1x = E1x[NS2:] + CV1
    def rowsum(pb, half): return f"v_mfma_f32_16x16x32_bf16 {v(LS,4)}, {v(SEL,4)}, {v(P[pb]+4*half,4)}, {v(LS,4)}"
    def build(mode, sit, masked=(False, False), prep=None, extra=None):
        if mode == "P1":   Qa, Qb, Oa, Ob, Na, Nb = QL, QH, OL, OH, NM[0], NM[1]
        elif mode == "HY": Qa, Qb, Oa, Ob, Na, Nb = QH, QH, OL, OH, NM[1], NM[1]
        else:              Qa, Qb, Oa, Ob, Na, Nb = QH, QH, OH, OH, NM[1], NM[1]
        Ca = v(CM[0], 16) if masked[0] else v(Na, 16)
        Cb = v(CM[1], 16) if masked[1] else v(Nb, 16)
        m = QK(0, Qa, Ca) + QK(1, Qb, Cb) + PV(0, Oa) + PV(1, Ob)
        fixed = {g: [] for g in range(32)}
        pre = {g: [] for g in range(32)}
        if extra:
            for g, ls in extra.items(): pre[g] += ls
        if mode == "P1":
            for j in range(8): fixed[8 + j].append(rdV(j, sit))
            for j in range(8): fixed[24 + j].append(rdK(j, vKc, sit))
            waits = {15: 4, 19: 0, 31: 4, 3: 0}
        elif mode == "HY":
            for j in range(8): fixed[j].append(rdK(j, vKc, 1))
            for j in range(8): fixed[8 + j].append(rdV(j, 1))
            for j in range(8): fixed[24 + j].append(rdK(j, vKn, 0))
            waits = {3: 4, 7: 4, 11: 4, 15: 4, 19: 0, 31: 4}
        elif mode == "P2":
            for j in range(8): fixed[j].append(rdK(j, vKc, 1))
            for j in range(8): fixed[8 + j].append(rdV(j, 0))
            for j in range(8): fixed[16 + j].append(rdV(j, 1))
            for j in range(8): fixed[24 + j].append(rdK(j, vKn, 0))
            waits = {3: 4, 7: 4, 11: 4, 15: 4, 19: 4, 23: 4, 27: 4, 31: 4}
        else:
            for j in range(8): fixed[8 + j].append(rdV(j, 0))
            for j in range(8): fixed[16 + j].append(rdV(j, 1))
            waits = {15: 4, 19: 4, 23: 4, 27: 0}
        allfixed = {g: pre[g] + fixed[g] + ([f"s_waitcnt lgkmcnt({waits[g]})"] if g in waits else []) for g in range(32)}
        p2 = MSUM and mode in ("P2", "DR")
        own2 = MSUM and mode in ("HY", "P2")
        if p2:
            for g, (pb, hf) in {17: (0, 0), 21: (0, 1), 25: (1, 0), 29: (1, 1)}.items(): pre[g] = [rowsum(pb, hf)] + pre[g]
            allfixed = {g: pre[g] + fixed[g] + ([f"s_waitcnt lgkmcnt({waits[g]})"] if g in waits else []) for g in range(32)}
        streams = [[(l, 0, 7) for l in (B1x if p2 else B1)]]
        if mode != "DR":
            ea0 = noadd(sm_ea(0, LA)) if own2 else sm_ea(0, LA)
            streams.append([(l, 9, 25) for l in ea0] + [(l, 19, 29) for l in sm_cvt(0, 0)] + [(l, 23, 30) for l in sm_cvt(0, 4)])
            streams.append([(l, 17, 31) for l in (A1x if own2 else A1)])
        if prep:
            for (cb, nm, vd) in prep:
                streams.append([(l, 10 if cb == 0 else 18, 31) for l in mask_ops(cb, nm, vd)])
        placed, load = schedule(32, allfixed, streams, budget=BUDGET if not prep else 32)
        out = []
        for g in range(32):
            if mode == "DR" and g < 16: pass
            else: out.append(m[g])
            body = pre[g] + fixed[g] + placed.get(g, [])
            if g in waits: body.append(f"s_waitcnt lgkmcnt({waits[g]})")
            out += body
        def keep(l):
            if "nolds" in ex and l.startswith("ds_read"): return False
            if "nomfma" in ex and l.startswith("v_mfma"): return False
            if "nocvt" in ex and l.startswith("v_cvt_pk"): return False
            if "noexp" in ex and l.startswith("v_exp"): return False
            if "noadd" in ex and l.startswith("v_add_f32"): return False
            if "nobar" in ex and l.startswith("s_barrier"): return False
            if "nodma" in ex and (l.startswith("buffer_load")): return False
            if "novm" in ex and l.startswith("s_waitcnt vmcnt"): return False
            if "nolg" in ex and l.startswith("s_waitcnt lgkm"): return False
            if "novalu" in ex and (l.startswith("v_exp") or l.startswith("v_add_f32") or l.startswith("v_cvt_pk")): return False
            return True
        return [l for l in out if keep(l)]

    def tile_ctl(tag, nvm=8, doK=True, doV=True):
        d = {}
        d[7] = [f"s_waitcnt vmcnt({nvm})", "s_barrier"]
        g = 8
        if doK:
            d.setdefault(8, []).append(f"s_or_b32 m0, {s(sR)}, {s(sWK)}")
            for j in range(4): d.setdefault(10 + 2 * j, []).append(ld(sKsrc, j))
            d.setdefault(17, []).append(f"s_add_u32 {s(sKsrc)}, {s(sKsrc)}, 16384")
        if doV:
            d.setdefault(17, []).append(f"s_add_u32 m0, {s(sX)}, {s(sWV)}")
            for j in range(4): d.setdefault(18 + 2 * j, []).append(ld(sVsrc, j))
            d.setdefault(25, []).append(f"s_add_u32 {s(sVsrc)}, {s(sVsrc)}, 16384")
        return d
    def check_ops(tag, two):
        if MSUM and not two: L = [f"v_cmp_lt_f32 vcc, {s(sThr)}, {v(LS)}"]
        else: L = [f"v_max_f32 {v(vT)}, {v(LA)}, {v(LB)}", f"v_cmp_lt_f32 vcc, {s(sThr)}, {v(vT)}"]
        L += [f"s_cbranch_vccnz L_{label}_rare_{tag}" if not ex else "s_nop 0", f"L_{label}_ret_{tag}:"]
        return L
    def adv_scalar():
        return {26: [f"s_add_u32 {s(sR)}, {s(sR)}, 16384", f"s_add_u32 {s(sTile)}, {s(sTile)}, 1"],
                27: [f"s_and_b32 {s(sR)}, {s(sR)}, 0xffff"],
                28: [f"s_xor_b32 {s(sX)}, {s(sR)}, 0x8000", f"v_add_u32 {v(vVc)}, {s(sR)}, {v(vL16V)}"]}
    def merge(*ds):
        o = {}
        for d in ds:
            for g, ls in d.items(): o.setdefault(g, []).extend(ls)
        return o
    P1HEAD = {1: [f"v_mov_b32 {v(vKc)}, {v(vKn)}", f"v_add_u32 {v(vKn)}, {s(sX)}, {v(vL16)}"]}
    P2HEAD = {1: [f"v_add_u32 {v(vKn)}, {s(sX)}, {v(vL16)}"], 12: [f"v_mov_b32 {v(vKc)}, {v(vKn)}"]}
    HYX = {12: [f"v_mov_b32 {v(vKc)}, {v(vKn)}"]}
    def advance(): return []
    def rare(tag, two):
        L = ["s_nop 7", "s_nop 7"]
        def scale_p(pb, al):
            o = []
            for i in range(8):
                o += [f"v_lshlrev_b32 {v(vT3)}, 16, {v(P[pb]+i)}", f"v_and_b32 {v(vT4)}, 0xffff0000, {v(P[pb]+i)}",
                      f"v_ldexp_f32 {v(vT3)}, {v(vT3)}, {v(al)}", f"v_ldexp_f32 {v(vT4)}, {v(vT4)}, {v(al)}", f"v_cvt_pk_bf16_f32 {v(P[pb]+i)}, {v(vT3)}, {v(vT4)}"]
            return o
        def kof(src_regs):
            o = [f"v_mov_b32 {v(vT)}, {v(src_regs[0])}"]
            for r in src_regs[1:]: o.append(f"v_add_f32 {v(vT)}, {v(vT)}, {v(r)}")
            o += [f"v_mov_b32 {v(vT2)}, {v(vT)}", "s_nop 1", f"v_permlane32_swap_b32 {v(vT)}, {v(vT2)}", "s_nop 1", f"v_add_f32 {v(vT)}, {v(vT)}, {v(vT2)}",
                  f"v_frexp_exp_i32_f32 {v(TMP)}, {v(vT)}", f"v_add_u32 {v(TMP)}, 0x{BIAS:x}, {v(TMP)}", f"v_max_i32 {v(TMP)}, 0, {v(TMP)}",
                  f"v_cvt_f32_i32 {v(TMP+2)}, {v(TMP)}", f"v_sub_u32 {v(TMP+1)}, 0, {v(TMP)}"]
            return o
        def scale_o(O):
            o = []
            for i in range(64):
                t = TMP + 4 + (i % 4)
                o += [f"v_accvgpr_read_b32 {v(t)}, {a(O+i)}", f"v_ldexp_f32 {v(t)}, {v(t)}, {v(TMP+1)}", f"v_accvgpr_write_b32 {a(O+i)}, {v(t)}"]
            return o
        def sub16(base): return [f"v_sub_f32 {v(base+i)}, {v(base+i)}, {v(TMP+2)}" for i in range(16)]
        if two:
            for q in range(2):
                L += kof([LA if q == 0 else LB])
                L += [f"v_ldexp_f32 {v(LA if q == 0 else LB)}, {v(LA if q == 0 else LB)}, {v(TMP+1)}"]
                L += scale_o(OL if q == 0 else OH) + scale_p(q, TMP + 1) + sub16(S[q]) + sub16(NM[q])
        else:
            if MSUM:
                L += [f"v_frexp_exp_i32_f32 {v(TMP)}, {v(LS)}", f"v_add_u32 {v(TMP)}, 0x{BIAS:x}, {v(TMP)}", f"v_max_i32 {v(TMP)}, 0, {v(TMP)}",
                      f"v_cvt_f32_i32 {v(TMP+2)}, {v(TMP)}", f"v_sub_u32 {v(TMP+1)}, 0, {v(TMP)}"]
                L += [f"v_ldexp_f32 {v(LS+i)}, {v(LS+i)}, {v(TMP+1)}" for i in range(4)]
            else:
                L += kof([LA, LB])
                L += [f"v_ldexp_f32 {v(LA)}, {v(LA)}, {v(TMP+1)}", f"v_ldexp_f32 {v(LB)}, {v(LB)}, {v(TMP+1)}"]
            L += scale_o(OH) + scale_p(0, TMP + 1) + scale_p(1, TMP + 1) + sub16(S[0]) + sub16(S[1]) + sub16(NM[1])
        L += ["s_nop 1", f"s_branch L_{label}_ret_{tag}"]
        return L
    rares = []

    if QFUSE: I("s_waitcnt vmcnt(25)", "s_barrier")
    else:
        I("s_waitcnt vmcnt(33)", "s_barrier")
        k.stamp(6)
    for j in range(8): I(rdK(j, vL16, 0))
    if QFUSE: I(conv_high)
    I(f"s_cmp_lg_u32 {s(sPair)}, 0", f"s_cbranch_scc1 L_{label}_nomask0")
    I(f"v_mov_b32 {v(TMP)}, 0")
    I(mask_ops(0, TMP, vD0))
    I("s_waitcnt lgkmcnt(0)")
    I(QK(0, QL, v(CM[0], 16)))
    I(f"s_branch L_{label}_m0done")
    I(f"L_{label}_nomask0:", f"v_add_f32 {v(vD0)}, 0x{f32bits(-32.0):08x}, {v(vD0)}", "s_waitcnt lgkmcnt(0)")
    I(QK(0, QL, "0"))
    I(f"L_{label}_m0done:", f"v_add_f32 {v(vD1)}, 0x{f32bits(-32.0):08x}, {v(vD1)}", "s_nop 0" if QFUSE else "s_waitcnt vmcnt(25)")
    def maxtree(q, t1, t2):
        b = S[q]
        L = [f"v_max3_f32 {v(t1)}, {v(b)}, {v(b+1)}, {v(b+2)}"]
        L += [f"v_max3_f32 {v(t1)}, {v(t1)}, {v(b+i)}, {v(b+i+1)}" for i in range(3, 15, 2)]
        L += [f"v_max_f32 {v(t1)}, {v(t1)}, {v(b+15)}", f"v_mov_b32 {v(t2)}, {v(t1)}", "s_nop 1",
              f"v_permlane32_swap_b32 {v(t1)}, {v(t2)}", "s_nop 1", f"v_max_f32 {v(t1)}, {v(t1)}, {v(t2)}",
              f"v_add_f32 {v(t1)}, 0x{f32bits(float(BIAS)):08x}, {v(t1)}"]
        L += [f"v_sub_f32 {v(NM[q]+i)}, 0, {v(t1)}" for i in range(16)]
        L += [f"v_sub_f32 {v(b+i)}, {v(b+i)}, {v(t1)}" for i in range(16)]
        return L
    qh = QK(1, QH, "0"); lo = maxtree(0, vT, vT2)
    seq = weave(qh, [(lo[:30], 2, 8)]) + [rdK(j, vL16, 1) for j in range(8)] + lo[30:] + sm_ea(0, LA)[:8]
    I(seq)
    check(QK(0, QL, "0") + seq + maxtree(1, vT3, vT4), "atta_pro")
    I(maxtree(1, vT3, vT4))
    I(sm_ea(0, LA)[8:], "s_nop 0", sm_cvt(0, 0), sm_cvt(0, 4), A1)
    I("s_waitcnt lgkmcnt(0)")
    k.stamp(1)
    I(f"s_lshl_b32 {s(sEnd)}, {s(sPair)}, 1", f"s_sub_u32 {s(sEnd)}, {s(sEnd)}, 1")
    I(f"s_cmp_lt_i32 {s(sEnd)}, 1", f"s_cbranch_scc1 L_{label}_p1m_enter")
    I(f"L_{label}_p1:")
    e = tile_ctl("p1"); e[8] = e.get(8, []) + check_ops("p1", True)
    b1 = build("P1", 0, extra=merge(e, P1HEAD)); b2 = build("P1", 1, extra=adv_scalar())
    I(b1, b2, advance())
    I(f"s_cmp_lt_i32 {s(sTile)}, {s(sEnd)}", f"s_cbranch_scc1 L_{label}_p1")
    rares.append(("p1", True))
    flat = lambda L: [l for l in L if not l.endswith(":") and not l.startswith("s_cbranch")]
    pro = [rdK(j, vL16, 1) for j in range(8)] + A1 + ["s_waitcnt lgkmcnt(0)"]
    check(pro + flat(b1 + b2 + advance()) * 2, "atta_p1"); gap_report(flat(b1 + b2 + advance()), "atta_p1")
    I(f"L_{label}_p1m_enter:")
    I(f"s_lshl_b32 {s(sT)}, {s(sTile)}, 6", f"v_cvt_f32_u32 {v(vT)}, {s(sT)}", f"v_sub_f32 {v(vD0)}, {v(vD0)}, {v(vT)}")
    I(mask_ops(0, NM[0], vD0))
    I(f"s_lshl_b32 {s(sEnd)}, {s(sPair)}, 1", f"s_add_u32 {s(sEnd)}, {s(sEnd)}, 1")
    I(f"L_{label}_p1m:")
    e = tile_ctl("p1m"); e[8] = e.get(8, []) + check_ops("p1m", True)
    b1 = build("P1", 0, masked=(True, False), prep=[(0, NM[0], vD0)], extra=merge(e, P1HEAD))
    b2 = build("P1", 1, masked=(True, False), prep=[(0, NM[0], vD0)], extra=adv_scalar())
    I(b1, b2, advance())
    I(f"s_cmp_lt_u32 {s(sTile)}, {s(sEnd)}", f"s_cbranch_scc1 L_{label}_p1m")
    rares.append(("p1m", True))
    check(pro + flat(b1 + b2 + advance()) * 2, "atta_p1m"); gap_report(flat(b1 + b2 + advance()), "atta_p1m")
    e = tile_ctl("p1l"); e[8] = e.get(8, []) + check_ops("p1lm", True)
    I(f"s_lshl_b32 {s(sT)}, {s(sTile)}, 6", f"s_add_u32 {s(sT)}, {s(sT)}, 32", f"v_cvt_f32_u32 {v(vT)}, {s(sT)}", f"v_sub_f32 {v(vD1)}, {v(vD1)}, {v(vT)}")
    b1 = build("P1", 0, masked=(True, False), extra=merge(e, P1HEAD))
    I(b1)
    rares.append(("p1lm", True))
    I(mask_ops(0, NM[1], vD1), mask_ops(1, NM[1], vD1))
    I(f"v_mov_b32 {v(LLOW)}, {v(LA)}", f"v_mov_b32 {v(LA)}, 0")
    b2 = build("HY", 1, masked=(True, True), extra=merge(HYX, adv_scalar()))
    I(b2, advance())
    if MSUM:
        I(f"v_mov_b32 {v(vT)}, {v(LB)}", f"v_mov_b32 {v(vT2)}, {v(LB)}", "s_nop 1", f"v_permlane32_swap_b32 {v(vT)}, {v(vT2)}", "s_nop 1")
        for i in range(4): I(f"v_add_f32 {v(LS+i)}, {v(vT)}, {v(vT2)}")
    check(pro + flat(b1) + flat(b2), "atta_hy")
    I(f"s_sub_u32 {s(sEnd)}, {s(sNT)}, 3")
    I(f"s_cmp_ge_u32 {s(sTile)}, {s(sEnd)}", f"s_cbranch_scc1 L_{label}_p2m_enter")
    I(f"L_{label}_p2:")
    e = tile_ctl("p2"); e[8] = e.get(8, []) + check_ops("p2", False)
    b1 = build("P2", 0, extra=merge(e, P2HEAD, adv_scalar()))
    I(b1, advance())
    I(f"s_cmp_lt_u32 {s(sTile)}, {s(sEnd)}", f"s_cbranch_scc1 L_{label}_p2")
    rares.append(("p2", False))
    check(pro + flat(b1 + advance()) * 3, "atta_p2"); gap_report(flat(b1 + advance()), "atta_p2")
    I(f"L_{label}_p2m_enter:")
    I(f"v_and_b32 {v(vT)}, 31, v0", f"v_lshrrev_b32 {v(vT2)}, 5, v0", f"v_lshlrev_b32 {v(vT2)}, 2, {v(vT2)}", f"v_sub_u32 {v(vT)}, {v(vT)}, {v(vT2)}",
      f"s_lshl_b32 {s(sT)}, {s(sQhi)}, 5", f"s_lshl_b32 {s(sT2)}, {s(sTile)}, 6", f"s_add_u32 {s(sT2)}, {s(sT2)}, 64", f"s_sub_i32 {s(sT)}, {s(sT)}, {s(sT2)}",
      f"v_add_u32 {v(vD1)}, {s(sT)}, {v(vT)}", f"v_cvt_f32_i32 {v(vD1)}, {v(vD1)}")
    I(f"s_sub_u32 {s(sEnd)}, {s(sNT)}, 1")
    I(f"L_{label}_p2m:")
    I(mask_ops(0, NM[1], vD1), mask_ops(1, NM[1], vD1))
    e = tile_ctl("p2m", nvm=4, doK=False); e[8] = e.get(8, []) + check_ops("p2m", False)
    b1 = build("P2", 0, masked=(True, True), extra=merge(e, P2HEAD, adv_scalar()))
    I(b1, advance())
    I(f"s_cmp_lt_u32 {s(sTile)}, {s(sEnd)}", f"s_cbranch_scc1 L_{label}_p2m")
    rares.append(("p2m", False))
    e = {7: ["s_waitcnt vmcnt(4)", "s_barrier"]}
    b1 = build("DR", 0, extra=e)
    I(b1)
    check(pro + flat(build("P2", 0)) + flat(b1), "atta_dr")
    k.stamp(2)
    I("s_nop 7", "s_nop 7")
    if MSUM: I(f"v_mul_f32 {v(LA)}, 0.5, {v(LS)}")
    else: I(f"v_add_f32 {v(LA)}, {v(LA)}, {v(LB)}")
    ZR, CK = S[0], S[1]
    def epilogue(with_check):
        if with_check:
            for i in range(4): I(f"v_mov_b32 {v(ZR+i)}, 0")
        first = True
        for (O, lreg, sq) in ((OL, LLOW, sQlo), (OH, LA, sQhi)):
            I(f"v_mov_b32 {v(vT)}, {v(lreg)}", f"v_mov_b32 {v(vT2)}, {v(lreg)}", "s_nop 1", f"v_permlane32_swap_b32 {v(vT)}, {v(vT2)}", "s_nop 1",
              f"v_add_f32 {v(vT)}, {v(vT)}, {v(vT2)}")
            if with_check:
                I(f"v_mul_f32 {v(vU)}, 0, {v(vT)}" if O == OL else f"v_fma_f32 {v(vU)}, {v(vT)}, 0, {v(vU)}")
            I(f"v_rcp_f32 {v(vT)}, {v(vT)}")
            I(f"s_lshl_b32 {s(sT)}, {s(sq)}, 18", f"s_lshl_b32 {s(sT2)}, {s(sHead)}, 13", f"s_add_u32 {s(sT)}, {s(sT)}, {s(sT2)}", f"s_add_u32 {s(sT)}, {s(sT)}, {LY.WS_CTX}",
              f"s_add_u32 {s(sT2)}, {s(sT)}, 4096")
            for f in range(8):
                base = O + (f >> 1) * 16 + (f & 1) * 8
                tb = TMP + (f % 2) * 12 if False else (KF + (f % 4) * 12)
                for i in range(8): I(f"v_accvgpr_read_b32 {v(tb+i)}, {a(base+i)}")
                for i in range(8): I(f"v_mul_f32 {v(tb+i)}, {v(vT)}, {v(tb+i)}")
                for i in range(4): I(f"v_cvt_pk_bf16_f32 {v(tb+8+i)}, {v(tb+2*i)}, {v(tb+2*i+1)}")
                I(f"buffer_store_dwordx4 {v(tb+8,4)}, {v(vL16)}, {s(SW,4)}, {s(sT if f < 4 else sT2)} offen offset:{(f%4)*1024}{STF}")
                if with_check:
                    I("s_nop 0", f"v_mfma_f32_32x32x16_bf16 {v(CK,16)}, {v(ZR,4)}, {v(tb+8,4)}, {'0' if first else v(CK,16)}")
                    first = False
    epilogue(True)
    I("s_nop 7", "s_nop 7")
    I(f"v_add_f32 {v(vU)}, {v(vU)}, {v(CK)}", "s_nop 0", f"v_cmp_u_f32 vcc, {v(vU)}, {v(vU)}", f"s_cbranch_vccnz L_{label}_slow" if not ex else "s_nop 0")
    if os.environ.get("STAMPS"):
        I("v_mov_b32 v250, s60", "v_mov_b32 v252, 0", "s_lshl_b32 s96, s2, 6", "s_add_u32 s96, s96, 40", f"s_add_u32 s96, s96, {LY.WS_STAMP}",
          f"buffer_store_dword v250, v252, {s(SW,4)}, s96 offen") if False else None
    I(f"L_{label}_tail:")
    k.stamp(7)
    relayout_finish(k, sWave, vL16, SW)
    k.stamp(3)
    k.stampval(5, "s60")
    I("s_endpgm")
    for tag, two in rares:
        I(f"L_{label}_rare_{tag}:")
        if os.environ.get("STAMPS"): I(f"s_add_u32 s60, s60, 1")
        I(rare(tag, two))
    I(f"L_{label}_slow:")
    k.stamp(4)
    sN, sKa, sVa = sEnd, sKsrc, sVsrc
    vM, vA, vMx, vDs = TMP + 24, TMP + 25, TMP + 26, TMP + 27
    for (O, Q, lreg, sq) in ((OL, QL, LLOW, sQlo), (OH, QH, LA, sQhi)):
        tg = "lo" if O == OL else "hi"
        for i in range(64): I(f"v_accvgpr_write_b32 {a(O+i)}, 0")
        I(f"v_mov_b32 {v(lreg)}, 0", f"v_mov_b32 {v(vM)}, 0xff7fffff")
        I(f"v_and_b32 {v(vT)}, 31, v0", f"v_lshrrev_b32 {v(vT2)}, 5, v0", f"v_lshlrev_b32 {v(vT2)}, 2, {v(vT2)}", f"v_sub_u32 {v(vT)}, {v(vT)}, {v(vT2)}",
          f"s_lshl_b32 {s(sT)}, {s(sq)}, 5", f"v_add_u32 {v(vDs)}, {s(sT)}, {v(vT)}", f"v_cvt_f32_i32 {v(vDs)}, {v(vDs)}")
        I(f"s_add_u32 {s(sN)}, {s(sq)}, 1", f"s_mov_b32 {s(sIt)}, 0")
        I(f"s_lshl_b32 {s(sKa)}, {s(sHead)}, 19", f"s_add_u32 {s(sVa)}, {s(sKa)}, {LY.WS_VA}")
        if LY.WS_KA: I(f"s_add_u32 {s(sKa)}, {s(sKa)}, {LY.WS_KA}")
        I(f"L_{label}_slow_{tg}:")
        I(f"s_add_u32 {s(sT)}, {s(sKa)}, 4096", f"s_add_u32 {s(sT2)}, {s(sVa)}, 4096")
        for j in range(8): I(f"buffer_load_dwordx4 {kf(j)}, {v(vL16)}, {s(SW,4)}, {s(sKa if j < 4 else sT)} offen offset:{(j%4)*1024}")
        for j in range(8): I(f"buffer_load_dwordx4 {vf(j)}, {v(vL16)}, {s(SW,4)}, {s(sVa if j < 4 else sT2)} offen offset:{(j%4)*1024}")
        I(f"v_mov_b32 {v(vA)}, 0")
        I(mask_ops(0, vA, vDs))
        I("s_waitcnt vmcnt(0)")
        I(QK(0, Q, v(CM[0], 16)), "s_nop 7", "s_nop 7")
        b = S[0]
        I(f"v_max3_f32 {v(vMx)}, {v(b)}, {v(b+1)}, {v(b+2)}")
        for i in range(3, 15, 2): I(f"v_max3_f32 {v(vMx)}, {v(vMx)}, {v(b+i)}, {v(b+i+1)}")
        I(f"v_max3_f32 {v(vMx)}, {v(vMx)}, {v(b+15)}, {v(vM)}", f"v_mov_b32 {v(vT2)}, {v(vMx)}", "s_nop 1",
          f"v_permlane32_swap_b32 {v(vMx)}, {v(vT2)}", "s_nop 1", f"v_max_f32 {v(vMx)}, {v(vMx)}, {v(vT2)}",
          f"v_sub_f32 {v(vA)}, {v(vM)}, {v(vMx)}", f"v_exp_f32 {v(vA)}, {v(vA)}", f"v_mov_b32 {v(vM)}, {v(vMx)}")
        for i in range(16): I(f"v_sub_f32 {v(b+i)}, {v(b+i)}, {v(vMx)}")
        for i in range(16): I(f"v_exp_f32 {v(b+i)}, {v(b+i)}")
        I(f"v_mul_f32 {v(lreg)}, {v(vA)}, {v(lreg)}")
        for i in range(16): I(f"v_add_f32 {v(lreg)}, {v(lreg)}, {v(b+i)}")
        for i in range(64):
            t = TMP + (i % 4)
            I(f"v_accvgpr_read_b32 {v(t)}, {a(O+i)}", f"v_mul_f32 {v(t)}, {v(vA)}, {v(t)}", f"v_accvgpr_write_b32 {a(O+i)}, {v(t)}")
        I(sm_cvt(0, 0), sm_cvt(0, 4), "s_nop 1", PV(0, O), "s_nop 7", "s_nop 7")
        I(f"s_add_u32 {s(sKa)}, {s(sKa)}, 8192", f"s_add_u32 {s(sVa)}, {s(sVa)}, 8192", f"s_add_u32 {s(sIt)}, {s(sIt)}, 1", f"s_cmp_lt_u32 {s(sIt)}, {s(sN)}", f"s_cbranch_scc1 L_{label}_slow_{tg}")
    epilogue(False)
    I(f"s_branch L_{label}_tail")
```

```python
from gen_common import *
import os

def oproj_tile(k, tag, isA, D, barriers=None, wave_reg=None, lds_base=0, ACC=16, BUF=112, prio=None):
    I = k.I
    SW, SO = 4, 8
    sC0, sC1, sW, sT, sT2, sMT, sNT, sCnt, sOB = 16, 17, 18, 19, 20, 22, 23, 24, 25
    sWave = wave_reg
    vL16, vRow, vT = 1, 2, 3
    NK = 64 if isA else 9
    I("s_load_dwordx2 s[12:13], s[0:1], 88", "s_load_dwordx2 s[14:15], s[0:1], 72")
    I(f"v_lshlrev_b32 {v(vL16)}, 4, v0")
    I(f"v_and_b32 {v(vT)}, 31, v0", f"v_mul_u32_u24 {v(vRow)}, 2304, {v(vT)}", f"v_lshrrev_b32 {v(vT)}, 5, v0", f"v_lshl_add_u32 {v(vRow)}, {v(vT)}, 3, {v(vRow)}")
    I(f"s_and_b32 {s(sT)}, s2, 7", f"s_lshr_b32 {s(sT2)}, s2, 3")
    I(f"s_and_b32 {s(sMT)}, {s(sT2)}, 3", f"s_lshl_b32 {s(sT)}, {s(sT)}, 2", f"s_add_u32 {s(sMT)}, {s(sMT)}, {s(sT)}", f"s_lshr_b32 {s(sNT)}, {s(sT2)}, 2")
    I("s_waitcnt lgkmcnt(0)")
    k.srd(SW, 12, LY.WS_END); k.srd(SO, 14, 2048 * 2304)
    if isA:
        I(f"s_lshl_b32 {s(sC0)}, {s(sMT)}, 19", f"s_lshl_b32 {s(sT)}, {s(sWave)}, 16", f"s_add_u32 {s(sC0)}, {s(sC0)}, {s(sT)}",
          f"s_add_u32 {s(sC0)}, {s(sC0)}, {LY.WS_CTX}", f"s_add_u32 {s(sC1)}, {s(sC0)}, 262144")
        I(f"s_mul_i32 {s(sW)}, {s(sWave)}, {64*18432}", f"s_mul_i32 {s(sT)}, {s(sNT)}, 3072", f"s_add_u32 {s(sW)}, {s(sW)}, {s(sT)}", f"s_add_u32 {s(sW)}, {s(sW)}, {LY.WS_WOA}")
    else:
        I(f"s_mul_i32 {s(sC0)}, {s(sMT)}, {2*36864}", f"s_mul_i32 {s(sT)}, {s(sWave)}, {9*1024}", f"s_add_u32 {s(sC0)}, {s(sC0)}, {s(sT)}",
          f"s_add_u32 {s(sC0)}, {s(sC0)}, {LY.WS_OB}", f"s_add_u32 {s(sC1)}, {s(sC0)}, 36864")
        I(f"s_mul_i32 {s(sW)}, {s(sWave)}, {9*18432}", f"s_mul_i32 {s(sT)}, {s(sNT)}, 3072", f"s_add_u32 {s(sW)}, {s(sW)}, {s(sT)}", f"s_add_u32 {s(sW)}, {s(sW)}, {LY.WS_WOB}")
    if prio is not None: I(f"s_setprio {prio}")
    def buf(j, f): return v(BUF + (j * 5 + f) * 4, 4)
    def loads(j):
        L = [f"buffer_load_dwordx4 {buf(j,0)}, {v(vL16)}, {s(SW,4)}, {s(sC0)} offen", f"buffer_load_dwordx4 {buf(j,1)}, {v(vL16)}, {s(SW,4)}, {s(sC1)} offen"]
        for t in range(3): L.append(f"buffer_load_dwordx4 {buf(j,2+t)}, {v(vL16)}, {s(SW,4)}, {s(sW)} offen" + (f" offset:{t*1024}" if t else ""))
        L += [f"s_add_u32 {s(sC0)}, {s(sC0)}, 1024", f"s_add_u32 {s(sC1)}, {s(sC1)}, 1024", f"s_add_u32 {s(sW)}, {s(sW)}, 18432"]
        return L
    def mfmas(j, first=False):
        L = []
        for tq in range(2):
            for tn in range(3):
                ac = v(ACC + (tq * 3 + tn) * 16, 16)
                L.append(f"v_mfma_f32_32x32x16_bf16 {ac}, {buf(j,2+tn)}, {buf(j,tq)}, {'0' if first else ac}")
        return L
    seq = []
    for j in range(min(D, NK)): seq += loads(j)
    if barriers is None:
        out = []
        for ks in range(NK):
            j = ks % D
            rem = min(D - 1, NK - 1 - ks)
            out.append(f"s_waitcnt vmcnt({5*rem})"); out += mfmas(j, ks == 0)
            if ks + D < NK: out += loads(j)
        if NK > 2 * D and NK % D == 0:
            I(seq)
            body0 = []
            for j in range(D): body0 += [f"s_waitcnt vmcnt({5*(D-1)})"] + mfmas(j, j == 0) + loads(j)
            I(body0)
            I(f"s_mov_b32 {s(sCnt)}, {NK // D - 2}", f"L_op_loop_{tag}:")
            body = []
            for j in range(D): body += [f"s_waitcnt vmcnt({5*(D-1)})"] + mfmas(j) + loads(j)
            I(body, f"s_sub_u32 {s(sCnt)}, {s(sCnt)}, 1", f"s_cmp_lg_u32 {s(sCnt)}, 0", f"s_cbranch_scc1 L_op_loop_{tag}")
            tail = []
            for j in range(D): tail += [f"s_waitcnt vmcnt({5*(D-1-j)})"] + mfmas(j)
            I(tail)
            check(seq + body0 + body + body + tail, f"oproj_{tag}")
        else:
            I(seq, out); check(seq + out, f"oproj_{tag}")
    else:
        I(seq)
        done = 0
        if os.environ.get("WAITSTAT"): I("s_mov_b32 s49, 0", "s_memtime s[50:51]")
        allc = list(seq)
        bounds = list(barriers)
        ks = 0
        n = 0
        for bi, upto in enumerate(bounds):
            while ks < upto:
                j = ks % D
                rem = min(D - 1, NK - 1 - ks)
                o = [f"s_waitcnt vmcnt({5*rem})"] + mfmas(j, ks == 0)
                if ks + D < NK: o += loads(j)
                I(o); allc += o
                ks += 1
            if bi < len(bounds) - 1:
                if os.environ.get("WAITSTAT"): I("s_memtime s[40:41]", "s_waitcnt lgkmcnt(0)", "s_barrier", "s_memtime s[44:45]", "s_waitcnt lgkmcnt(0)", "s_sub_u32 s46, s44, s40", "s_add_u32 s49, s49, s46")
                else: I("s_barrier")
        check(allc, f"oproj_{tag}")
    if barriers is not None and os.environ.get("WAITSTAT"):
        I("s_memtime s[52:53]", "s_waitcnt lgkmcnt(0)", "s_sub_u32 s52, s52, s50"); k.stampval(6, "s52"); k.stampval(7, "s49")
    I("s_nop 7", "s_nop 7")
    vA, vA2 = 4, 5
    I(f"s_mul_i32 {s(sT)}, {s(sWave)}, 24576", f"s_add_u32 {s(sT)}, {s(sT)}, {lds_base}", f"v_add_u32 {v(vA)}, {s(sT)}, {v(vL16)}")
    for u in range(24): I(f"ds_write_b128 {v(vA)}, {v(ACC + u*4, 4)} offset:{u*1024}")
    I("s_waitcnt lgkmcnt(0)", "s_barrier")
    I(f"s_mul_i32 {s(sT)}, {s(sWave)}, 6144", f"s_add_u32 {s(sT)}, {s(sT)}, {lds_base}", f"v_add_u32 {v(vA)}, {s(sT)}, {v(vL16)}", f"v_add_u32 {v(vA2)}, 49152, {v(vA)}")
    R = ACC
    for i in range(6):
        for p in range(4):
            base = vA if p < 2 else vA2
            I(f"ds_read_b128 {v(R + (i*4+p)*4, 4)}, {v(base)} offset:{(p%2)*24576 + i*1024}")
    I(f"s_mul_i32 {s(sOB)}, {s(sMT)}, {64*2304}", f"s_mul_i32 {s(sT)}, {s(sNT)}, 192", f"s_add_u32 {s(sOB)}, {s(sOB)}, {s(sT)}")
    if not isA: I(f"s_add_u32 {s(sOB)}, {s(sOB)}, 1152")
    for i in range(6):
        I(f"s_waitcnt lgkmcnt({min(15, 4*(5-i))})")
        b = R + i * 16
        for e in range(4):
            I(f"v_add_f32 {v(b+e)}, {v(b+e)}, {v(b+4+e)}", f"v_add_f32 {v(b+8+e)}, {v(b+8+e)}, {v(b+12+e)}")
        for e in range(4): I(f"v_add_f32 {v(b+e)}, {v(b+e)}, {v(b+8+e)}")
        I(f"v_cvt_pk_bf16_f32 {v(b)}, {v(b)}, {v(b+1)}", f"v_cvt_pk_bf16_f32 {v(b+1)}, {v(b+2)}, {v(b+3)}")
        I(f"s_mul_i32 {s(sT)}, {s(sWave)}, 6", f"s_add_u32 {s(sT)}, {s(sT)}, {i}",
          f"s_lshr_b32 {s(sT2)}, {s(sT)}, 2", f"s_and_b32 {s(sT)}, {s(sT)}, 3", f"s_lshl_b32 {s(sT)}, {s(sT)}, 4",
          f"s_cmp_ge_u32 {s(sT2)}, 3", f"s_cselect_b32 {s(26)}, {32*2304 - 3*64}, 0",
          f"s_lshl_b32 {s(sT2)}, {s(sT2)}, 6", f"s_add_u32 {s(sT)}, {s(sT)}, {s(sT2)}", f"s_add_u32 {s(sT)}, {s(sT)}, {s(26)}", f"s_add_u32 {s(sT)}, {s(sT)}, {s(sOB)}")
        I(f"buffer_store_dwordx2 {v(b,2)}, {v(vRow)}, {s(SO,4)}, {s(sT)} offen")

def gen_oprojb():
    k = Kern("oprojb_kernel", nvgpr=208, accum=208); k.stamp_base = 196608
    I = k.I
    SW, SO = 4, 8
    sC, sW, sT, sT2, sQb, sNt, sOB = 16, 17, 18, 19, 20, 22, 23
    sWave = 21
    vL16, vRow, vT, vA = 1, 2, 3, 4
    ACC, BUF, NK = 8, 56, 9
    I("s_cmp_ge_u32 s2, 384", "s_cbranch_scc1 L_opb_end")
    k.sv = (200, 202)
    k.stamp(0)
    I("s_load_dwordx2 s[12:13], s[0:1], 88", "s_load_dwordx2 s[14:15], s[0:1], 72")
    I("v_lshrrev_b32 v3, 6, v0", "v_and_b32 v0, 63, v0", "s_nop 0", f"v_readfirstlane_b32 {s(sWave)}, v3")
    I("s_lshr_b32 s3, s2, 3", "s_lshl_b32 s3, s3, 2", f"s_add_u32 s3, s3, {s(sWave)}", "s_and_b32 s3, s3, 31")
    k.code_prefetch("ob", "oprojb_kernel", "L_end_oprojb_kernel", 5, 3, 28, 204, True)
    I(f"s_and_b32 {s(sT)}, s2, 7", f"s_lshr_b32 {s(sT2)}, s2, 3", f"s_and_b32 {s(sQb)}, {s(sT2)}, 7", f"s_lshl_b32 {s(sT)}, {s(sT)}, 3", f"s_add_u32 {s(sQb)}, {s(sQb)}, {s(sT)}",
      f"s_lshr_b32 {s(sNt)}, {s(sT2)}, 3")
    I(f"v_lshlrev_b32 {v(vL16)}, 4, v0", f"v_and_b32 {v(vT)}, 31, v0", f"v_mul_u32_u24 {v(vRow)}, 2304, {v(vT)}", f"v_lshrrev_b32 {v(vT)}, 5, v0", f"v_lshl_add_u32 {v(vRow)}, {v(vT)}, 3, {v(vRow)}")
    I(f"s_mul_i32 {s(sC)}, {s(sQb)}, 36864", f"s_mul_i32 {s(sT)}, {s(sWave)}, {9*1024}", f"s_add_u32 {s(sC)}, {s(sC)}, {s(sT)}", f"s_add_u32 {s(sC)}, {s(sC)}, {LY.WS_OB}")
    I(f"s_mul_i32 {s(sW)}, {s(sWave)}, {9*18432}", f"s_mul_i32 {s(sT)}, {s(sNt)}, 3072", f"s_add_u32 {s(sW)}, {s(sW)}, {s(sT)}", f"s_add_u32 {s(sW)}, {s(sW)}, {LY.WS_WOB}")
    I("s_waitcnt lgkmcnt(0)")
    k.srd(SW, 12, LY.WS_END); k.srd(SO, 14, 2048 * 2304)
    def buf(j, f): return v(BUF + (j * 4 + f) * 4, 4)
    seq = []
    for j in range(NK):
        if j % 4 == 0 and j: seq.append(f"s_add_u32 {s(sC)}, {s(sC)}, 4096")
        seq.append(f"buffer_load_dwordx4 {buf(j,0)}, {v(vL16)}, {s(SW,4)}, {s(sC)} offen" + (f" offset:{(j%4)*1024}" if j % 4 else ""))
        for t in range(3): seq.append(f"buffer_load_dwordx4 {buf(j,1+t)}, {v(vL16)}, {s(SW,4)}, {s(sW)} offen" + (f" offset:{t*1024}" if t else ""))
        seq.append(f"s_add_u32 {s(sW)}, {s(sW)}, 18432")
    for ks in range(NK):
        seq.append(f"s_waitcnt vmcnt({4*(NK-1-ks)})")
        for tn in range(3):
            ac = v(ACC + tn * 16, 16)
            seq.append(f"v_mfma_f32_32x32x16_bf16 {ac}, {buf(ks,1+tn)}, {buf(ks,0)}, {'0' if ks == 0 else ac}")
    I(seq); check(seq, "oprojb")
    I(f"s_mul_i32 {s(sT)}, {s(sWave)}, 12288", f"v_add_u32 {v(vA)}, {s(sT)}, {v(vL16)}", f"s_mul_i32 {s(sOB)}, {s(sQb)}, {32*2304}", f"s_mul_i32 {s(sT2)}, {s(sNt)}, 192",
      f"s_add_u32 {s(sOB)}, {s(sOB)}, {s(sT2)}", f"s_add_u32 {s(sOB)}, {s(sOB)}, 1152", "s_nop 7", "s_nop 3")
    for u in range(12): I(f"ds_write_b128 {v(vA)}, {v(ACC + u*4, 4)} offset:{u*1024}")
    I("s_waitcnt lgkmcnt(0)", "s_barrier")
    I(f"s_mul_i32 {s(sT)}, {s(sWave)}, 3072", f"v_add_u32 {v(vA)}, {s(sT)}, {v(vL16)}")
    R = BUF
    for i in range(3):
        for p in range(4): I(f"ds_read_b128 {v(R + (i*4+p)*4, 4)}, {v(vA)} offset:{p*12288 + i*1024}")
    for i in range(3):
        I(f"s_waitcnt lgkmcnt({4*(2-i)})")
        b = R + i * 16
        for e in range(4): I(f"v_add_f32 {v(b+e)}, {v(b+e)}, {v(b+4+e)}", f"v_add_f32 {v(b+8+e)}, {v(b+8+e)}, {v(b+12+e)}")
        for e in range(4): I(f"v_add_f32 {v(b+e)}, {v(b+e)}, {v(b+8+e)}")
        I(f"v_cvt_pk_bf16_f32 {v(b)}, {v(b)}, {v(b+1)}", f"v_cvt_pk_bf16_f32 {v(b+1)}, {v(b+2)}, {v(b+3)}")
        I(f"s_mul_i32 {s(sT)}, {s(sWave)}, 48", f"s_add_u32 {s(sT)}, {s(sT)}, {s(sOB)}", f"buffer_store_dwordx2 {v(b,2)}, {v(vRow)}, {s(SO,4)}, {s(sT)} offen offset:{i*16}")
    k.stamp(3)
    I("L_opb_end:", "s_endpgm")
    return k

def gen_oproj():
    k = Kern("oproj_kernel", nvgpr=256, accum=256); k.stamp_base = 196608
    I = k.I
    k.sv = (6, 8)
    I("s_cmp_ge_u32 s2, 192", "s_cbranch_scc1 L_op_end")
    k.stamp(0)
    I("v_lshrrev_b32 v3, 6, v0", "v_and_b32 v0, 63, v0", "s_nop 0", "v_readfirstlane_b32 s21, v3")
    oproj_tile(k, "A", True, int(os.environ.get("OPD", 4)), wave_reg=21, ACC=12, BUF=108)
    k.stamp(3)
    I("L_op_end:", "s_endpgm")
    return k
```

```python
from gen_common import *
import struct, os
def f32bits(x): return struct.unpack("<I", struct.pack("<f", x))[0]
RB, PB = 0, 65536
LDS_P = 163840
OOB = 0xF0000000
STF = ' ' + os.environ.get('STF', 'sc1')
STQ = ' ' + os.environ.get('STQ', 'sc1')
STAGES = []
kk = 0
for grp in range(4):
    STAGES += [("K", kk), ("K", kk + 1), ("B", 2 * grp), ("B", 2 * grp + 1)]; kk += 2
STAGES += [("K", 8), ("K", 9), ("B", 8)] + [("K", i) for i in range(10, 16)]
GQ = len(STAGES)
QFUSE = not os.environ.get("NOQFUSE")
MERGE = not os.environ.get("NOMERGE")
if not QFUSE: STAGES += [("Q", i) for i in range(9)]
elif MERGE: STAGES += [("A", i) for i in range(9)]
GE = len(STAGES)
PITEMS = []
STAGE_P = []
for g_, (ph_, i_) in enumerate(STAGES):
    it = ("K", i_ >> 1) if ph_ == "K" else (("B", i_ >> 1) if ph_ == "B" else (ph_, i_))
    if it not in PITEMS: PITEMS.append(it)
    STAGE_P.append(PITEMS.index(it))
UE = len(PITEMS)
LAST_USER = [max(g_ for g_, u_ in enumerate(STAGE_P) if u_ == u) for u in range(UE)]
def ph(g): return STAGES[g][0]
def ix(g): return STAGES[g][1]

def csel(dst, x, y):
    return [f"s_mov_b32 {s(dst)}, {y}", f"s_cselect_b32 {s(dst)}, {x}, {s(dst)}"]

def gen_proj():
    k = Kern("proj_kernel", nvgpr=512, accum=256); k.sv = (38, 127) if MERGE else (38, 1)
    vWA = 1
    I = k.I
    SXKV, SWKV, SXQ, SWQ, SXB, SWB, SWS, SWOA, SWOB = 8, 12, 16, 20, 24, 28, 32, 36, 40
    (sWave, sT, sT2, sT3, sXcd, sJ, sIsV, sBt, sWm, sWn, sXkvB, sWkvB, sXqB, sWqB, sXbB, sWbB, sM1024, sM2048) = range(68, 86)
    sBsc = 57
    sQout, sCA, sNtB, sMtB, sF = 52, 53, 54, 55, 56
    sKVo = 44
    vXa, vXb, vW, vWB = 2, 4, 6, 8
    aXP, aXP2, aWR, aXR, aWP, aWP2, aXB, aWB, aWB2, vL16 = 9, 13, 17, 21, 25, 27, 29, 33, 35, 37
    vT, vT2 = 38, 39
    XF = [40, 56]; WF = [72, 88]; TT = 104; UU = 120
    BA = 128; BADR = 192; BONE = 224; BTMP = 232; PFV = 244; QA = 128
    I("s_cmp_ge_u32 s2, 256", "s_cbranch_scc1 L_pj_end")
    k.stamp(0)
    I("s_load_dwordx16 s[48:63], s[0:1], 0", "s_load_dwordx2 s[64:65], s[0:1], 64", "s_load_dwordx2 s[66:67], s[0:1], 88")
    I(f"v_lshrrev_b32 {v(vT)}, 6, v0", "v_and_b32 v0, 63, v0", "s_nop 0", f"v_readfirstlane_b32 {s(sWave)}, {v(vT)}")
    I(f"s_and_b32 {s(sXcd)}, s2, 7", f"s_lshr_b32 {s(sJ)}, s2, 3")
    I(f"s_lshl_b32 s3, {s(sJ)}, 2", f"s_add_u32 s3, s3, {s(sWave)}")
    k.code_prefetch("pj", "proj_kernel", "L_end_proj_kernel", 7, 3, 4, 250, True)
    I(f"s_lshl_b32 s3, s2, 2", f"s_add_u32 s3, s3, {s(sWave)}")
    k.code_prefetch("pj2", "mix_kernel" if MERGE else "atta_kernel", "L_end_mix_kernel" if os.environ.get("FUSE") else "L_end_oprojb_kernel", 10, 3, 4, 252, False)
    def xoff(dst, stride, par):
        I(f"v_lshrrev_b32 {v(vT)}, 4, v0", f"v_add_u32 {v(vT)}, {4*par}, {v(vT)}", f"v_and_b32 {v(vT2)}, 7, v0", f"v_xor_b32 {v(vT)}, {v(vT)}, {v(vT2)}",
          f"v_lshlrev_b32 {v(vT)}, 4, {v(vT)}", f"v_lshrrev_b32 {v(vT2)}, 3, v0", f"v_mul_u32_u24 {v(vT2)}, {stride}, {v(vT2)}", f"v_add_u32 {v(dst)}, {v(vT)}, {v(vT2)}")
    for par in range(2):
        xoff(vXa + par, 1024, par)
        I(f"v_lshrrev_b32 {v(vT)}, 5, v0", f"v_add_u32 {v(vT2)}, {2*par}, {v(vT)}", f"v_lshlrev_b32 {v(vT2)}, 2, {v(vT2)}", f"v_and_b32 {v(vW+par)}, 31, v0",
          f"v_xor_b32 {v(vW+par)}, {v(vW+par)}, {v(vT2)}", f"v_lshlrev_b32 {v(vW+par)}, 4, {v(vW+par)}", f"v_lshlrev_b32 {v(vT)}, 13, {v(vT)}", f"v_add_u32 {v(vW+par)}, {v(vW+par)}, {v(vT)}")
    I(f"s_lshl_b32 {s(sM1024)}, {s(sWave)}, 12", f"s_lshl_b32 {s(sM2048)}, {s(sWave)}, 13")
    sRh, sCq, sMtK, sNtK = 86, 87, 92, 93
    I(f"s_and_b32 {s(sRh)}, {s(sXcd)}, 1", f"s_lshr_b32 {s(sCq)}, {s(sXcd)}, 1")
    I(f"s_and_b32 {s(sMtK)}, {s(sJ)}, 3", f"s_lshl_b32 {s(sT)}, {s(sRh)}, 2", f"s_add_u32 {s(sMtK)}, {s(sMtK)}, {s(sT)}",
      f"s_lshr_b32 {s(sNtK)}, {s(sJ)}, 2", f"s_lshl_b32 {s(sT)}, {s(sCq)}, 3", f"s_add_u32 {s(sNtK)}, {s(sNtK)}, {s(sT)}",
      f"s_lshr_b32 {s(sIsV)}, {s(sNtK)}, 4", f"s_and_b32 {s(sNtK)}, {s(sNtK)}, 15")
    I(f"s_lshl_b32 {s(sXkvB)}, {s(sMtK)}, 18", f"s_lshl_b32 {s(sT)}, {s(sWave)}, 16", f"s_add_u32 {s(sXkvB)}, {s(sXkvB)}, {s(sT)}")
    I(f"s_lshl_b32 {s(sWkvB)}, {s(sWave)}, 16", f"s_lshl_b32 {s(sT)}, {s(sNtK)}, 9", f"s_add_u32 {s(sWkvB)}, {s(sWkvB)}, {s(sT)}")
    I("s_waitcnt lgkmcnt(0)")
    I(f"s_cmp_eq_u32 {s(sIsV)}, 0", f"s_cselect_b32 {s(SWKV)}, s54, s56", f"s_cselect_b32 {s(SWKV+1)}, s55, s57",
      f"s_mov_b32 {s(SWKV+2)}, {512*8192}", f"s_mov_b32 {s(SWKV+3)}, 0x00020000")
    k.srd(SXKV, 50, 2048 * 1024)
    def dma(vreg, srd, sbase, soff, ldsreg, ldsoff):
        return [f"s_add_u32 m0, {s(ldsreg)}, {ldsoff}", f"s_add_u32 {s(sT)}, {s(sbase)}, {soff}", f"buffer_load_dwordx4 {v(vreg)}, {s(srd,4)}, {s(sT)} offen lds"]
    def Ritem(g):
        slot = RB + (g % 4) * 16384
        if ph(g) == "B":
            return [dma(vXb + (j & 1), SXB, sXbB, ix(g) * 128 + j * 8 * 1152, sM1024, slot + j * 1024) for j in range(4)]
        if ph(g) == "K":
            return [dma(vW + (j & 1), SWKV, sWkvB, (32 * ix(g) + 2 * j) * 8192, sM1024, slot + j * 1024) for j in range(4)]
        if ph(g) == "A":
            return [dma(vWA, SWQ, sWqB, (64 * ix(g) + 4 * j) * 8192, sM1024, slot + j * 1024) for j in range(4)]
        return [dma(vXb + (j & 1), SXQ, sXqB, ix(g) * 128 + j * 8 * 1152, sM1024, slot + j * 1024) for j in range(4)]
    def Pitem(u):
        slot = PB + (u % 3) * 32768
        kind, i = PITEMS[u]
        if kind == "B":
            o = []
            for tt in (2 * i, 2 * i + 1):
                if tt < 9: o += [dma(vWB, SWB, sWbB, (64 * tt + 4 * j) * 3456, sM1024, slot + (tt & 1) * 16384 + j * 1024) for j in range(4)]
            return o
        if kind == "K":
            return [dma(vXa + (j & 1), SXKV, sXkvB, i * 128 + j * 8 * 1024, sM2048, slot + j * 1024) for j in range(8)]
        if kind == "A":
            return [dma(vXb + (j & 1), SXQ, sXqB, i * 128 + j * 8 * 1152, sM2048, slot + j * 1024) for j in range(8)]
        return [dma(vW + (j & 1), SWQ, sWqB, (64 * i + 2 * j) * 8192, sM2048, slot + j * 1024) for j in range(8)]
    vmlog = []
    def issue(order):
        for kind, idx in order:
            for d in (Ritem(idx) if kind == "R" else Pitem(idx)):
                I(d); vmlog.append((kind, idx))
    if not os.environ.get("NOCPF"): vmlog += [("E", 0), ("E", 0)]
    issue([("R", 0), ("P", 0), ("R", 1)])
    I(f"v_lshlrev_b32 {v(vL16)}, 4, v0")
    for par in range(2): xoff(vXb + par, 1152, par)
    I(f"v_lshrrev_b32 {v(vT)}, 4, v0", f"v_lshlrev_b32 {v(vT2)}, 2, {v(vT)}", f"v_and_b32 {v(vWB)}, 15, v0", f"v_xor_b32 {v(vWB)}, {v(vWB)}, {v(vT2)}",
      f"v_lshlrev_b32 {v(vWB)}, 4, {v(vWB)}", f"v_mul_u32_u24 {v(vT)}, 3456, {v(vT)}", f"v_add_u32 {v(vWB)}, {v(vWB)}, {v(vT)}")
    k.srd(SXB, 60, 2048 * 1152); k.srd(SWB, 62, 576 * 3456); k.srd(SXQ, 48, 2048 * 1152); k.srd(SWQ, 52, 576 * 8192)
    k.srd(SWS, 66, LY.WS_END); k.srd(SWOA, 58, 4096 * 1152); k.srd(SWOB, 64, 576 * 1152)
    I(f"s_lshr_b32 {s(sWm)}, {s(sWave)}, 1", f"s_and_b32 {s(sWn)}, {s(sWave)}, 1")
    sMt, sN0 = sT2, sT3
    I(f"s_lshl_b32 {s(sT)}, {s(sNtK)}, 1", f"s_add_u32 {s(sT)}, {s(sT)}, {s(sWn)}", f"s_lshl_b32 {s(sT)}, {s(sT)}, 19", f"s_lshl_b32 {s(sF)}, {s(sMtK)}, 3", f"s_lshl_b32 {s(sMt)}, {s(sWm)}, 2", f"s_add_u32 {s(sF)}, {s(sF)}, {s(sMt)}",
      f"s_lshl_b32 {s(sF)}, {s(sF)}, 13", f"s_add_u32 {s(sT)}, {s(sT)}, {s(sF)}")
    I(f"s_cmp_eq_u32 {s(sIsV)}, 0", csel(sF, LY.WS_KA, LY.WS_VA), csel(sMt, 2048, 1024), csel(sN0, 1024, 4096), f"s_add_u32 {s(sT)}, {s(sT)}, {s(sF)}")
    for tn in range(4):
        I(f"s_mul_i32 {s(sF)}, {s(sMt)}, {tn}", f"s_add_u32 {s(sKVo+2*tn)}, {s(sT)}, {s(sF)}", f"s_add_u32 {s(sKVo+2*tn+1)}, {s(sKVo+2*tn)}, {s(sN0)}")
    I(f"s_and_b32 {s(sMt)}, {s(sJ)}, 7", f"s_lshl_b32 {s(sT)}, {s(sRh)}, 3", f"s_add_u32 {s(sMt)}, {s(sMt)}, {s(sT)}",
      f"s_lshr_b32 {s(sN0)}, {s(sJ)}, 3", f"s_lshl_b32 {s(sT)}, {s(sCq)}, 2", f"s_add_u32 {s(sN0)}, {s(sN0)}, {s(sT)}")
    I(f"s_lshl_b32 {s(sT)}, {s(sMt)}, 2", f"s_add_u32 {s(sT)}, {s(sT)}, {s(sWave)}", f"s_mul_i32 {s(sXqB)}, {s(sT)}, {32*1152}")
    I(f"s_lshl_b32 {s(sWqB)}, {s(sWave)}, 17", f"s_lshl_b32 {s(sT)}, {s(sN0)}, 9", f"s_add_u32 {s(sWqB)}, {s(sWqB)}, {s(sT)}")
    I(f"s_lshl_b32 {s(sT)}, {s(sN0)}, 1", f"s_add_u32 {s(sT)}, {s(sT)}, {s(sWm)}", f"s_lshl_b32 {s(sT)}, {s(sT)}, 19", f"s_lshl_b32 {s(sF)}, {s(sMt)}, 15", f"s_add_u32 {s(sT)}, {s(sT)}, {s(sF)}",
      f"s_lshl_b32 {s(sF)}, {s(sWn)}, 12", f"s_add_u32 {s(sT)}, {s(sT)}, {s(sF)}", f"s_add_u32 {s(sQout)}, {s(sT)}, {LY.WS_QA}")
    I(f"s_mov_b32 {s(sCA)}, 0x{f32bits(LY.CA):08x}")
    if MERGE:
        I(f"s_and_b32 s59, {s(sJ)}, 7", f"s_lshr_b32 {s(sT)}, {s(sJ)}, 3", f"s_lshl_b32 s58, {s(sXcd)}, 2", f"s_add_u32 s58, s58, {s(sT)}", f"s_lshl_b32 s3, {s(sNtK)}, 2")
        I(f"s_lshl_b32 {s(sT)}, s59, 7", f"s_sub_u32 {s(sF)}, {128*15 - 128}, {s(sT)}", f"s_cmp_ge_u32 {s(sWave)}, 2", f"s_cselect_b32 {s(sT)}, {s(sF)}, {s(sT)}",
          f"s_lshl_b32 {s(sF)}, {s(sWave)}, 6", f"s_add_u32 {s(sT)}, {s(sT)}, {s(sF)}", f"s_mul_i32 {s(sXqB)}, {s(sT)}, 1152")
        I(f"s_lshl_b32 {s(sWqB)}, {s(sWave)}, 17", f"s_lshl_b32 {s(sT)}, s58, 8", f"s_add_u32 {s(sWqB)}, {s(sWqB)}, {s(sT)}")
        I(f"v_lshrrev_b32 {v(vT)}, 4, v0", f"v_lshlrev_b32 {v(vT2)}, 2, {v(vT)}", f"v_and_b32 {v(vWA)}, 15, v0", f"v_xor_b32 {v(vWA)}, {v(vWA)}, {v(vT2)}",
          f"v_lshlrev_b32 {v(vWA)}, 4, {v(vWA)}", f"v_lshlrev_b32 {v(vT)}, 13, {v(vT)}", f"v_add_u32 {v(vWA)}, {v(vWA)}, {v(vT)}")
        I("s_load_dwordx2 s[64:65], s[0:1], 80")
    I(f"s_and_b32 {s(sMtB)}, {s(sJ)}, 7", f"s_lshl_b32 {s(sT)}, {s(sRh)}, 3", f"s_add_u32 {s(sMtB)}, {s(sMtB)}, {s(sT)}")
    I(f"s_lshl_b32 {s(sNtB)}, {s(sCq)}, 2", f"s_cmp_eq_u32 {s(sCq)}, 3", f"s_cselect_b32 {s(sT)}, 1, 0", f"s_sub_u32 {s(sNtB)}, {s(sNtB)}, {s(sT)}",
      f"s_lshr_b32 {s(sT)}, {s(sJ)}, 3", f"s_add_u32 {s(sNtB)}, {s(sNtB)}, {s(sT)}")
    I(f"s_cmp_ge_u32 {s(sNtB)}, 9", f"s_cselect_b32 {s(sBt)}, 1, 0", f"s_cmp_ge_u32 {s(sCq)}, 2", f"s_cselect_b32 {s(sF)}, 3, 99", f"s_cmp_eq_u32 {s(sT)}, {s(sF)}", f"s_cselect_b32 {s(sBt)}, 2, {s(sBt)}")
    I(f"s_lshl_b32 {s(sT)}, {s(sMtB)}, 2", f"s_add_u32 {s(sT)}, {s(sT)}, {s(sWave)}", f"s_mul_i32 {s(sXbB)}, {s(sT)}, {32*1152}")
    I(f"s_mul_i32 {s(sWbB)}, {s(sWave)}, {16*3456}", f"s_lshl_b32 {s(sT)}, {s(sNtB)}, 8", f"s_add_u32 {s(sWbB)}, {s(sWbB)}, {s(sT)}")
    issue([("P", 2), ("P", 1), ("R", 2), ("R", 3)])
    if "samesrc" in os.environ.get("EXP", ""):
        I(f"s_mul_i32 {s(sXqB)}, {s(sWave)}, {32*1152}", f"s_lshl_b32 {s(sWqB)}, {s(sWave)}, 17", f"s_mul_i32 {s(sXbB)}, {s(sWave)}, {32*1152}", f"s_mul_i32 {s(sWbB)}, {s(sWave)}, {16*3456}")
    if "samedst" in os.environ.get("EXP", ""):
        for i in range(8): I(f"s_mov_b32 {s(sKVo+i)}, {i*8192*4}")
        I(f"s_mov_b32 {s(sQout)}, 0")
    I(f"v_and_b32 {v(vT)}, 31, v0", f"v_lshlrev_b32 {v(TT)}, 7, {v(vT)}", f"v_lshrrev_b32 {v(TT+1)}, 5, v0", f"v_lshrrev_b32 {v(TT+2)}, 1, v0", f"v_and_b32 {v(TT+2)}, 7, {v(TT+2)}")
    for ks in range(4):
        I(f"v_add_u32 {v(vT)}, {2*ks}, {v(TT+1)}", f"v_xor_b32 {v(vT)}, {v(vT)}, {v(TT+2)}", f"v_lshl_add_u32 {v(aXR+ks)}, {v(vT)}, 4, {v(TT)}")
        I(f"s_lshl_b32 {s(sT)}, {s(sWm)}, 14", f"s_add_u32 {s(sT)}, {s(sT)}, {PB}", f"v_add_u32 {v(aXP+ks)}, {s(sT)}, {v(aXR+ks)}", f"v_add_u32 {v(aXP2+ks)}, 65536, {v(aXP+ks)}")
        I(f"s_lshl_b32 {s(sT)}, {s(sWm)}, 13", f"v_add_u32 {v(aXB+ks)}, {s(sT)}, {v(aXR+ks)}")
    I(f"v_lshrrev_b32 {v(TT)}, 5, v0", f"v_lshlrev_b32 {v(TT)}, 3, {v(TT)}", f"v_and_b32 {v(TT+1)}, 15, v0", f"v_lshrrev_b32 {v(TT+1)}, 2, {v(TT+1)}",
      f"v_add_u32 {v(TT)}, {v(TT)}, {v(TT+1)}", f"v_lshlrev_b32 {v(TT+1)}, 2, {v(TT+1)}",
      f"v_lshrrev_b32 {v(TT+2)}, 4, v0", f"v_and_b32 {v(TT+2)}, 1, {v(TT+2)}", f"v_lshlrev_b32 {v(TT+2)}, 1, {v(TT+2)}",
      f"v_and_b32 {v(TT+3)}, 3, v0", f"v_lshrrev_b32 {v(TT+3)}, 1, {v(TT+3)}", f"v_add_u32 {v(TT+2)}, {v(TT+2)}, {v(TT+3)}",
      f"v_and_b32 {v(TT+3)}, 1, v0", f"v_lshlrev_b32 {v(TT+3)}, 3, {v(TT+3)}")
    def waddr(dst, cb_s_mul, cb_reg, cb_const, rowshift, base):
        I(f"s_mul_i32 {s(sT)}, {s(cb_reg)}, {cb_s_mul}", f"s_add_u32 {s(sT)}, {s(sT)}, {cb_const}", f"v_xor_b32 {v(vT)}, {s(sT)}, {v(TT+1)}", f"v_add_u32 {v(vT)}, {v(vT)}, {v(TT+2)}",
          f"v_lshl_add_u32 {v(vT)}, {v(vT)}, 4, {v(TT+3)}", f"v_lshl_add_u32 {v(dst)}, {v(TT)}, {rowshift}, {v(vT)}")
        if base: I(f"v_add_u32 {v(dst)}, {base}, {v(dst)}")
    for tn in range(2):
        waddr(aWB + tn, 8, sWn, 4 * tn, 8, PB); I(f"v_add_u32 {v(aWB2+tn)}, 65536, {v(aWB+tn)}")
    for tn in range(4): waddr(aWR + tn, 16, sWn, 4 * tn, 9, RB)
    if MERGE:
        for dt in range(4):
            I(f"v_xor_b32 {v(vT)}, {4*dt}, {v(TT+1)}", f"v_add_u32 {v(vT)}, {v(vT)}, {v(TT+2)}", f"v_lshl_add_u32 {v(vT)}, {v(vT)}, 4, {v(TT+3)}", f"v_lshl_add_u32 {v(aWP+dt)}, {v(TT)}, 8, {v(vT)}")
        I(f"s_lshl_b32 {s(sT)}, {s(sWave)}, 12", f"s_add_u32 {s(sT)}, {s(sT)}, {PB}")
        for ks in range(4): I(f"v_add_u32 {v(aXR+ks)}, {s(sT)}, {v(aXR+ks)}")
    else:
      for tn in range(2):
        waddr(aWP + tn, 8, sWave, 4 * tn, 9, PB); I(f"v_add_u32 {v(aWP2+tn)}, 65536, {v(aWP+tn)}")
    for i in range(34): I(f"v_mov_b32 {v(BADR+i)}, 0x{OOB:08x}") if False else None
    addr_ops = {"QK": b_addr_ops("QK", locals()), "V": b_addr_ops("V", locals())}
    pf = []
    sA_, sB_ = 98, 99
    if os.environ.get("PFKV"):
        pf += [f"s_lshr_b32 {s(sA_)}, s2, 3", f"s_lshl_b32 {s(sA_)}, {s(sA_)}, 2", f"s_and_b32 {s(sB_)}, s2, 3", f"s_add_u32 {s(sA_)}, {s(sA_)}, {s(sB_)}",
               f"s_lshl_b32 {s(sA_)}, {s(sA_)}, 2", f"s_add_u32 {s(sA_)}, {s(sA_)}, {s(sWave)}", f"s_lshl_b32 {s(sA_)}, {s(sA_)}, 6",
               f"v_add_u32 {v(PFV+6)}, {s(sA_)}, v0", f"v_lshlrev_b32 {v(PFV+6)}, 7, {v(PFV+6)}", f"buffer_load_dword {v(PFV+8)}, {v(PFV+6)}, {s(SWKV,4)}, 0 offen"]
    pf += [f"s_lshl_b32 {s(sA_)}, s2, 2", f"s_add_u32 {s(sA_)}, {s(sA_)}, {s(sWave)}"]
    for i, (srd, nlines) in enumerate((((SXKV, 16384),) if os.environ.get('PFKV') else ()) + ((SXB, 18432), (SWB, 15552), (SXQ, 18432), (SWQ, 36864), (SWOA, 36864)) + (() if os.environ.get('PFKV') else ((SWOB, 5184),))):
        c = -(-nlines // 1024)
        pf += [f"s_mul_i32 {s(sB_)}, {s(sA_)}, {c}", f"v_add_u32 {v(PFV+i)}, {s(sB_)}, v0", f"v_lshlrev_b32 {v(PFV+i)}, 7, {v(PFV+i)}", f"v_mov_b32 {v(PFV+7)}, 0x{OOB:08x}",
               (f"v_cmp_gt_u32 vcc, {c}, v0", "s_nop 1", f"v_cndmask_b32 {v(PFV+i)}, {v(PFV+7)}, {v(PFV+i)}, vcc"),
               f"buffer_load_dword {v(PFV+8)}, {v(PFV+i)}, {s(srd,4)}, 0 offen"]
    if os.environ.get("NOPF"): pf = []

    def xf(b, t): return v(XF[b] + 4 * t, 4)
    def wf(b, t): return v(WF[b] + 4 * t, 4)
    def wf2(b, t, rd): return v(WF[b] + 4 * t + 2 * rd, 2)
    def stage_p(g): return STAGE_P[g]
    def last_user(u): return LAST_USER[u]
    def nks(g): return 2 if ph(g) == "K" else 4
    def reads(g, ks, b):
        L = []
        sl = stage_p(g) % 3
        if ph(g) == "B":
            for tm in range(2): L.append(f"ds_read_b128 {xf(b,tm)}, {v(aXB+ks)} offset:{(g%4)*16384 + tm*4096}")
            for tn in range(2):
                base, off = (aWB, sl * 32768) if sl < 2 else (aWB2, 0)
                for rd in range(2): L.append(f"ds_read_b64_tr_b16 {wf2(b,tn,rd)}, {v(base+tn)} offset:{off + (ix(g) & 1) * 16384 + ks*4096 + rd*1024}")
        elif ph(g) == "K":
            kk = 2 * (ix(g) & 1) + ks
            for tm in range(4):
                base, off = (aXP, sl * 32768) if sl < 2 else (aXP2, 0)
                L.append(f"ds_read_b128 {xf(b,tm)}, {v(base+kk)} offset:{off + tm*4096}")
            for tn in range(4):
                for rd in range(2): L.append(f"ds_read_b64_tr_b16 {wf2(b,tn,rd)}, {v(aWR+tn)} offset:{(g%4)*16384 + ks*8192 + rd*2048}")
        elif ph(g) == "A":
            for tq in range(2):
                base, off = (aXR, sl * 32768) if sl < 2 else (XF[0] + 8, 0)
                L.append(f"ds_read_b128 {xf(b,tq)}, {v(base+ks)} offset:{off + tq*16384}")
            for dt in range(4):
                for rd in range(2): L.append(f"ds_read_b64_tr_b16 {wf2(b,dt,rd)}, {v(aWP+dt)} offset:{(g%4)*16384 + ks*4096 + rd*1024}")
        else:
            for tm in range(4): L.append(f"ds_read_b128 {xf(b,tm)}, {v(aXR+ks)} offset:{(g%4)*16384 + tm*4096}")
            for tn in range(2):
                base, off = (aWP, sl * 32768) if sl < 2 else (aWP2, 0)
                for rd in range(2): L.append(f"ds_read_b64_tr_b16 {wf2(b,tn,rd)}, {v(base+tn)} offset:{off + ks*8192 + rd*2048}")
        return L
    def mfmas(g, ks, b, var):
        first = ix(g) == 0 and ks == 0
        L = []
        if ph(g) == "B":
            for tm in range(2):
                for tn in range(2):
                    ac = v(BA + (tm * 2 + tn) * 16, 16)
                    A, B = (wf(b, tn), xf(b, tm)) if var[1] == "QK" else (xf(b, tm), wf(b, tn))
                    L.append(f"v_mfma_f32_32x32x16_bf16 {ac}, {A}, {B}, {'0' if first else ac}")
        elif ph(g) == "K":
            for tm in range(4):
                for tn in range(4):
                    ac = a((tm * 4 + tn) * 16, 16)
                    A, B = (wf(b, tn), xf(b, tm)) if var[0] == "K" else (xf(b, tm), wf(b, tn))
                    L.append(f"v_mfma_f32_32x32x16_bf16 {ac}, {A}, {B}, {'0' if first else ac}")
        elif ph(g) == "A":
            for tq in range(2):
                for dt in range(4):
                    ac = v(QA + (tq * 4 + dt) * 16, 16)
                    L.append(f"v_mfma_f32_32x32x16_bf16 {ac}, {wf(b,dt)}, {xf(b,tq)}, {'0' if first else ac}")
        else:
            for tm in range(4):
                for tn in range(2):
                    ac = v(QA + (tm * 2 + tn) * 16, 16)
                    L.append(f"v_mfma_f32_32x32x16_bf16 {ac}, {wf(b,tn)}, {xf(b,tm)}, {'0' if first else ac}")
        return L
    def kv_epi(final=False):
        L = []
        n = 0
        for tm in range(4):
            for tn in range(4):
                base = (tm * 4 + tn) * 16
                tt, uu = (TT, UU) if not final else (128 + (n % 4) * 24, 128 + (n % 4) * 24 + 16)
                n += 1
                for i in range(16): L.append(f"v_accvgpr_read_b32 {v(tt+i)}, {a(base+i)}")
                for i in range(8): L.append(f"v_cvt_pk_bf16_f32 {v(uu+i)}, {v(tt+2*i)}, {v(tt+2*i+1)}")
                for f in range(2):
                    L.append((f"s_add_u32 {s(sT2)}, {s(sKVo+2*tn+f)}, {tm*8192}", f"buffer_store_dwordx4 {v(uu+4*f,4)}, {v(vL16)}, {s(SWS,4)}, {s(sT2)} offen{STF}"))
        return L
    def q_epi():
        L = []
        for tm in range(4):
            for tn in range(2):
                base = QA + (tm * 2 + tn) * 16
                for i in range(16): L.append(f"v_mul_f32 {v(base+i)}, {s(sCA)}, {v(base+i)}")
                for i in range(8): L.append(f"v_cvt_pk_bf16_f32 {v(base+i)}, {v(base+2*i)}, {v(base+2*i+1)}")
                if tn == 0: L.append(f"s_add_u32 {s(sT2)}, {s(sQout)}, {tm*8192}")
                for f in range(2):
                    L.append(f"buffer_store_dwordx4 {v(base+4*f,4)}, {v(vL16)}, {s(SWS,4)}, {s(sT2)} offen offset:{(2*tn+f)*1024}{STQ}")
        return L
    def b_epi():
        L = []; n = 0
        for tm in range(2):
            for tn in range(2):
                base = BA + (tm * 2 + tn) * 16
                for p in range(8):
                    r = BTMP + (n % 8); n += 1
                    L += [f"v_mul_f32 {v(base+2*p)}, {s(sBsc)}, {v(base+2*p)}", f"v_mul_f32 {v(base+2*p+1)}, {s(sBsc)}, {v(base+2*p+1)}",
                          f"v_cvt_pk_bf16_f32 {v(r)}, {v(base+2*p)}, {v(base+2*p+1)}", f"buffer_store_dword {v(r)}, {v(BADR + (tm*2+tn)*8 + p)}, {s(SWS,4)}, 0 offen"]
        for st in range(4):
            for tn in range(2):
                L.append(f"buffer_store_dwordx4 {v(BONE+2,4)}, {v(BADR+32+tn)}, {s(SWS,4)}, {s(4+st)} offen")
        return L

    def run_segment(g0, g1, var, epi_ops, vml, carry, epi_lo=0, epi_lim=None, epi2=None, epi2_lo=0, more=(), hooks=None):
        lastg = GE - 1
        backbone = []; ctl = {}; rd_streams = []; bars = []
        for g in range(g0, g1):
            n = nks(g)
            for ks in range(n):
                m = mfmas(g, ks, ks & 1, var)
                start = len(backbone); backbone += m; L = len(m)
                if ks < n - 1: nxt = reads(g, ks + 1, (ks + 1) & 1)
                elif g + 1 <= lastg: nxt = reads(g + 1, 0, 0)
                else: nxt = []
                hi = start + L - (3 if L >= 8 else 2)
                if nxt: rd_streams.append([(r, start, hi) for r in nxt])
                if ks == n - 2: ctl[start + L - 1] = ("BAR", g); bars.append((start + L - 1, g))
                else: ctl[start + L - 1] = "W"
        n = len(backbone)
        dma_stream = []
        nextbar = lambda x: min([bg for bg, _ in bars if bg > x], default=n - 1)
        if carry: dma_stream += [((tag, d), 0, max(0, nextbar(-1) - 1)) for tag, d in carry]
        carry_out = []
        for bg, g in bars:
            items = []
            if g + 4 <= lastg: items += [(("R", g + 4), d) for d in Ritem(g + 4)]
            u = stage_p(g)
            if last_user(u) == g and u + 3 < UE: items += [(("P", u + 3), d) for d in Pitem(u + 3)]
            nb = [x for x, _ in bars if x > bg]
            if nb: dma_stream += [(it, bg + 1, nb[0] - 1) for it in items]
            else:
                room = (n - 1 - bg) // 2
                take = min(len(items), room) if g1 <= lastg else len(items)
                dma_stream += [(it, bg + 1, n - 1) for it in items[:take]]
                carry_out = items[take:]
        streams = [[(tuple(d), e, l) for (tag, d), e, l in dma_stream]] if dma_stream else [[]]
        streams += rd_streams
        if epi_ops: streams.append([(o, epi_lo, n - 1 if epi_lim is None else epi_lim) for o in epi_ops])
        if epi2: streams.append([(o, epi2_lo, n - 1) for o in epi2])
        for ops, lo, hi in more: streams.append([(o, lo, min(hi, n - 1)) for o in ops])
        base = [0] * n
        for gp, c in ctl.items(): base[gp] += 8 if c != "W" else 4
        asg, load = anneal(n, base, streams)
        slots = {gp: [] for gp in range(n)}
        for si in list(range(1, len(streams))) + [0]:
            for (op, e, l), gp, idx in zip(streams[si], asg[si], range(len(streams[si]))):
                slots[gp].append((op, dma_stream[idx][0][0] if si == 0 else None))
        out = []
        for gi in range(n):
            out.append(backbone[gi])
            for op, tag in slots[gi]:
                ls = list(op) if isinstance(op, tuple) else [op]
                out += ls
                if tag is not None: vml.append(tag)
                else:
                    for l in ls:
                        if l.startswith("buffer_"): vml.append(("E", 0))
            c = ctl.get(gi)
            if c == "W": out.append("s_waitcnt lgkmcnt(0)")
            elif c is not None:
                g = c[1]
                need = [("R", g + 1), ("P", stage_p(g + 1))] if g + 1 <= lastg else []
                hk = (hooks or {}).get(g)
                if hk:
                    for l in hk.get("pre", []): out.append(l)
                if hk and hk.get("all_stores"): need = need + [("E", 0)]
                if need:
                    assert all(x in vml for x in need), (g, need)
                    idx = max(i for i, tg in enumerate(vml) if tg in need)
                    out.append(f"s_waitcnt vmcnt({min(len(vml) - 1 - idx, 63)}) lgkmcnt(0)")
                else: out.append("s_waitcnt lgkmcnt(0)")
                out.append("s_barrier")
                if hk:
                    for l in hk.get("post", []): out.append(l)
        ex = os.environ.get("EXP", "")
        def keep(l):
            if "nolds" in ex and l.startswith("ds_read"): return False
            if "nomfma" in ex and l.startswith("v_mfma"): return False
            if "nodma" in ex and l.startswith("buffer_load"): return False
            if "nost" in ex and l.startswith("buffer_store"): return False
            if "nobst" in ex and l.startswith("buffer_store_dword "): return False
            if "nokst" in ex and l.startswith("buffer_store_dwordx4") and "v[12" in l: return False
            return True
        if "novm" in ex: out = [("s_waitcnt lgkmcnt(0)" if l.startswith("s_waitcnt vmcnt") else l) for l in out]
        if ex: out = [l for l in out if keep(l)]
        if os.environ.get("VERB"): print(f"seg {g0}-{g1} {var}: loads", load[:96])
        return out, carry_out

    if MERGE:
        I("s_waitcnt lgkmcnt(0)")
        k.srd(60, 64, 256)
        I("v_mov_b32 v254, 0", "v_mov_b32 v255, 1")
        I(f"s_lshl_b32 s3, s3, 10", f"s_add_u32 s3, s3, {LY.WS_CNT}")
    nafter = len(vmlog) - 1 - max(i for i, tg in enumerate(vmlog) if tg in (("R", 0), ("P", 0)))
    I(f"s_waitcnt vmcnt({nafter})", "s_barrier")
    vml = list(vmlog)
    k.stamp(1)
    I(reads(0, 0, 0), "s_waitcnt lgkmcnt(0)")
    gB = max(g for g in range(GQ) if ph(g) == "B") + 1
    I(f"s_lshl_b32 {s(sT)}, {s(sIsV)}, 1", f"s_min_u32 {s(sT2)}, {s(sBt)}, 1", f"s_add_u32 {s(sT)}, {s(sT)}, {s(sT2)}")
    I(f"s_cmp_eq_u32 {s(sT)}, 1", "s_cbranch_scc1 L_pj_c1", f"s_cmp_eq_u32 {s(sT)}, 2", "s_cbranch_scc1 L_pj_c2", f"s_cmp_eq_u32 {s(sT)}, 3", "s_cbranch_scc1 L_pj_c3")
    segs = {}
    for ci, var in enumerate((("K", "QK"), ("K", "V"), ("V", "QK"), ("V", "V"))):
        if ci: I(f"L_pj_c{ci}:")
        vm1 = list(vml)
        hk0 = None
        if MERGE:
            cond = lambda tg: [f"s_cmp_ge_u32 s2, 16", f"s_cbranch_scc1 L_pj_z{tg}_{ci}", f"s_cmp_lg_u32 {s(sWave)}, 0", f"s_cbranch_scc1 L_pj_z{tg}_{ci}"]
            hk0 = {0: {"post": cond("a") + [f"s_lshl_b32 s66, s2, 12", f"s_add_u32 s66, s66, {LY.WS_CNT}", f"buffer_store_dword v254, v254, {s(SWS,4)}, s66 offen sc1", f"L_pj_za_{ci}:"]},
                   3: {"post": cond("b") + ["s_mov_b64 exec, 1", f"buffer_atomic_add v255, v254, s[60:63], 0 offen sc1", "s_mov_b64 exec, -1", f"L_pj_zb_{ci}:"]}}
        sg, c1 = run_segment(0, gB, var, pf, vm1, [], hooks=hk0, epi_lo=int(os.environ.get('PFLO', 32)), epi_lim=int(os.environ.get('PFHI', 200)), epi2=addr_ops[var[1]], epi2_lo=8)
        I(sg)
        I(f"s_branch L_pj_{var[0]}2")
        segs[var] = sg
    k2 = {}
    be = b_epi()
    for kv in ("K", "V"):
        I(f"L_pj_{kv}2:")
        if kv == "K": k.stamp(2)
        vm2 = list(vm1)
        sg, c2 = run_segment(gB, GQ, (kv, "V"), be, vm2, c1, epi_lo=2, epi_lim=185)
        I(sg)
        if kv == "K": I("s_branch L_pj_Q")
        k2[kv] = sg
    I("L_pj_Q:")
    k.stamp(3)
    if QFUSE and MERGE:
        SDBG = 60
        vOne, vZero, vCnt = 52, 53, 54
        I(f"s_lshr_b32 s66, s58, 1", "s_lshl_b32 s66, s66, 12", f"s_add_u32 s66, s66, {LY.WS_CNT}")
        setup = [f"v_add_u32 {v(XF[0]+8+ks)}, 65536, {v(aXR+ks)}" for ks in range(4)] + [f"v_mov_b32 {v(vOne)}, 1", f"v_mov_b32 {v(vZero)}, 0"]
        zero = [f"v_accvgpr_write_b32 {a(i)}, 0" for i in range(128)]
        def cap(slot):
            n0 = len(k.lines); k.stamp(slot); L_ = [x.strip() for x in k.lines[n0:]]; del k.lines[n0:]; return L_
        w0 = lambda tg: [f"s_cmp_lg_u32 {s(sWave)}, 0", f"s_cbranch_scc1 L_pj_{tg}"]
        GS = GQ + int(os.environ.get("SIGST", 7))
        pollld = f"buffer_load_dword {v(vCnt)}, {v(vZero)}, {s(SWS,4)}, s66 offen sc1"
        def trycheck(tg):
            return w0(tg) + ["s_cmp_lg_u32 s67, 0", f"s_cbranch_scc1 L_pj_{tg}", "s_waitcnt vmcnt(0)", f"v_readfirstlane_b32 s65, {v(vCnt)}", "s_nop 0",
                             "s_cmp_ge_u32 s65, 16", f"s_cbranch_scc0 L_pj_{tg}_again", "buffer_inv sc1", "s_mov_b32 s67, 1", f"s_branch L_pj_{tg}",
                             f"L_pj_{tg}_again:", pollld, f"L_pj_{tg}:"]
        hooks = {GS - 2: {"post": w0("h5") + [f"buffer_load_dword {v(vCnt)}, {v(vZero)}, {s(SDBG,4)}, 0 offen sc1", "L_pj_h5:"]},
                 GS: {"all_stores": True, "pre": cap(6),
                      "post": ["s_mov_b32 s67, 0"] + w0("h7") + ["s_mov_b32 s64, 0x20000", "L_pj_ini:", "s_waitcnt vmcnt(0)", f"v_readfirstlane_b32 s65, {v(vCnt)}", "s_sub_u32 s64, s64, 1",
                                          "s_cmp_ge_u32 s65, 16", "s_cbranch_scc1 L_pj_inid", "s_cmp_eq_u32 s64, 0", "s_cbranch_scc1 L_pj_inid", "s_sleep 8",
                                          f"buffer_load_dword {v(vCnt)}, {v(vZero)}, {s(SDBG,4)}, 0 offen sc1", "s_branch L_pj_ini", "L_pj_inid:",
                                          "s_mov_b64 exec, 1", f"buffer_atomic_add {v(vOne)}, {v(vZero)}, {s(SWS,4)}, s3 offen sc1", "s_mov_b64 exec, -1", pollld, "L_pj_h7:"] + cap(7)}}
        for g_ in range(GS + 1, GE): hooks[g_] = {"post": trycheck(f"t{g_}")}
        segQ, _ = run_segment(GQ, GE, ("K", "V"), kv_epi(), vm2, c2, epi_lo=6, epi_lim=int(os.environ.get("KVLIM", 175)), more=[(setup, 0, 5), (zero, 200, 286)], hooks=hooks)
        I(segQ)
        flat = lambda L: [l for l in L if not l.endswith(":") and not l.startswith("s_cbranch") and not l.startswith("s_branch")]
        pre = reads(0, 0, 0) + ["s_waitcnt lgkmcnt(0)"]
        check(pre + flat(segs[("K", "QK")]) + flat(k2["K"]) + flat(segQ), "proj_merge_K"); check(pre + flat(segs[("V", "V")]) + flat(k2["V"]) + flat(segQ), "proj_merge_V")
        k.stamp(4)
        def handoff():
            I(f"s_cmp_lg_u32 {s(sWave)}, 0", "s_cbranch_scc1 L_pj_polled_all", "s_cmp_lg_u32 s67, 0", "s_cbranch_scc1 L_pj_polled")
            I("s_mov_b32 s64, 0x20000")
            I("L_pj_poll:", "s_waitcnt vmcnt(0)", f"v_readfirstlane_b32 s65, {v(vCnt)}",
              "s_sub_u32 s64, s64, 1", "s_cmp_ge_u32 s65, 16", "s_cbranch_scc1 L_pj_acq", "s_cmp_eq_u32 s64, 0", "s_cbranch_scc1 L_pj_acq",
              f"s_sleep {int(os.environ.get('PSLEEP', 4))}", f"buffer_load_dword {v(vCnt)}, {v(vZero)}, s[4:7], s66 offen sc1", "s_branch L_pj_poll")
            I("L_pj_acq:", "buffer_inv sc1")
            I("L_pj_polled:", "s_waitcnt vmcnt(0)")
            I("L_pj_polled_all:")
            k.stamp(5)
            I("s_barrier")
        from gen_atta import gen_atta
        gen_atta(k, merged=dict(QA=QA, sWave=sWave, sHead=58, sPair=59, SWS=SWS, sCA=sCA, handoff=handoff, sv=k.sv))
        I("L_pj_end:", "s_endpgm")
        return k
    if QFUSE:
        segQ = []
        k.stamp(4)
        I("s_nop 7", "s_nop 7")
        ke = kv_epi(final=True)
        for o in ke: I(list(o) if isinstance(o, tuple) else o)
    else:
        segQ, _ = run_segment(GQ, GE, ("K", "V"), kv_epi(), vm2, c2, epi_lo=4)
        I(segQ)
        k.stamp(4)
        I("s_nop 7", "s_nop 7"); I(q_epi())
    k.stamp(5)
    I("L_pj_end:", "s_endpgm")
    flat = lambda L: [l for l in L if not l.endswith(":") and not l.startswith("s_cbranch")]
    pre = reads(0, 0, 0) + ["s_waitcnt lgkmcnt(0)"]
    check(pre + flat(segs[("K", "QK")]) + flat(k2["K"]) + flat(segQ) + ["s_nop 7", "s_nop 7"] + ([] if QFUSE else q_epi()), "proj_K_QK")
    check(pre + flat(segs[("V", "V")]) + flat(k2["V"]) + flat(segQ), "proj_V_V")
    return k

def b_addr_ops(var, L):
    sWm, sWn, sNtB, sMtB, sBt, sBsc = (L[x] for x in ("sWm", "sWn", "sNtB", "sMtB", "sBt", "sBsc"))
    TT, UU, BADR, BONE, BTMP = L["TT"], L["UU"], L["BADR"], L["BONE"], L["BTMP"]
    sa, sb, sc, sd, se, sf = 92, 93, 94, 95, 96, 97
    va, vb = TT + 14, TT + 15
    O = []
    O += [f"v_mov_b32 {v(BONE+2+i)}, 0x3f803f80" for i in range(4)]
    if var == "QK":
        O += [f"s_mov_b32 {s(4+st)}, 0" for st in range(4)]
        O += [f"v_mov_b32 {v(BADR+32)}, 0x{OOB:08x}", f"v_mov_b32 {v(BADR+33)}, 0x{OOB:08x}"]
        vTab, vMain, vLeft, vIdx = TT + 8, TT + 9, TT + 11, TT + 13
        sIsK, sC0 = se, sf
        O += [f"s_lshl_b32 {s(sC0)}, {s(sNtB)}, 7", f"s_lshl_b32 {s(sa)}, {s(sWn)}, 6", f"s_add_u32 {s(sC0)}, {s(sC0)}, {s(sa)}"]
        O += [tuple([f"s_cmp_ge_u32 {s(sC0)}, 576", f"s_cselect_b32 {s(sIsK)}, 1, 0"] + csel(sBsc, "0x3f800000", f"0x{f32bits(LY.CB):08x}") + [f"s_cselect_b32 {s(sa)}, 576, 0"]),
              f"s_sub_u32 {s(sC0)}, {s(sC0)}, {s(sa)}"]
        O += [f"v_and_b32 {v(va)}, 31, v0", f"v_lshlrev_b32 {v(vb)}, 1, {v(va)}", f"v_add_u32 {v(vb)}, {s(sC0)}, {v(vb)}",
              f"v_mul_u32_u24 {v(TT)}, 3641, {v(vb)}", f"v_lshrrev_b32 {v(TT)}, 16, {v(TT)}",
              f"v_mul_u32_u24 {v(TT+1)}, 18, {v(TT)}", f"v_sub_u32 {v(TT+1)}, {v(vb)}, {v(TT+1)}",
              f"v_lshrrev_b32 {v(TT+2)}, 2, {v(TT+1)}", f"v_and_b32 {v(TT+2)}, 1, {v(TT+2)}", f"v_lshlrev_b32 {v(TT+2)}, 9, {v(TT+2)}",
              f"v_and_b32 {v(TT+3)}, 3, {v(TT+1)}", f"v_lshrrev_b32 {v(TT+3)}, 1, {v(TT+3)}", f"v_lshrrev_b32 {v(TT+4)}, 3, {v(TT+1)}", f"v_lshl_add_u32 {v(TT+3)}, {v(TT+4)}, 1, {v(TT+3)}",
              f"v_lshl_add_u32 {v(TT+2)}, {v(TT+3)}, 2, {v(TT+2)}"]
        O += [tuple([f"s_cmp_eq_u32 {s(sIsK)}, 0"] + csel(sa, 65536, LY.HEADB) + csel(sb, 8192, LY.HEADB))]
        O += [f"v_mul_lo_u32 {v(TT+3)}, {v(TT)}, {s(sa)}", f"v_add_u32 {v(TT+2)}, {v(TT+2)}, {v(TT+3)}",
              f"v_mul_lo_u32 {v(TT+3)}, {v(TT)}, {s(sb)}", f"v_or_b32 {v(TT+3)}, 0x80000000, {v(TT+3)}",
              (f"v_cmp_eq_u32 vcc, 16, {v(TT+1)}", "s_nop 1", f"v_cndmask_b32 {v(vTab)}, {v(TT+2)}, {v(TT+3)}, vcc")]
        for tm in range(2):
            O += [f"s_lshl_b32 {s(sa)}, {s(sMtB)}, 2", f"s_lshl_b32 {s(sb)}, {s(sWm)}, 1", f"s_add_u32 {s(sa)}, {s(sa)}, {s(sb)}", f"s_add_u32 {s(sa)}, {s(sa)}, {tm}"]
            O += [f"s_lshr_b32 {s(sd)}, {s(sa)}, 3", f"s_mul_i32 {s(sd)}, {s(sd)}, {LY.CHB}", f"s_add_u32 {s(sd)}, {s(sd)}, {LY.WS_KVB}",
                  f"s_and_b32 {s(sb)}, {s(sa)}, 7", f"s_lshl_b32 {s(sb)}, {s(sb)}, 10", f"s_add_u32 {s(sb)}, {s(sb)}, {s(sd)}",
                  f"s_and_b32 {s(sc)}, {s(sa)}, 4", f"s_lshl_b32 {s(sc)}, {s(sc)}, 7", f"s_add_u32 {s(sd)}, {s(sd)}, {s(sc)}", f"s_add_u32 {s(sd)}, {s(sd)}, 8192",
                  f"s_and_b32 {s(sc)}, {s(sa)}, 3", f"s_lshl_b32 {s(sc)}, {s(sc)}, 2", f"s_add_u32 {s(sd)}, {s(sd)}, {s(sc)}",
                  f"s_lshl_b32 {s(sc)}, {s(sa)}, 10", f"s_add_u32 {s(sc)}, {s(sc)}, {LY.WS_QB0}",
                  f"s_lshl_b32 {s(sa)}, {s(sa)}, 7", f"s_add_u32 {s(sa)}, {s(sa)}, {LY.WS_QB1}",
                  (f"s_cmp_eq_u32 {s(sIsK)}, 0", f"s_cselect_b32 {s(sb)}, {s(sc)}, {s(sb)}", f"s_cselect_b32 {s(sd)}, {s(sa)}, {s(sd)}", f"s_cselect_b32 {s(sa)}, 2, 4"),
                  f"v_and_b32 {v(va)}, 31, v0", f"v_lshlrev_b32 {v(vMain+tm)}, 4, {v(va)}", f"v_add_u32 {v(vMain+tm)}, {s(sb)}, {v(vMain+tm)}",
                  f"v_lshlrev_b32 {v(vLeft+tm)}, {s(sa)}, {v(va)}", f"v_add_u32 {v(vLeft+tm)}, {s(sd)}, {v(vLeft+tm)}"]
        O += [f"v_lshrrev_b32 {v(vIdx)}, 5, v0", f"v_lshlrev_b32 {v(vIdx)}, 3, {v(vIdx)}"]
        G = [UU + i for i in range(8)] + [BTMP + i for i in range(8)]
        for tn in range(2):
            for p in range(8):
                i0 = 16 * tn + (p & 1) + 4 * (p >> 1)
                O += [f"v_add_u32 {v(va)}, {i0*4}, {v(vIdx)}", f"ds_bpermute_b32 {v(G[tn*8+p])}, {v(va)}, {v(vTab)}"]
        O += ["s_waitcnt lgkmcnt(0)"]
        for tn in range(2):
            for p in range(8):
                g = G[tn * 8 + p]
                d0, d1 = BADR + tn * 8 + p, BADR + (2 + tn) * 8 + p
                O += [(f"v_cmp_gt_i32 vcc, 0, {v(g)}", f"v_and_b32 {v(g)}, 0x7fffffff, {v(g)}", "s_nop 0",
                       f"v_cndmask_b32 {v(d0)}, {v(vMain)}, {v(vLeft)}, vcc", f"v_cndmask_b32 {v(d1)}, {v(vMain+1)}, {v(vLeft+1)}, vcc"),
                      f"v_add_u32 {v(d0)}, {v(d0)}, {v(g)}", f"v_add_u32 {v(d1)}, {v(d1)}, {v(g)}"]
    else:
        O += [f"s_mov_b32 {s(sBsc)}, 0x3f800000"]
        for tm in range(2):
            for f in range(2):
                O += [f"s_lshl_b32 {s(sa)}, {s(sMtB)}, 3", f"s_lshl_b32 {s(sb)}, {s(sWm)}, 2", f"s_add_u32 {s(sa)}, {s(sa)}, {s(sb)}", f"s_add_u32 {s(sa)}, {s(sa)}, {2*tm+f}",
                      f"s_lshr_b32 {s(sb)}, {s(sa)}, 4", f"s_mul_i32 {s(sb)}, {s(sb)}, {LY.CHB}", f"s_and_b32 {s(sa)}, {s(sa)}, 15", f"s_mul_i32 {s(sa)}, {s(sa)}, 608",
                      f"s_add_u32 {s(sa)}, {s(sa)}, {s(sb)}", f"s_add_u32 {s(4 + 2*tm + f)}, {s(sa)}, {LY.WS_KVB + 9216}"]
        for tn in range(2):
            O += [f"s_lshl_b32 {s(sa)}, {s(sNtB)}, 7", f"s_lshl_b32 {s(sb)}, {s(sWn)}, 6", f"s_add_u32 {s(sa)}, {s(sa)}, {s(sb)}", f"s_add_u32 {s(sa)}, {s(sa)}, {32*tn}", f"s_sub_u32 {s(sa)}, {s(sa)}, 1152",
                  (f"s_cmp_eq_u32 {s(sBt)}, 2", f"s_cselect_b32 {s(sa)}, 4096, {s(sa)}"),
                  f"v_and_b32 {v(va)}, 31, v0", f"v_add_u32 {v(va)}, {s(sa)}, {v(va)}",
                  f"v_mul_u32_u24 {v(vb)}, 3641, {v(va)}", f"v_lshrrev_b32 {v(vb)}, 16, {v(vb)}",
                  f"v_mul_u32_u24 {v(TT)}, 18, {v(vb)}", f"v_sub_u32 {v(TT)}, {v(va)}, {v(TT)}",
                  f"s_mov_b32 {s(sb)}, {LY.HEADB}", f"v_mul_lo_u32 {v(vb)}, {v(vb)}, {s(sb)}", f"v_lshl_add_u32 {v(vb)}, {v(TT)}, 4, {v(vb)}",
                  f"v_lshrrev_b32 {v(TT+1)}, 5, v0", f"v_mul_u32_u24 {v(TT+1)}, 304, {v(TT+1)}", f"v_add_u32 {v(vb)}, {v(vb)}, {v(TT+1)}",
                  f"v_mov_b32 {v(TT+2)}, 0x{OOB:08x}",
                  (f"v_cmp_gt_u32 vcc, 576, {v(va)}", "s_nop 1", f"v_cndmask_b32 {v(TT+3)}, {v(TT+2)}, {v(vb)}, vcc"),
                  f"v_add_u32 {v(vb)}, 16, {v(TT+3)}",
                  (f"v_cmp_eq_u32 vcc, 17, {v(TT)}", "s_nop 1", f"v_cndmask_b32 {v(BADR+32+tn)}, {v(TT+2)}, {v(vb)}, vcc")]
            for tm in range(2):
                for p in range(8):
                    d = BADR + (tm * 2 + tn) * 8 + p
                    O += [f"s_add_u32 {s(sa)}, {s(4 + 2*tm + (p >> 2))}, {(p & 3) * 4}", f"v_add_u32 {v(d)}, {s(sa)}, {v(TT+3)}"]
    return O
```

```python
from gen_common import *
import struct, os
def f32bits(x): return struct.unpack("<I", struct.pack("<f", x))[0]

def qproj(k, sHead, sPair, sWave, QL, QH, kv_items, tail_items):
    I = k.I
    SX, SWq = 62, 66
    SX, SWq = 64, 68
    sXb, sWb, sMX, sMW, sT, sT2 = 72, 73, 74, 75, 76, 77
    vX, vW = 16, 18
    aX = [20, 24, 28]; aW = [32, 36, 40]
    XF = [44, 52]; WF = [60, 76]
    vT, vT2, T0 = 92, 93, 96
    ACC = 128
    SLOT = 49152
    I("s_load_dwordx2 s[78:79], s[0:1], 0", "s_load_dwordx2 s[80:81], s[0:1], 16")
    for par in range(2):
        I(f"v_lshrrev_b32 {v(vT)}, 4, v0", f"v_add_u32 {v(vT)}, {4*par}, {v(vT)}", f"v_and_b32 {v(vT2)}, 7, v0", f"v_xor_b32 {v(vT)}, {v(vT)}, {v(vT2)}",
          f"v_lshlrev_b32 {v(vT)}, 4, {v(vT)}", f"v_lshrrev_b32 {v(vT2)}, 3, v0", f"v_mul_u32_u24 {v(vT2)}, 1152, {v(vT2)}", f"v_add_u32 {v(vX+par)}, {v(vT)}, {v(vT2)}")
    I(f"v_lshrrev_b32 {v(vT)}, 4, v0", f"v_lshlrev_b32 {v(vT2)}, 2, {v(vT)}", f"v_and_b32 {v(vW)}, 15, v0", f"v_xor_b32 {v(vW)}, {v(vW)}, {v(vT2)}",
      f"v_lshlrev_b32 {v(vW)}, 4, {v(vW)}", f"v_lshlrev_b32 {v(vT)}, 13, {v(vT)}", f"v_add_u32 {v(vW)}, {v(vW)}, {v(vT)}")
    I(f"s_lshl_b32 {s(sT)}, {s(sPair)}, 7", f"s_sub_u32 {s(sT2)}, {128*15 - 128}, {s(sT)}", f"s_cmp_ge_u32 {s(sWave)}, 2", f"s_cselect_b32 {s(sT)}, {s(sT2)}, {s(sT)}",
      f"s_lshl_b32 {s(sT2)}, {s(sWave)}, 6", f"s_add_u32 {s(sT)}, {s(sT)}, {s(sT2)}", f"s_mul_i32 {s(sXb)}, {s(sT)}, 1152")
    I(f"s_lshl_b32 {s(sWb)}, {s(sWave)}, 17", f"s_lshl_b32 {s(sT)}, {s(sHead)}, 8", f"s_add_u32 {s(sWb)}, {s(sWb)}, {s(sT)}")
    I(f"s_lshl_b32 {s(sMX)}, {s(sWave)}, 13", f"s_add_u32 {s(sMX)}, {s(sMX)}, 16384", f"s_lshl_b32 {s(sMW)}, {s(sWave)}, 12")
    I("s_waitcnt lgkmcnt(0)")
    k.srd(SX, 78, 2048 * 1152); k.srd(SWq, 80, 576 * 8192)
    def item(t):
        sl = (t % 3) * SLOT
        o = [(f"s_add_u32 m0, {s(sMW)}, {sl + j*1024}", f"s_add_u32 {s(sT)}, {s(sWb)}, {(64*t + 4*j)*8192}", f"buffer_load_dwordx4 {v(vW)}, {s(SWq,4)}, {s(sT)} offen lds") for j in range(4)]
        o += [(f"s_add_u32 m0, {s(sMX)}, {sl + j*1024}", f"s_add_u32 {s(sT)}, {s(sXb)}, {t*128 + j*8*1152}", f"buffer_load_dwordx4 {v(vX+(j&1))}, {s(SX,4)}, {s(sT)} offen lds") for j in range(8)]
        return o
    vml = []
    for t in range(3):
        for d in item(t): I(list(d)); vml.append(("Q", t))
    I(f"v_and_b32 {v(vT)}, 31, v0", f"s_lshl_b32 {s(sT)}, {s(sWave)}, 5", f"v_add_u32 {v(vT)}, {s(sT)}, {v(vT)}", f"v_lshlrev_b32 {v(T0)}, 7, {v(vT)}",
      f"v_lshrrev_b32 {v(T0+1)}, 5, v0", f"v_lshrrev_b32 {v(T0+2)}, 1, v0", f"v_and_b32 {v(T0+2)}, 7, {v(T0+2)}")
    for ks in range(4):
        I(f"v_add_u32 {v(vT)}, {2*ks}, {v(T0+1)}", f"v_xor_b32 {v(vT)}, {v(vT)}, {v(T0+2)}", f"v_lshl_add_u32 {v(vT)}, {v(vT)}, 4, {v(T0)}")
        for sl in range(3): I(f"v_add_u32 {v(aX[sl]+ks)}, {sl*SLOT + 16384}, {v(vT)}")
    I(f"v_lshrrev_b32 {v(T0)}, 5, v0", f"v_lshlrev_b32 {v(T0)}, 3, {v(T0)}", f"v_and_b32 {v(T0+1)}, 15, v0", f"v_lshrrev_b32 {v(T0+1)}, 2, {v(T0+1)}",
      f"v_add_u32 {v(T0)}, {v(T0)}, {v(T0+1)}", f"v_lshlrev_b32 {v(T0+1)}, 2, {v(T0+1)}",
      f"v_lshrrev_b32 {v(T0+2)}, 4, v0", f"v_and_b32 {v(T0+2)}, 1, {v(T0+2)}", f"v_lshlrev_b32 {v(T0+2)}, 1, {v(T0+2)}",
      f"v_and_b32 {v(T0+3)}, 3, v0", f"v_lshrrev_b32 {v(T0+3)}, 1, {v(T0+3)}", f"v_add_u32 {v(T0+2)}, {v(T0+2)}, {v(T0+3)}",
      f"v_and_b32 {v(T0+3)}, 1, v0", f"v_lshlrev_b32 {v(T0+3)}, 3, {v(T0+3)}")
    for dt in range(4):
        I(f"v_xor_b32 {v(vT)}, {4*dt}, {v(T0+1)}", f"v_add_u32 {v(vT)}, {v(vT)}, {v(T0+2)}", f"v_lshl_add_u32 {v(vT)}, {v(vT)}, 4, {v(T0+3)}", f"v_lshl_add_u32 {v(vT)}, {v(T0)}, 8, {v(vT)}")
        for sl in range(3): I(f"v_add_u32 {v(aW[sl]+dt)}, {sl*SLOT}, {v(vT)}" if sl else f"v_mov_b32 {v(aW[sl]+dt)}, {v(vT)}")
    def reads(t, ks, b):
        sl = t % 3
        L = [f"ds_read_b128 {v(XF[b]+4*tq,4)}, {v(aX[sl]+ks)}" + (f" offset:{tq*16384}" if tq else "") for tq in range(2)]
        for dt in range(4):
            for rd in range(2): L.append(f"ds_read_b64_tr_b16 {v(WF[b]+4*dt+2*rd,2)}, {v(aW[sl]+dt)} offset:{ks*4096 + rd*1024}")
        return L
    def mfmas(t, ks, b):
        L = []
        for tq in range(2):
            for dt in range(4):
                ac = v(ACC + (tq*4+dt)*16, 16)
                L.append(f"v_mfma_f32_32x32x16_bf16 {ac}, {v(WF[b]+4*dt,4)}, {v(XF[b]+4*tq,4)}, {'0' if t == 0 and ks == 0 else ac}")
        return L
    n0 = len(vml) - 1 - max(i for i, x in enumerate(vml) if x == ("Q", 0))
    I(f"s_waitcnt vmcnt({n0})", "s_barrier")
    k.stamp(6)
    I(reads(0, 0, 0), "s_waitcnt lgkmcnt(0)")
    backbone = []; ctl = {}; rd_streams = []; bars = []
    for t in range(9):
        for ks in range(4):
            m = mfmas(t, ks, ks & 1); start = len(backbone); backbone += m
            if ks < 3: nxt = reads(t, ks + 1, (ks + 1) & 1)
            elif t < 8: nxt = reads(t + 1, 0, 0)
            else: nxt = []
            if nxt: rd_streams.append([(r, start, start + 5) for r in nxt])
            if ks == 2: ctl[start + 7] = ("BAR", t); bars.append((start + 7, t))
            else: ctl[start + 7] = "W"
    n = len(backbone)
    dma = []
    for bg, t in bars:
        its = [(("Q", t + 3), d) for d in item(t + 3)] if t + 3 < 9 else []
        its += [(("KV", t), tuple(d)) for d in kv_items.get(t, [])]
        nb = [x for x, _ in bars if x > bg]
        dma += [(it, bg + 1, (nb[0] - 1) if nb else n - 1) for it in its]
    streams = [[(d, e, l) for (tag, d), e, l in dma]] + rd_streams
    base = [0] * n
    for gp, c in ctl.items(): base[gp] += 8 if c != "W" else 4
    asg, load = anneal(n, base, streams)
    slots = {gp: [] for gp in range(n)}
    for si in list(range(1, len(streams))) + [0]:
        for idx, ((op, e, l), gp) in enumerate(zip(streams[si], asg[si])):
            slots[gp].append((op, dma[idx][0][0] if si == 0 else None))
    out = []
    for gi in range(n):
        out.append(backbone[gi])
        for op, tag in slots[gi]:
            ls = list(op) if isinstance(op, tuple) else [op]
            out += ls
            if tag is not None:
                for l_ in ls:
                    if l_.startswith("buffer_"): vml.append(tag)
        c = ctl.get(gi)
        if c == "W": out.append("s_waitcnt lgkmcnt(0)")
        elif c is not None:
            t = c[1]
            if t + 1 < 9:
                idx = max(i for i, x in enumerate(vml) if x == ("Q", t + 1))
                out.append(f"s_waitcnt vmcnt({min(63, len(vml) - 1 - idx)}) lgkmcnt(0)")
            else: out.append("s_waitcnt lgkmcnt(0)")
            out.append("s_barrier")
    I(out)
    check(reads(0, 0, 0) + ["s_waitcnt lgkmcnt(0)"] + out, "qproj")
    if os.environ.get("QSTAMP"):
        k.sv = (94, 98); k.stamp(4); k.sv = (250, 252)
    for grp in tail_items: I(list(grp))
    I("s_nop 7", "s_nop 7")
    I(f"s_mov_b32 {s(sT)}, 0x{f32bits(LY.CA):08x}", f"s_mov_b32 {s(sT+1)}, 0x{f32bits(LY.CA):08x}")
    def conv(tq):
        L = []
        for dt in range(4):
            b = ACC + (tq*4+dt)*16
            for i in range(0, 16, 2): L.append(f"v_pk_mul_f32 {v(b+i,2)}, {v(b+i,2)}, {s(sT,2)}")
            for i in range(8): L.append(f"v_cvt_pk_bf16_f32 {v(b+i)}, {v(b+2*i)}, {v(b+2*i+1)}")
            for i in range(8): L.append(f"v_accvgpr_write_b32 {a((QL if tq == 0 else QH) + dt*8 + i)}, {v(b+i)}")
        return L
    I(conv(0))
    return conv(1)
```

```python
import re, sys
from asmlib import Ins, is_instr
def srdcheck(text):
    const = {}
    bad = 0
    kern = None
    for ln, l in enumerate(text.split("\n"), 1):
        s = l.split(";")[0].strip()
        if s.endswith("_kernel:"): const = {}; kern = s
        if not is_instr(l) or s.startswith("."): continue
        try: I = Ins(l)
        except Exception: continue
        if I.op.startswith("buffer_") and I.op != "buffer_inv":
            m = re.search(r"s\[(\d+):(\d+)\]", s)
            b = int(m.group(1))
            if const.get(b + 3) != "0x00020000" or const.get(b + 2) is None:
                print(f"SRD CHECK line {ln} ({kern}): {s}  word2={const.get(b+2)} word3={const.get(b+3)}"); bad += 1
        if I.kind in ("salu", "smem", "valu", "trans"):
            for r in I.wr:
                if r[0] == "s":
                    val = None
                    if I.op == "s_mov_b32":
                        src = I.ops[1]
                        mm = re.match(r"^s(\d+)$", src)
                        val = const.get(int(mm.group(1))) if mm else src
                    const[r[1]] = val
    return bad
if __name__ == "__main__":
    print("bad:", srdcheck(open(sys.argv[1]).read()))
```

```python
import sys, os
from gen_common import *
from gen_oproj import gen_oproj, gen_oprojb
from gen_attb import gen_attb, LDS_B
from gen_atta import gen_atta, LDS_A
from gen_proj import gen_proj, LDS_P
from gen_mix import gen_mix, LDS_M
if __name__ == "__main__":
    import gen_proj as GP
    ka = None
    if not (GP.MERGE and GP.QFUSE):
        ka = Kern("atta_kernel", nvgpr=512, accum=256); ka.stamp_base = 65536
        ka.I("s_cmp_ge_u32 s2, 256", "s_cbranch_scc1 L_atta_exit"); ka.stamp(0)
        gen_atta(ka)
        ka.I("L_atta_exit:", "s_endpgm")
    if os.environ.get("NOMIX"):
        kb = Kern("attb_kernel", nvgpr=256, accum=256); kb.stamp_base = 131072
        kb.I("s_cmp_ge_u32 s2, 256", "s_cbranch_scc1 L_attb_exit"); kb.stamp(0)
        gen_attb(kb)
        kb.I("L_attb_exit:", "s_endpgm")
        kerns = [gen_proj(), ka, kb, gen_oproj(), gen_oprojb()]
        launches = [("proj_kernel", 256, 256, LDS_P), ("atta_kernel", 256, 256, LDS_A), ("attb_kernel", 256, 512, LDS_B), ("oproj_kernel", 192, 256, 98304), ("oprojb_kernel", 192, 256, 98304)]
    else:
        from gen_mix import FUSE_OB
        from gen_proj import MERGE, QFUSE
        mg = MERGE and QFUSE
        kerns = [gen_proj()] + ([] if mg else [ka]) + [gen_mix()] + ([] if FUSE_OB else [gen_oprojb()])
        launches = [("proj_kernel", 256, 256, LDS_P)] + ([] if mg else [("atta_kernel", 256, 256, LDS_A)]) + [("mix_kernel", 256, 768, LDS_M)] + ([] if FUSE_OB else [("oprojb_kernel", 384, 256, 49152)])
    txt = assemble_file(launches, kerns)
    from srdcheck import srdcheck
    nb = srdcheck(txt)
    if nb: print("SRD CHECK FAILED:", nb)
    out = sys.argv[1] if len(sys.argv) > 1 else f"cdna_kernels/{NAME}.s"
    open(out, "w").write(txt)
    print("wrote", out, len(txt))
```

```python
from gen_common import *
import struct, os
def f32bits(x): return struct.unpack("<I", struct.pack("<f", x))[0]
RB, PB = 0, 65536
LDS_P = 163840
OOB = 0xF0000000
STF = (' ' + os.environ['STF']) if os.environ.get('STF') else ''
STQ = ' ' + os.environ.get('STQ', 'sc1')
STAGES = []
kk = 0
for grp in range(4):
    STAGES += [("K", kk), ("K", kk + 1), ("B", 2 * grp), ("B", 2 * grp + 1)]; kk += 2
STAGES += [("K", 8), ("K", 9), ("B", 8)] + [("K", i) for i in range(10, 16)]
GQ = len(STAGES)
STAGES += [("Q", i) for i in range(9)]
GE = len(STAGES)
PITEMS = []
STAGE_P = []
for g_, (ph_, i_) in enumerate(STAGES):
    it = ("K", i_ >> 1) if ph_ == "K" else (("B", i_ >> 1) if ph_ == "B" else ("Q", i_))
    if it not in PITEMS: PITEMS.append(it)
    STAGE_P.append(PITEMS.index(it))
UE = len(PITEMS)
LAST_USER = [max(g_ for g_, u_ in enumerate(STAGE_P) if u_ == u) for u in range(UE)]
def ph(g): return STAGES[g][0]
def ix(g): return STAGES[g][1]

def csel(dst, x, y):
    return [f"s_mov_b32 {s(dst)}, {y}", f"s_cselect_b32 {s(dst)}, {x}, {s(dst)}"]

def gen_proj():
    k = Kern("proj_kernel", nvgpr=512, accum=256); k.sv = (38, 1)
    I = k.I
    SXKV, SWKV, SXQ, SWQ, SXB, SWB, SWS, SWOA, SWOB = 8, 12, 16, 20, 24, 28, 32, 36, 40
    (sWave, sT, sT2, sT3, sXcd, sJ, sIsV, sBt, sWm, sWn, sXkvB, sWkvB, sXqB, sWqB, sXbB, sWbB, sM1024, sM2048) = range(68, 86)
    sBsc = 57
    sQout, sCA, sNtB, sMtB, sF = 52, 53, 54, 55, 56
    sKVo = 44
    vXa, vXb, vW, vWB = 2, 4, 6, 8
    aXP, aXP2, aWR, aXR, aWP, aWP2, aXB, aWB, aWB2, vL16 = 9, 13, 17, 21, 25, 27, 29, 33, 35, 37
    vT, vT2 = 38, 39
    XF = [40, 56]; WF = [72, 88]; TT = 104; UU = 120
    BA = 128; BADR = 192; BONE = 224; BTMP = 232; PFV = 244; QA = 128
    I("s_cmp_ge_u32 s2, 256", "s_cbranch_scc1 L_pj_end")
    k.stamp(0)
    I("s_load_dwordx16 s[48:63], s[0:1], 0", "s_load_dwordx2 s[64:65], s[0:1], 64", "s_load_dwordx2 s[66:67], s[0:1], 88")
    I(f"v_lshrrev_b32 {v(vT)}, 6, v0", "v_and_b32 v0, 63, v0", "s_nop 0", f"v_readfirstlane_b32 {s(sWave)}, {v(vT)}")
    I(f"s_and_b32 {s(sXcd)}, s2, 7", f"s_lshr_b32 {s(sJ)}, s2, 3")
    I(f"s_lshl_b32 s3, {s(sJ)}, 2", f"s_add_u32 s3, s3, {s(sWave)}")
    k.code_prefetch("pj", "proj_kernel", "L_end_proj_kernel", 7, 3, 4, 250, True)
    I(f"s_lshl_b32 s3, s2, 2", f"s_add_u32 s3, s3, {s(sWave)}")
    k.code_prefetch("pj2", "atta_kernel", "L_end_mix_kernel" if not os.environ.get("NOFUSE") else "L_end_oprojb_kernel", 10, 3, 4, 252, False)
    def xoff(dst, stride, par):
        I(f"v_lshrrev_b32 {v(vT)}, 4, v0", f"v_add_u32 {v(vT)}, {4*par}, {v(vT)}", f"v_and_b32 {v(vT2)}, 7, v0", f"v_xor_b32 {v(vT)}, {v(vT)}, {v(vT2)}",
          f"v_lshlrev_b32 {v(vT)}, 4, {v(vT)}", f"v_lshrrev_b32 {v(vT2)}, 3, v0", f"v_mul_u32_u24 {v(vT2)}, {stride}, {v(vT2)}", f"v_add_u32 {v(dst)}, {v(vT)}, {v(vT2)}")
    for par in range(2):
        xoff(vXa + par, 1024, par)
        I(f"v_lshrrev_b32 {v(vT)}, 5, v0", f"v_add_u32 {v(vT2)}, {2*par}, {v(vT)}", f"v_lshlrev_b32 {v(vT2)}, 2, {v(vT2)}", f"v_and_b32 {v(vW+par)}, 31, v0",
          f"v_xor_b32 {v(vW+par)}, {v(vW+par)}, {v(vT2)}", f"v_lshlrev_b32 {v(vW+par)}, 4, {v(vW+par)}", f"v_lshlrev_b32 {v(vT)}, 13, {v(vT)}", f"v_add_u32 {v(vW+par)}, {v(vW+par)}, {v(vT)}")
    I(f"s_lshl_b32 {s(sM1024)}, {s(sWave)}, 12", f"s_lshl_b32 {s(sM2048)}, {s(sWave)}, 13")
    sRh, sCq, sMtK, sNtK = 86, 87, 92, 93
    I(f"s_and_b32 {s(sRh)}, {s(sXcd)}, 1", f"s_lshr_b32 {s(sCq)}, {s(sXcd)}, 1")
    I(f"s_and_b32 {s(sMtK)}, {s(sJ)}, 3", f"s_lshl_b32 {s(sT)}, {s(sRh)}, 2", f"s_add_u32 {s(sMtK)}, {s(sMtK)}, {s(sT)}",
      f"s_lshr_b32 {s(sNtK)}, {s(sJ)}, 2", f"s_lshl_b32 {s(sT)}, {s(sCq)}, 3", f"s_add_u32 {s(sNtK)}, {s(sNtK)}, {s(sT)}",
      f"s_lshr_b32 {s(sIsV)}, {s(sNtK)}, 4", f"s_and_b32 {s(sNtK)}, {s(sNtK)}, 15")
    I(f"s_lshl_b32 {s(sXkvB)}, {s(sMtK)}, 18", f"s_lshl_b32 {s(sT)}, {s(sWave)}, 16", f"s_add_u32 {s(sXkvB)}, {s(sXkvB)}, {s(sT)}")
    I(f"s_lshl_b32 {s(sWkvB)}, {s(sWave)}, 16", f"s_lshl_b32 {s(sT)}, {s(sNtK)}, 9", f"s_add_u32 {s(sWkvB)}, {s(sWkvB)}, {s(sT)}")
    I("s_waitcnt lgkmcnt(0)")
    I(f"s_cmp_eq_u32 {s(sIsV)}, 0", f"s_cselect_b32 {s(SWKV)}, s54, s56", f"s_cselect_b32 {s(SWKV+1)}, s55, s57",
      f"s_mov_b32 {s(SWKV+2)}, {512*8192}", f"s_mov_b32 {s(SWKV+3)}, 0x00020000")
    k.srd(SXKV, 50, 2048 * 1024)
    def dma(vreg, srd, sbase, soff, ldsreg, ldsoff):
        return [f"s_add_u32 m0, {s(ldsreg)}, {ldsoff}", f"s_add_u32 {s(sT)}, {s(sbase)}, {soff}", f"buffer_load_dwordx4 {v(vreg)}, {s(srd,4)}, {s(sT)} offen lds"]
    def Ritem(g):
        slot = RB + (g % 4) * 16384
        if ph(g) == "B":
            return [dma(vXb + (j & 1), SXB, sXbB, ix(g) * 128 + j * 8 * 1152, sM1024, slot + j * 1024) for j in range(4)]
        if ph(g) == "K":
            return [dma(vW + (j & 1), SWKV, sWkvB, (32 * ix(g) + 2 * j) * 8192, sM1024, slot + j * 1024) for j in range(4)]
        return [dma(vXb + (j & 1), SXQ, sXqB, ix(g) * 128 + j * 8 * 1152, sM1024, slot + j * 1024) for j in range(4)]
    def Pitem(u):
        slot = PB + (u % 3) * 32768
        kind, i = PITEMS[u]
        if kind == "B":
            o = []
            for tt in (2 * i, 2 * i + 1):
                if tt < 9: o += [dma(vWB, SWB, sWbB, (64 * tt + 4 * j) * 3456, sM1024, slot + (tt & 1) * 16384 + j * 1024) for j in range(4)]
            return o
        if kind == "K":
            return [dma(vXa + (j & 1), SXKV, sXkvB, i * 128 + j * 8 * 1024, sM2048, slot + j * 1024) for j in range(8)]
        return [dma(vW + (j & 1), SWQ, sWqB, (64 * i + 2 * j) * 8192, sM2048, slot + j * 1024) for j in range(8)]
    vmlog = []
    def issue(order):
        for kind, idx in order:
            for d in (Ritem(idx) if kind == "R" else Pitem(idx)):
                I(d); vmlog.append((kind, idx))
    if not os.environ.get("NOCPF"): vmlog += [("E", 0), ("E", 0)]
    issue([("R", 0), ("P", 0), ("R", 1)])
    I(f"v_lshlrev_b32 {v(vL16)}, 4, v0")
    for par in range(2): xoff(vXb + par, 1152, par)
    I(f"v_lshrrev_b32 {v(vT)}, 4, v0", f"v_lshlrev_b32 {v(vT2)}, 2, {v(vT)}", f"v_and_b32 {v(vWB)}, 15, v0", f"v_xor_b32 {v(vWB)}, {v(vWB)}, {v(vT2)}",
      f"v_lshlrev_b32 {v(vWB)}, 4, {v(vWB)}", f"v_mul_u32_u24 {v(vT)}, 3456, {v(vT)}", f"v_add_u32 {v(vWB)}, {v(vWB)}, {v(vT)}")
    k.srd(SXB, 60, 2048 * 1152); k.srd(SWB, 62, 576 * 3456); k.srd(SXQ, 48, 2048 * 1152); k.srd(SWQ, 52, 576 * 8192)
    k.srd(SWS, 66, LY.WS_END); k.srd(SWOA, 58, 4096 * 1152); k.srd(SWOB, 64, 576 * 1152)
    I(f"s_lshr_b32 {s(sWm)}, {s(sWave)}, 1", f"s_and_b32 {s(sWn)}, {s(sWave)}, 1")
    sMt, sN0 = sT2, sT3
    I(f"s_lshl_b32 {s(sT)}, {s(sNtK)}, 1", f"s_add_u32 {s(sT)}, {s(sT)}, {s(sWn)}", f"s_lshl_b32 {s(sT)}, {s(sT)}, 19", f"s_lshl_b32 {s(sF)}, {s(sMtK)}, 3", f"s_lshl_b32 {s(sMt)}, {s(sWm)}, 2", f"s_add_u32 {s(sF)}, {s(sF)}, {s(sMt)}",
      f"s_lshl_b32 {s(sF)}, {s(sF)}, 13", f"s_add_u32 {s(sT)}, {s(sT)}, {s(sF)}")
    I(f"s_cmp_eq_u32 {s(sIsV)}, 0", csel(sF, LY.WS_KA, LY.WS_VA), csel(sMt, 2048, 1024), csel(sN0, 1024, 4096), f"s_add_u32 {s(sT)}, {s(sT)}, {s(sF)}")
    for tn in range(4):
        I(f"s_mul_i32 {s(sF)}, {s(sMt)}, {tn}", f"s_add_u32 {s(sKVo+2*tn)}, {s(sT)}, {s(sF)}", f"s_add_u32 {s(sKVo+2*tn+1)}, {s(sKVo+2*tn)}, {s(sN0)}")
    I(f"s_and_b32 {s(sMt)}, {s(sJ)}, 7", f"s_lshl_b32 {s(sT)}, {s(sRh)}, 3", f"s_add_u32 {s(sMt)}, {s(sMt)}, {s(sT)}",
      f"s_lshr_b32 {s(sN0)}, {s(sJ)}, 3", f"s_lshl_b32 {s(sT)}, {s(sCq)}, 2", f"s_add_u32 {s(sN0)}, {s(sN0)}, {s(sT)}")
    I(f"s_lshl_b32 {s(sT)}, {s(sMt)}, 2", f"s_add_u32 {s(sT)}, {s(sT)}, {s(sWave)}", f"s_mul_i32 {s(sXqB)}, {s(sT)}, {32*1152}")
    I(f"s_lshl_b32 {s(sWqB)}, {s(sWave)}, 17", f"s_lshl_b32 {s(sT)}, {s(sN0)}, 9", f"s_add_u32 {s(sWqB)}, {s(sWqB)}, {s(sT)}")
    I(f"s_lshl_b32 {s(sT)}, {s(sN0)}, 1", f"s_add_u32 {s(sT)}, {s(sT)}, {s(sWm)}", f"s_lshl_b32 {s(sT)}, {s(sT)}, 19", f"s_lshl_b32 {s(sF)}, {s(sMt)}, 15", f"s_add_u32 {s(sT)}, {s(sT)}, {s(sF)}",
      f"s_lshl_b32 {s(sF)}, {s(sWn)}, 12", f"s_add_u32 {s(sT)}, {s(sT)}, {s(sF)}", f"s_add_u32 {s(sQout)}, {s(sT)}, {LY.WS_QA}")
    I(f"s_mov_b32 {s(sCA)}, 0x{f32bits(LY.CA):08x}")
    I(f"s_and_b32 {s(sMtB)}, {s(sJ)}, 7", f"s_lshl_b32 {s(sT)}, {s(sRh)}, 3", f"s_add_u32 {s(sMtB)}, {s(sMtB)}, {s(sT)}")
    I(f"s_lshl_b32 {s(sNtB)}, {s(sCq)}, 2", f"s_cmp_eq_u32 {s(sCq)}, 3", f"s_cselect_b32 {s(sT)}, 1, 0", f"s_sub_u32 {s(sNtB)}, {s(sNtB)}, {s(sT)}",
      f"s_lshr_b32 {s(sT)}, {s(sJ)}, 3", f"s_add_u32 {s(sNtB)}, {s(sNtB)}, {s(sT)}")
    I(f"s_cmp_ge_u32 {s(sNtB)}, 9", f"s_cselect_b32 {s(sBt)}, 1, 0", f"s_cmp_ge_u32 {s(sCq)}, 2", f"s_cselect_b32 {s(sF)}, 3, 99", f"s_cmp_eq_u32 {s(sT)}, {s(sF)}", f"s_cselect_b32 {s(sBt)}, 2, {s(sBt)}")
    I(f"s_lshl_b32 {s(sT)}, {s(sMtB)}, 2", f"s_add_u32 {s(sT)}, {s(sT)}, {s(sWave)}", f"s_mul_i32 {s(sXbB)}, {s(sT)}, {32*1152}")
    I(f"s_mul_i32 {s(sWbB)}, {s(sWave)}, {16*3456}", f"s_lshl_b32 {s(sT)}, {s(sNtB)}, 8", f"s_add_u32 {s(sWbB)}, {s(sWbB)}, {s(sT)}")
    issue([("P", 2), ("P", 1), ("R", 2), ("R", 3)])
    if "samesrc" in os.environ.get("EXP", ""):
        I(f"s_mul_i32 {s(sXqB)}, {s(sWave)}, {32*1152}", f"s_lshl_b32 {s(sWqB)}, {s(sWave)}, 17", f"s_mul_i32 {s(sXbB)}, {s(sWave)}, {32*1152}", f"s_mul_i32 {s(sWbB)}, {s(sWave)}, {16*3456}")
    if "samedst" in os.environ.get("EXP", ""):
        for i in range(8): I(f"s_mov_b32 {s(sKVo+i)}, {i*8192*4}")
        I(f"s_mov_b32 {s(sQout)}, 0")
    I(f"v_and_b32 {v(vT)}, 31, v0", f"v_lshlrev_b32 {v(TT)}, 7, {v(vT)}", f"v_lshrrev_b32 {v(TT+1)}, 5, v0", f"v_lshrrev_b32 {v(TT+2)}, 1, v0", f"v_and_b32 {v(TT+2)}, 7, {v(TT+2)}")
    for ks in range(4):
        I(f"v_add_u32 {v(vT)}, {2*ks}, {v(TT+1)}", f"v_xor_b32 {v(vT)}, {v(vT)}, {v(TT+2)}", f"v_lshl_add_u32 {v(aXR+ks)}, {v(vT)}, 4, {v(TT)}")
        I(f"s_lshl_b32 {s(sT)}, {s(sWm)}, 14", f"s_add_u32 {s(sT)}, {s(sT)}, {PB}", f"v_add_u32 {v(aXP+ks)}, {s(sT)}, {v(aXR+ks)}", f"v_add_u32 {v(aXP2+ks)}, 65536, {v(aXP+ks)}")
        I(f"s_lshl_b32 {s(sT)}, {s(sWm)}, 13", f"v_add_u32 {v(aXB+ks)}, {s(sT)}, {v(aXR+ks)}")
    I(f"v_lshrrev_b32 {v(TT)}, 5, v0", f"v_lshlrev_b32 {v(TT)}, 3, {v(TT)}", f"v_and_b32 {v(TT+1)}, 15, v0", f"v_lshrrev_b32 {v(TT+1)}, 2, {v(TT+1)}",
      f"v_add_u32 {v(TT)}, {v(TT)}, {v(TT+1)}", f"v_lshlrev_b32 {v(TT+1)}, 2, {v(TT+1)}",
      f"v_lshrrev_b32 {v(TT+2)}, 4, v0", f"v_and_b32 {v(TT+2)}, 1, {v(TT+2)}", f"v_lshlrev_b32 {v(TT+2)}, 1, {v(TT+2)}",
      f"v_and_b32 {v(TT+3)}, 3, v0", f"v_lshrrev_b32 {v(TT+3)}, 1, {v(TT+3)}", f"v_add_u32 {v(TT+2)}, {v(TT+2)}, {v(TT+3)}",
      f"v_and_b32 {v(TT+3)}, 1, v0", f"v_lshlrev_b32 {v(TT+3)}, 3, {v(TT+3)}")
    def waddr(dst, cb_s_mul, cb_reg, cb_const, rowshift, base):
        I(f"s_mul_i32 {s(sT)}, {s(cb_reg)}, {cb_s_mul}", f"s_add_u32 {s(sT)}, {s(sT)}, {cb_const}", f"v_xor_b32 {v(vT)}, {s(sT)}, {v(TT+1)}", f"v_add_u32 {v(vT)}, {v(vT)}, {v(TT+2)}",
          f"v_lshl_add_u32 {v(vT)}, {v(vT)}, 4, {v(TT+3)}", f"v_lshl_add_u32 {v(dst)}, {v(TT)}, {rowshift}, {v(vT)}")
        if base: I(f"v_add_u32 {v(dst)}, {base}, {v(dst)}")
    for tn in range(2):
        waddr(aWB + tn, 8, sWn, 4 * tn, 8, PB); I(f"v_add_u32 {v(aWB2+tn)}, 65536, {v(aWB+tn)}")
    for tn in range(4): waddr(aWR + tn, 16, sWn, 4 * tn, 9, RB)
    for tn in range(2):
        waddr(aWP + tn, 8, sWave, 4 * tn, 9, PB); I(f"v_add_u32 {v(aWP2+tn)}, 65536, {v(aWP+tn)}")
    for i in range(34): I(f"v_mov_b32 {v(BADR+i)}, 0x{OOB:08x}") if False else None
    addr_ops = {"QK": b_addr_ops("QK", locals()), "V": b_addr_ops("V", locals())}
    pf = []
    sA_, sB_ = 98, 99
    pf += [f"s_lshl_b32 {s(sA_)}, s2, 2", f"s_add_u32 {s(sA_)}, {s(sA_)}, {s(sWave)}"]
    for i, (srd, nlines) in enumerate(((SXB, 18432), (SWB, 15552), (SXQ, 18432), (SWQ, 36864), (SWOA, 36864), (SWOB, 5184))):
        c = -(-nlines // 1024)
        pf += [f"s_mul_i32 {s(sB_)}, {s(sA_)}, {c}", f"v_add_u32 {v(PFV+i)}, {s(sB_)}, v0", f"v_lshlrev_b32 {v(PFV+i)}, 7, {v(PFV+i)}", f"v_mov_b32 {v(PFV+7)}, 0x{OOB:08x}",
               (f"v_cmp_gt_u32 vcc, {c}, v0", "s_nop 1", f"v_cndmask_b32 {v(PFV+i)}, {v(PFV+7)}, {v(PFV+i)}, vcc"),
               f"buffer_load_dword {v(PFV+8)}, {v(PFV+i)}, {s(srd,4)}, 0 offen"]
    if os.environ.get("NOPF"): pf = []

    def xf(b, t): return v(XF[b] + 4 * t, 4)
    def wf(b, t): return v(WF[b] + 4 * t, 4)
    def wf2(b, t, rd): return v(WF[b] + 4 * t + 2 * rd, 2)
    def stage_p(g): return STAGE_P[g]
    def last_user(u): return LAST_USER[u]
    def nks(g): return 2 if ph(g) == "K" else 4
    def reads(g, ks, b):
        L = []
        sl = stage_p(g) % 3
        if ph(g) == "B":
            for tm in range(2): L.append(f"ds_read_b128 {xf(b,tm)}, {v(aXB+ks)} offset:{(g%4)*16384 + tm*4096}")
            for tn in range(2):
                base, off = (aWB, sl * 32768) if sl < 2 else (aWB2, 0)
                for rd in range(2): L.append(f"ds_read_b64_tr_b16 {wf2(b,tn,rd)}, {v(base+tn)} offset:{off + (ix(g) & 1) * 16384 + ks*4096 + rd*1024}")
        elif ph(g) == "K":
            kk = 2 * (ix(g) & 1) + ks
            for tm in range(4):
                base, off = (aXP, sl * 32768) if sl < 2 else (aXP2, 0)
                L.append(f"ds_read_b128 {xf(b,tm)}, {v(base+kk)} offset:{off + tm*4096}")
            for tn in range(4):
                for rd in range(2): L.append(f"ds_read_b64_tr_b16 {wf2(b,tn,rd)}, {v(aWR+tn)} offset:{(g%4)*16384 + ks*8192 + rd*2048}")
        else:
            for tm in range(4): L.append(f"ds_read_b128 {xf(b,tm)}, {v(aXR+ks)} offset:{(g%4)*16384 + tm*4096}")
            for tn in range(2):
                base, off = (aWP, sl * 32768) if sl < 2 else (aWP2, 0)
                for rd in range(2): L.append(f"ds_read_b64_tr_b16 {wf2(b,tn,rd)}, {v(base+tn)} offset:{off + ks*8192 + rd*2048}")
        return L
    def mfmas(g, ks, b, var):
        first = ix(g) == 0 and ks == 0
        L = []
        if ph(g) == "B":
            for tm in range(2):
                for tn in range(2):
                    ac = v(BA + (tm * 2 + tn) * 16, 16)
                    A, B = (wf(b, tn), xf(b, tm)) if var[1] == "QK" else (xf(b, tm), wf(b, tn))
                    L.append(f"v_mfma_f32_32x32x16_bf16 {ac}, {A}, {B}, {'0' if first else ac}")
        elif ph(g) == "K":
            for tm in range(4):
                for tn in range(4):
                    ac = a((tm * 4 + tn) * 16, 16)
                    A, B = (wf(b, tn), xf(b, tm)) if var[0] == "K" else (xf(b, tm), wf(b, tn))
                    L.append(f"v_mfma_f32_32x32x16_bf16 {ac}, {A}, {B}, {'0' if first else ac}")
        else:
            for tm in range(4):
                for tn in range(2):
                    ac = v(QA + (tm * 2 + tn) * 16, 16)
                    L.append(f"v_mfma_f32_32x32x16_bf16 {ac}, {wf(b,tn)}, {xf(b,tm)}, {'0' if first else ac}")
        return L
    def kv_epi():
        L = []
        for tm in range(4):
            for tn in range(4):
                base = (tm * 4 + tn) * 16
                for i in range(16): L.append(f"v_accvgpr_read_b32 {v(TT+i)}, {a(base+i)}")
                for i in range(8): L.append(f"v_cvt_pk_bf16_f32 {v(UU+i)}, {v(TT+2*i)}, {v(TT+2*i+1)}")
                for f in range(2):
                    L.append((f"s_add_u32 {s(sT2)}, {s(sKVo+2*tn+f)}, {tm*8192}", f"buffer_store_dwordx4 {v(UU+4*f,4)}, {v(vL16)}, {s(SWS,4)}, {s(sT2)} offen{STF}"))
        return L
    def q_epi():
        L = []
        for tm in range(4):
            for tn in range(2):
                base = QA + (tm * 2 + tn) * 16
                for i in range(16): L.append(f"v_mul_f32 {v(base+i)}, {s(sCA)}, {v(base+i)}")
                for i in range(8): L.append(f"v_cvt_pk_bf16_f32 {v(base+i)}, {v(base+2*i)}, {v(base+2*i+1)}")
                if tn == 0: L.append(f"s_add_u32 {s(sT2)}, {s(sQout)}, {tm*8192}")
                for f in range(2):
                    L.append(f"buffer_store_dwordx4 {v(base+4*f,4)}, {v(vL16)}, {s(SWS,4)}, {s(sT2)} offen offset:{(2*tn+f)*1024}{STQ}")
        return L
    def b_epi():
        L = []; n = 0
        for tm in range(2):
            for tn in range(2):
                base = BA + (tm * 2 + tn) * 16
                for p in range(8):
                    r = BTMP + (n % 8); n += 1
                    L += [f"v_mul_f32 {v(base+2*p)}, {s(sBsc)}, {v(base+2*p)}", f"v_mul_f32 {v(base+2*p+1)}, {s(sBsc)}, {v(base+2*p+1)}",
                          f"v_cvt_pk_bf16_f32 {v(r)}, {v(base+2*p)}, {v(base+2*p+1)}", f"buffer_store_dword {v(r)}, {v(BADR + (tm*2+tn)*8 + p)}, {s(SWS,4)}, 0 offen"]
        for st in range(4):
            for tn in range(2):
                L.append(f"buffer_store_dwordx4 {v(BONE+2,4)}, {v(BADR+32+tn)}, {s(SWS,4)}, {s(4+st)} offen")
        return L

    def run_segment(g0, g1, var, epi_ops, vml, carry, epi_lo=0, epi_lim=None, epi2=None, epi2_lo=0):
        lastg = GE - 1
        backbone = []; ctl = {}; rd_streams = []; bars = []
        for g in range(g0, g1):
            n = nks(g)
            for ks in range(n):
                m = mfmas(g, ks, ks & 1, var)
                start = len(backbone); backbone += m; L = len(m)
                if ks < n - 1: nxt = reads(g, ks + 1, (ks + 1) & 1)
                elif g + 1 <= lastg: nxt = reads(g + 1, 0, 0)
                else: nxt = []
                hi = start + L - (3 if L >= 8 else 2)
                if nxt: rd_streams.append([(r, start, hi) for r in nxt])
                if ks == n - 2: ctl[start + L - 1] = ("BAR", g); bars.append((start + L - 1, g))
                else: ctl[start + L - 1] = "W"
        n = len(backbone)
        dma_stream = []
        nextbar = lambda x: min([bg for bg, _ in bars if bg > x], default=n - 1)
        if carry: dma_stream += [((tag, d), 0, max(0, nextbar(-1) - 1)) for tag, d in carry]
        carry_out = []
        for bg, g in bars:
            items = []
            if g + 4 <= lastg: items += [(("R", g + 4), d) for d in Ritem(g + 4)]
            u = stage_p(g)
            if last_user(u) == g and u + 3 < UE: items += [(("P", u + 3), d) for d in Pitem(u + 3)]
            nb = [x for x, _ in bars if x > bg]
            if nb: dma_stream += [(it, bg + 1, nb[0] - 1) for it in items]
            else:
                room = (n - 1 - bg) // 2
                take = min(len(items), room) if g1 <= lastg else len(items)
                dma_stream += [(it, bg + 1, n - 1) for it in items[:take]]
                carry_out = items[take:]
        streams = [[(tuple(d), e, l) for (tag, d), e, l in dma_stream]] if dma_stream else [[]]
        streams += rd_streams
        if epi_ops: streams.append([(o, epi_lo, n - 1 if epi_lim is None else epi_lim) for o in epi_ops])
        if epi2: streams.append([(o, epi2_lo, n - 1) for o in epi2])
        base = [0] * n
        for gp, c in ctl.items(): base[gp] += 8 if c != "W" else 4
        asg, load = anneal(n, base, streams)
        slots = {gp: [] for gp in range(n)}
        for si in list(range(1, len(streams))) + [0]:
            for (op, e, l), gp, idx in zip(streams[si], asg[si], range(len(streams[si]))):
                slots[gp].append((op, dma_stream[idx][0][0] if si == 0 else None))
        out = []
        for gi in range(n):
            out.append(backbone[gi])
            for op, tag in slots[gi]:
                ls = list(op) if isinstance(op, tuple) else [op]
                out += ls
                if tag is not None: vml.append(tag)
                else:
                    for l in ls:
                        if l.startswith("buffer_"): vml.append(("E", 0))
            c = ctl.get(gi)
            if c == "W": out.append("s_waitcnt lgkmcnt(0)")
            elif c is not None:
                g = c[1]
                need = [("R", g + 1), ("P", stage_p(g + 1))] if g + 1 <= lastg else []
                if need:
                    assert all(x in vml for x in need), (g, need)
                    idx = max(i for i, tg in enumerate(vml) if tg in need)
                    out.append(f"s_waitcnt vmcnt({min(len(vml) - 1 - idx, 63)}) lgkmcnt(0)")
                else: out.append("s_waitcnt lgkmcnt(0)")
                out.append("s_barrier")
        ex = os.environ.get("EXP", "")
        def keep(l):
            if "nolds" in ex and l.startswith("ds_read"): return False
            if "nomfma" in ex and l.startswith("v_mfma"): return False
            if "nodma" in ex and l.startswith("buffer_load"): return False
            if "nost" in ex and l.startswith("buffer_store"): return False
            if "nobst" in ex and l.startswith("buffer_store_dword "): return False
            if "nokst" in ex and l.startswith("buffer_store_dwordx4") and "v[12" in l: return False
            return True
        if "novm" in ex: out = [("s_waitcnt lgkmcnt(0)" if l.startswith("s_waitcnt vmcnt") else l) for l in out]
        if ex: out = [l for l in out if keep(l)]
        if os.environ.get("VERB"): print(f"seg {g0}-{g1} {var}: loads", load[:96])
        return out, carry_out

    nafter = len(vmlog) - 1 - max(i for i, tg in enumerate(vmlog) if tg in (("R", 0), ("P", 0)))
    I(f"s_waitcnt vmcnt({nafter})", "s_barrier")
    vml = list(vmlog)
    k.stamp(1)
    I(reads(0, 0, 0), "s_waitcnt lgkmcnt(0)")
    gB = max(g for g in range(GQ) if ph(g) == "B") + 1
    I(f"s_lshl_b32 {s(sT)}, {s(sIsV)}, 1", f"s_min_u32 {s(sT2)}, {s(sBt)}, 1", f"s_add_u32 {s(sT)}, {s(sT)}, {s(sT2)}")
    I(f"s_cmp_eq_u32 {s(sT)}, 1", "s_cbranch_scc1 L_pj_c1", f"s_cmp_eq_u32 {s(sT)}, 2", "s_cbranch_scc1 L_pj_c2", f"s_cmp_eq_u32 {s(sT)}, 3", "s_cbranch_scc1 L_pj_c3")
    segs = {}
    for ci, var in enumerate((("K", "QK"), ("K", "V"), ("V", "QK"), ("V", "V"))):
        if ci: I(f"L_pj_c{ci}:")
        vm1 = list(vml)
        sg, c1 = run_segment(0, gB, var, pf, vm1, [], epi_lo=32, epi_lim=200, epi2=addr_ops[var[1]], epi2_lo=8)
        I(sg)
        I(f"s_branch L_pj_{var[0]}2")
        segs[var] = sg
    k2 = {}
    be = b_epi()
    for kv in ("K", "V"):
        I(f"L_pj_{kv}2:")
        if kv == "K": k.stamp(2)
        vm2 = list(vm1)
        sg, c2 = run_segment(gB, GQ, (kv, "V"), be, vm2, c1, epi_lo=2, epi_lim=185)
        I(sg)
        if kv == "K": I("s_branch L_pj_Q")
        k2[kv] = sg
    I("L_pj_Q:")
    k.stamp(3)
    segQ, _ = run_segment(GQ, GE, ("K", "V"), kv_epi(), vm2, c2, epi_lo=4)
    I(segQ)
    k.stamp(4)
    I("s_nop 7", "s_nop 7"); I(q_epi())
    k.stamp(5)
    I("L_pj_end:", "s_endpgm")
    flat = lambda L: [l for l in L if not l.endswith(":") and not l.startswith("s_cbranch")]
    pre = reads(0, 0, 0) + ["s_waitcnt lgkmcnt(0)"]
    check(pre + flat(segs[("K", "QK")]) + flat(k2["K"]) + flat(segQ) + ["s_nop 7", "s_nop 7"] + q_epi(), "proj_K_QK")
    check(pre + flat(segs[("V", "V")]) + flat(k2["V"]) + flat(segQ), "proj_V_V")
    return k

def b_addr_ops(var, L):
    sWm, sWn, sNtB, sMtB, sBt, sBsc = (L[x] for x in ("sWm", "sWn", "sNtB", "sMtB", "sBt", "sBsc"))
    TT, UU, BADR, BONE, BTMP = L["TT"], L["UU"], L["BADR"], L["BONE"], L["BTMP"]
    sa, sb, sc, sd, se, sf = 92, 93, 94, 95, 96, 97
    va, vb = TT + 14, TT + 15
    O = []
    O += [f"v_mov_b32 {v(BONE+2+i)}, 0x3f803f80" for i in range(4)]
    if var == "QK":
        O += [f"s_mov_b32 {s(4+st)}, 0" for st in range(4)]
        O += [f"v_mov_b32 {v(BADR+32)}, 0x{OOB:08x}", f"v_mov_b32 {v(BADR+33)}, 0x{OOB:08x}"]
        vTab, vMain, vLeft, vIdx = TT + 8, TT + 9, TT + 11, TT + 13
        sIsK, sC0 = se, sf
        O += [f"s_lshl_b32 {s(sC0)}, {s(sNtB)}, 7", f"s_lshl_b32 {s(sa)}, {s(sWn)}, 6", f"s_add_u32 {s(sC0)}, {s(sC0)}, {s(sa)}"]
        O += [tuple([f"s_cmp_ge_u32 {s(sC0)}, 576", f"s_cselect_b32 {s(sIsK)}, 1, 0"] + csel(sBsc, "0x3f800000", f"0x{f32bits(LY.CB):08x}") + [f"s_cselect_b32 {s(sa)}, 576, 0"]),
              f"s_sub_u32 {s(sC0)}, {s(sC0)}, {s(sa)}"]
        O += [f"v_and_b32 {v(va)}, 31, v0", f"v_lshlrev_b32 {v(vb)}, 1, {v(va)}", f"v_add_u32 {v(vb)}, {s(sC0)}, {v(vb)}",
              f"v_mul_u32_u24 {v(TT)}, 3641, {v(vb)}", f"v_lshrrev_b32 {v(TT)}, 16, {v(TT)}",
              f"v_mul_u32_u24 {v(TT+1)}, 18, {v(TT)}", f"v_sub_u32 {v(TT+1)}, {v(vb)}, {v(TT+1)}",
              f"v_lshrrev_b32 {v(TT+2)}, 2, {v(TT+1)}", f"v_and_b32 {v(TT+2)}, 1, {v(TT+2)}", f"v_lshlrev_b32 {v(TT+2)}, 9, {v(TT+2)}",
              f"v_and_b32 {v(TT+3)}, 3, {v(TT+1)}", f"v_lshrrev_b32 {v(TT+3)}, 1, {v(TT+3)}", f"v_lshrrev_b32 {v(TT+4)}, 3, {v(TT+1)}", f"v_lshl_add_u32 {v(TT+3)}, {v(TT+4)}, 1, {v(TT+3)}",
              f"v_lshl_add_u32 {v(TT+2)}, {v(TT+3)}, 2, {v(TT+2)}"]
        O += [tuple([f"s_cmp_eq_u32 {s(sIsK)}, 0"] + csel(sa, 65536, LY.HEADB) + csel(sb, 8192, LY.HEADB))]
        O += [f"v_mul_lo_u32 {v(TT+3)}, {v(TT)}, {s(sa)}", f"v_add_u32 {v(TT+2)}, {v(TT+2)}, {v(TT+3)}",
              f"v_mul_lo_u32 {v(TT+3)}, {v(TT)}, {s(sb)}", f"v_or_b32 {v(TT+3)}, 0x80000000, {v(TT+3)}",
              (f"v_cmp_eq_u32 vcc, 16, {v(TT+1)}", "s_nop 1", f"v_cndmask_b32 {v(vTab)}, {v(TT+2)}, {v(TT+3)}, vcc")]
        for tm in range(2):
            O += [f"s_lshl_b32 {s(sa)}, {s(sMtB)}, 2", f"s_lshl_b32 {s(sb)}, {s(sWm)}, 1", f"s_add_u32 {s(sa)}, {s(sa)}, {s(sb)}", f"s_add_u32 {s(sa)}, {s(sa)}, {tm}"]
            O += [f"s_lshr_b32 {s(sd)}, {s(sa)}, 3", f"s_mul_i32 {s(sd)}, {s(sd)}, {LY.CHB}", f"s_add_u32 {s(sd)}, {s(sd)}, {LY.WS_KVB}",
                  f"s_and_b32 {s(sb)}, {s(sa)}, 7", f"s_lshl_b32 {s(sb)}, {s(sb)}, 10", f"s_add_u32 {s(sb)}, {s(sb)}, {s(sd)}",
                  f"s_and_b32 {s(sc)}, {s(sa)}, 4", f"s_lshl_b32 {s(sc)}, {s(sc)}, 7", f"s_add_u32 {s(sd)}, {s(sd)}, {s(sc)}", f"s_add_u32 {s(sd)}, {s(sd)}, 8192",
                  f"s_and_b32 {s(sc)}, {s(sa)}, 3", f"s_lshl_b32 {s(sc)}, {s(sc)}, 2", f"s_add_u32 {s(sd)}, {s(sd)}, {s(sc)}",
                  f"s_lshl_b32 {s(sc)}, {s(sa)}, 10", f"s_add_u32 {s(sc)}, {s(sc)}, {LY.WS_QB0}",
                  f"s_lshl_b32 {s(sa)}, {s(sa)}, 7", f"s_add_u32 {s(sa)}, {s(sa)}, {LY.WS_QB1}",
                  (f"s_cmp_eq_u32 {s(sIsK)}, 0", f"s_cselect_b32 {s(sb)}, {s(sc)}, {s(sb)}", f"s_cselect_b32 {s(sd)}, {s(sa)}, {s(sd)}", f"s_cselect_b32 {s(sa)}, 2, 4"),
                  f"v_and_b32 {v(va)}, 31, v0", f"v_lshlrev_b32 {v(vMain+tm)}, 4, {v(va)}", f"v_add_u32 {v(vMain+tm)}, {s(sb)}, {v(vMain+tm)}",
                  f"v_lshlrev_b32 {v(vLeft+tm)}, {s(sa)}, {v(va)}", f"v_add_u32 {v(vLeft+tm)}, {s(sd)}, {v(vLeft+tm)}"]
        O += [f"v_lshrrev_b32 {v(vIdx)}, 5, v0", f"v_lshlrev_b32 {v(vIdx)}, 3, {v(vIdx)}"]
        G = [UU + i for i in range(8)] + [BTMP + i for i in range(8)]
        for tn in range(2):
            for p in range(8):
                i0 = 16 * tn + (p & 1) + 4 * (p >> 1)
                O += [f"v_add_u32 {v(va)}, {i0*4}, {v(vIdx)}", f"ds_bpermute_b32 {v(G[tn*8+p])}, {v(va)}, {v(vTab)}"]
        O += ["s_waitcnt lgkmcnt(0)"]
        for tn in range(2):
            for p in range(8):
                g = G[tn * 8 + p]
                d0, d1 = BADR + tn * 8 + p, BADR + (2 + tn) * 8 + p
                O += [(f"v_cmp_gt_i32 vcc, 0, {v(g)}", f"v_and_b32 {v(g)}, 0x7fffffff, {v(g)}", "s_nop 0",
                       f"v_cndmask_b32 {v(d0)}, {v(vMain)}, {v(vLeft)}, vcc", f"v_cndmask_b32 {v(d1)}, {v(vMain+1)}, {v(vLeft+1)}, vcc"),
                      f"v_add_u32 {v(d0)}, {v(d0)}, {v(g)}", f"v_add_u32 {v(d1)}, {v(d1)}, {v(g)}"]
    else:
        O += [f"s_mov_b32 {s(sBsc)}, 0x3f800000"]
        for tm in range(2):
            for f in range(2):
                O += [f"s_lshl_b32 {s(sa)}, {s(sMtB)}, 3", f"s_lshl_b32 {s(sb)}, {s(sWm)}, 2", f"s_add_u32 {s(sa)}, {s(sa)}, {s(sb)}", f"s_add_u32 {s(sa)}, {s(sa)}, {2*tm+f}",
                      f"s_lshr_b32 {s(sb)}, {s(sa)}, 4", f"s_mul_i32 {s(sb)}, {s(sb)}, {LY.CHB}", f"s_and_b32 {s(sa)}, {s(sa)}, 15", f"s_mul_i32 {s(sa)}, {s(sa)}, 608",
                      f"s_add_u32 {s(sa)}, {s(sa)}, {s(sb)}", f"s_add_u32 {s(4 + 2*tm + f)}, {s(sa)}, {LY.WS_KVB + 9216}"]
        for tn in range(2):
            O += [f"s_lshl_b32 {s(sa)}, {s(sNtB)}, 7", f"s_lshl_b32 {s(sb)}, {s(sWn)}, 6", f"s_add_u32 {s(sa)}, {s(sa)}, {s(sb)}", f"s_add_u32 {s(sa)}, {s(sa)}, {32*tn}", f"s_sub_u32 {s(sa)}, {s(sa)}, 1152",
                  (f"s_cmp_eq_u32 {s(sBt)}, 2", f"s_cselect_b32 {s(sa)}, 4096, {s(sa)}"),
                  f"v_and_b32 {v(va)}, 31, v0", f"v_add_u32 {v(va)}, {s(sa)}, {v(va)}",
                  f"v_mul_u32_u24 {v(vb)}, 3641, {v(va)}", f"v_lshrrev_b32 {v(vb)}, 16, {v(vb)}",
                  f"v_mul_u32_u24 {v(TT)}, 18, {v(vb)}", f"v_sub_u32 {v(TT)}, {v(va)}, {v(TT)}",
                  f"s_mov_b32 {s(sb)}, {LY.HEADB}", f"v_mul_lo_u32 {v(vb)}, {v(vb)}, {s(sb)}", f"v_lshl_add_u32 {v(vb)}, {v(TT)}, 4, {v(vb)}",
                  f"v_lshrrev_b32 {v(TT+1)}, 5, v0", f"v_mul_u32_u24 {v(TT+1)}, 304, {v(TT+1)}", f"v_add_u32 {v(vb)}, {v(vb)}, {v(TT+1)}",
                  f"v_mov_b32 {v(TT+2)}, 0x{OOB:08x}",
                  (f"v_cmp_gt_u32 vcc, 576, {v(va)}", "s_nop 1", f"v_cndmask_b32 {v(TT+3)}, {v(TT+2)}, {v(vb)}, vcc"),
                  f"v_add_u32 {v(vb)}, 16, {v(TT+3)}",
                  (f"v_cmp_eq_u32 vcc, 17, {v(TT)}", "s_nop 1", f"v_cndmask_b32 {v(BADR+32+tn)}, {v(TT+2)}, {v(vb)}, vcc")]
            for tm in range(2):
                for p in range(8):
                    d = BADR + (tm * 2 + tn) * 8 + p
                    O += [f"s_add_u32 {s(sa)}, {s(4 + 2*tm + (p >> 2))}, {(p & 3) * 4}", f"v_add_u32 {v(d)}, {s(sa)}, {v(TT+3)}"]
    return O
```
